```python
import torch

def _softmax(x, axis=-1):
    return torch.softmax(x, dim=axis)
def _gelu(x):
    return torch.nn.functional.gelu(x, approximate="tanh")
def _silu(x):
    return torch.nn.functional.silu(x)
def _sigmoid(x):
    return torch.sigmoid(x)
def _layernorm(x, axis=-1, eps=1e-5):
    m = x.mean(dim=axis, keepdim=True)
    v = x.var(dim=axis, keepdim=True, unbiased=False)
    return (x - m) / torch.sqrt(v + eps)
def _scatter_add(tgt, idx, src, axis=0):
    return tgt.clone().index_add_(axis, idx, src)
def _segment_sum(src, seg, n):
    out = torch.zeros((n,) + src.shape[1:], dtype=src.dtype)
    return out.index_add_(0, seg, src)
def _pad(x, pw):
    flat = tuple(v for pair in reversed(pw) for v in pair)
    return torch.nn.functional.pad(x, flat)

kernel_name = 'recurrent_scan__ssm_conv_h3__mixer_token_mlp__prompt'

def setup_inputs():

    _w = (lambda a: (lambda t: t.to(torch.bfloat16) if t.is_floating_point() else t)(torch.as_tensor(a)))
    def _A_setup():
        B, S, D = 1, 2048, 576
        ks = 4
        return {
            "q": _w((lambda *s: torch.randn(*s, dtype=torch.bfloat16) * 0.05)(B, S, D)),
            "k": _w((lambda *s: torch.randn(*s, dtype=torch.bfloat16) * 0.8)(B, S, D)),
            "v": _w((lambda *s: torch.randn(*s, dtype=torch.bfloat16) * 0.8)(B, S, D)),
            "shift_k": _w((lambda *s: torch.randn(*s, dtype=torch.bfloat16) * 0.8)(D, ks) * 0.5),
            "ssm_k": _w((lambda *s: torch.randn(*s, dtype=torch.bfloat16) * 0.8)(D, S) * (1.0 / S ** 0.5)),
            "ssm_D": _w((lambda *s: torch.randn(*s, dtype=torch.bfloat16) * 0.8)(D)),
        }
    _A_in = _A_setup()

    def _B_setup():
        B, S, D, F = 1, 2048, 576, 4608
        return {
            "x": _w((lambda *s: torch.randn(*s, dtype=torch.bfloat16) * 0.05)(B, S, D)),
            "w1": _w((lambda *s: torch.randn(*s, dtype=torch.bfloat16) * 0.8)(S, F) * (S ** -0.5)),
            "b1": _w((lambda *s: torch.randn(*s, dtype=torch.bfloat16) * 12.8)(F) * 0.02),
            "w2": _w((lambda *s: torch.randn(*s, dtype=torch.bfloat16) * 0.2)(F, S) * (F ** -0.5)),
            "b2": _w((lambda *s: torch.randn(*s, dtype=torch.bfloat16) * 3.2)(S) * 0.02),
        }
    _B_in = _B_setup()

    return {
        "A_q": _A_in["q"],
        "A_k": _A_in["k"],
        "A_v": _A_in["v"],
        "A_shift_k": _A_in["shift_k"],
        "A_ssm_k": _A_in["ssm_k"],
        "A_ssm_D": _A_in["ssm_D"],
        "B_x": _B_in["x"],
        "B_w1": _B_in["w1"],
        "B_b1": _B_in["b1"],
        "B_w2": _B_in["w2"],
        "B_b2": _B_in["b2"],
    }

def reference(A_q, A_k, A_v, A_shift_k, A_ssm_k, A_ssm_D, B_x, B_w1, B_b1, B_w2, B_b2):
    def _A_ref(q, k, v, shift_k, ssm_k, ssm_D):
        B, S, D = q.shape
        ks = shift_k.shape[-1]
        k_pad = _pad(k, ((0, 0), (ks - 1, 0), (0, 0)))
        k_shift = torch.zeros_like(k)
        for t in range(ks):
            k_shift = k_shift + k_pad[:, t:t + S, :] * shift_k[:, ks - 1 - t][None, None, :]
        kv = k_shift * v
        L = 2 * S
        kv_pad = _pad(kv, ((0, 0), (0, S), (0, 0)))
        kf_pad = _pad(ssm_k, ((0, 0), (0, S)))
        kv_f = (lambda x, axes=(-2,-1): torch.fft.rfft2(x.float(), dim=axes))(kv_pad[:, None, :, :], axes=(1, 2))
        kf_f = (lambda x, axes=(-2,-1): torch.fft.rfft2(x.float(), dim=axes))(kf_pad[:, None, :], axes=(1, 2))
        kf_f = (lambda x, *d: x.permute(*d))(kf_f, 1, 2, 0)
        y_f = kv_f * kf_f[None, :, :, :]
        y = (lambda x, s, axes=(-2,-1): torch.fft.irfft2(x, s=s, dim=axes).to(torch.bfloat16))(y_f, (1, L), axes=(1, 2))[:, 0, :S, :]
        y = y + kv * ssm_D[None, None, :]
        return q * y

    def _B_ref(x, w1, b1, w2, b2):
        B, S, D = x.shape
        h = _layernorm(x, axis=-1)
        u = torch.einsum("bsd,sf->bdf", h, w1) + b1
        u = _gelu(u)
        y = torch.einsum("bdf,fs->bds", u, w2) + b2
        return (lambda x, *d: x.permute(*d))(y, 0, 2, 1)

    x = A_q
    xn = _layernorm(x, axis=-1)
    s = _A_ref(xn, A_k, A_v, A_shift_k, A_ssm_k, A_ssm_D)
    g = _silu(_B_ref(xn, B_w1, B_b1, B_w2, B_b2))
    return x + s * g
```

```python
import re

TRANS = ("v_exp_f32","v_log_f32","v_rcp_f32","v_rsq_f32","v_sqrt_f32","v_sin_f32","v_cos_f32","v_rcp_iflag_f32")
REG = re.compile(r"\b([vas])\[(\d+):(\d+)\]|\b([vas])(\d+)\b|\b(vcc|exec|m0|vcc_lo|vcc_hi|scc)\b")

def regs_of(tok):
    out=set()
    for m in REG.finditer(tok):
        if m.group(1):
            for r in range(int(m.group(2)), int(m.group(3))+1): out.add(m.group(1)+str(r))
        elif m.group(4): out.add(m.group(4)+m.group(5))
        else:
            n=m.group(6)
            out.add("vcc" if n.startswith("vcc") else n)
    return out

def split_ops(s):
    ops=[];d=0;cur=""
    for ch in s:
        if ch=="[": d+=1
        if ch=="]": d-=1
        if ch=="," and d==0: ops.append(cur.strip()); cur=""
        else: cur+=ch
    if cur.strip(): ops.append(cur.strip())
    return ops

class Ins:
    __slots__=("text","op","w","r","kind","passes","srcc","srcab","dpp","isnop","states","label","storedata")
    def __init__(self,text):
        self.text=text
        t=text.split(";")[0].strip()
        self.label = t.endswith(":") or t.startswith(".") or t=="" or t.startswith("@W")
        self.w=set();self.r=set();self.kind="other";self.passes=0;self.srcc=set();self.srcab=set();self.dpp=False
        self.states=0 if self.label else 1; self.storedata=set(); self.op=""
        if self.label: return
        p=t.split(None,1); op=p[0]; self.op=op
        ops=split_ops(p[1]) if len(p)>1 else []
        if op=="s_nop": self.states=int(ops[0],0)+1; self.kind="nop"; return
        if op.startswith("v_mfma"):
            self.kind="mfma"; self.passes=8 if "32x32" in op else 4
            self.w=regs_of(ops[0]); self.srcab=regs_of(ops[1])|regs_of(ops[2]); self.srcc=regs_of(ops[3]); self.r=self.srcab|self.srcc
        elif op.startswith("v_"):
            self.kind="valu"
            self.dpp = ("_dpp" in op) or ("row_" in t) or ("quad_perm" in t)
            nd=1
            if op.startswith(("v_add_co","v_sub_co","v_addc_co","v_subb_co","v_div_scale","v_mad_u64")): nd=2
            for o in ops[:nd]: self.w|=regs_of(o)
            for o in ops[nd:]: self.r|=regs_of(o)
            if op.startswith(("v_fmac","v_pk_fmac","v_permlane","v_writelane","v_dot2c")) or "_sdwa" in op or self.dpp: self.r|=regs_of(ops[0])
            if op.startswith("v_permlane") and "swap" in op: self.w|=regs_of(ops[1])
            if op.startswith("v_cmpx"): self.w.add("exec")
        elif op.startswith("ds_"):
            self.kind="ds"
            if op.startswith(("ds_read","ds_bpermute","ds_permute","ds_swizzle")):
                self.w=regs_of(ops[0])
                for o in ops[1:]: self.r|=regs_of(o)
            else:
                for o in ops: self.r|=regs_of(o)
        elif op.startswith(("buffer_","global_")):
            self.kind="vmem"
            islds = bool(re.search(r"\blds\b", t)) or "load_lds" in op
            if "load" in op and not islds:
                self.w=regs_of(ops[0])
                for o in ops[1:]: self.r|=regs_of(o)
            else:
                for o in ops: self.r|=regs_of(o)
                if islds: self.r.add("m0")
                if "store" in op and ("x4" in op or "x3" in op):
                    self.storedata=regs_of(ops[0] if op.startswith("buffer_") else ops[1])
                if "atomic" in op and " sc0" in t: self.w=regs_of(ops[0])
        elif op.startswith("s_"):
            self.kind="salu"
            if op.startswith(("s_cmp","s_cbranch","s_branch","s_waitcnt","s_barrier","s_endpgm","s_sleep","s_setprio","s_setpc","s_bitcmp")):
                for o in ops: self.r|=regs_of(o)
            else:
                if ops: self.w=regs_of(ops[0])
                for o in ops[1:]: self.r|=regs_of(o)
                if "saveexec" in op: self.w.add("exec")

def need(prod, cons):
    n=0
    vw={x for x in prod.w if x[0] in "va" and x!="vcc"}
    sw={x for x in prod.w if x[0]=="s" or x=="vcc"}
    if prod.kind=="valu":
        if cons.kind=="mfma" and vw&cons.r: n=max(n,2)
        if cons.kind=="mfma" and "op_sel:" in prod.text: n=max(n,3)
        if cons.kind=="valu":
            if cons.dpp and vw&cons.r: n=max(n,2)
            if cons.op.startswith("v_permlane") and vw&cons.r: n=max(n,2)
            if cons.op.startswith(("v_readlane","v_readfirstlane")) and vw&cons.r: n=max(n,1)
            if sw&cons.r: n=max(n,4 if cons.op.startswith(("v_readlane","v_writelane","v_div_fmas")) else 2)
            if prod.op.split("_e")[0] in TRANS and vw&cons.r: n=max(n,1)
            if ("_sdwa" in prod.op or "op_sel" in prod.text) and vw&(cons.r|cons.w): n=max(n,1)
            if "exec" in prod.w: n=max(n,5)
        if prod.op.startswith("v_dot") and vw&(cons.r|cons.w):
            t=split_ops(cons.text.split(";")[0].split(None,1)[1])
            if not (cons.op==prod.op and not vw&(regs_of(t[1])|regs_of(t[2]))): n=max(n,3)
        if cons.kind=="vmem" and sw&cons.r: n=max(n,5)
        if cons.kind=="salu" and sw&cons.r: n=max(n,2)
        if cons.kind=="mfma" and "exec" in prod.w: n=max(n,4)
        if prod.op.split("_e")[0] in TRANS and cons.kind in("vmem","ds","mfma") and vw&cons.r: n=max(n,2)
    if prod.kind=="mfma":
        big={4:8,8:12}[prod.passes]
        if cons.kind=="mfma":
            if prod.w&cons.srcab: n=max(n,big)
            if prod.w&cons.srcc and not (prod.w==cons.srcc and prod.passes==cons.passes): n=max(n,big-2)
            if prod.w&cons.w and not prod.w&cons.srcc: n=max(n,big)
        elif cons.kind in("valu","vmem","ds"):
            if prod.w&(cons.r|cons.w): n=max(n,big)
            if cons.kind=="valu" and prod.srcc&cons.w: n=max(n,{4:3,8:7}[prod.passes])
    if prod.kind=="salu" and "m0" in prod.w and "m0" in cons.r and cons.kind in("vmem","ds"): n=max(n,1)
    if prod.storedata and prod.storedata&cons.w: n=max(n,2)
    return n

class Asm:
    def __init__(self): self.L=[]
    def __call__(self, s):
        for line in s.split("\n"):
            line=line.strip()
            if line: self.L.append(Ins(line))
    def extend(self, lst):
        for s in lst: self(s)
    def fix(self):
        out=[]; labels={}
        def pad(hist, cons):
            d=0; n=0
            for p in reversed(hist):
                if d>=20: break
                k=need(p,cons)
                if k>d: n=max(n,k-d)
                d+=p.states
            return n
        for ins in self.L:
            if not ins.label:
                n=pad(out,ins)
                if n: out.append(Ins(f"s_nop {n-1}"))
            else:
                t=ins.text.split(";")[0].strip()
                if t.endswith(":"): labels[t[:-1]]=len(out)
            out.append(ins)
        changed=True
        while changed:
            changed=False
            labels={}
            for i,ins in enumerate(out):
                t=ins.text.split(";")[0].strip()
                if ins.label and t.endswith(":"): labels[t[:-1]]=i
            for i,ins in enumerate(out):
                if ins.op.startswith(("s_cbranch","s_branch")):
                    tgt=ins.text.split(";")[0].split()[1]
                    if tgt not in labels: continue
                    hist=out[max(0,i-24):i+1]; j=labels[tgt]; d=0; worst=0
                    hist=list(hist)
                    base=len(hist)
                    while j<len(out) and d<20:
                        c=out[j]
                        if not c.label:
                            dd=d;
                            for p in reversed(hist[:base]):
                                if dd>=20: break
                                k=need(p,c)
                                if k>dd: worst=max(worst,k-dd)
                                dd+=p.states
                            d+=c.states
                            if c.op.startswith(("s_branch","s_endpgm","s_setpc")): break
                        j+=1
                    if worst:
                        out.insert(i,Ins(f"s_nop {worst-1}")); changed=True; break
        self.L=out
    def text(self):
        return "\n".join(("" if i.label else "    ")+i.text for i in self.L if i.text)+"\n"

def interleave(main, fill, start=0, end=None, per=None):
    end=len(main) if end is None else end
    n=end-start; out=[]; k=0
    for i,m in enumerate(main):
        out.append(m)
        if start<=i<end:
            tgt=((i-start+1)*len(fill)+n-1)//n if per is None else min(len(fill),(i-start+1)*per)
            while k<tgt: out.append(fill[k]); k+=1
    while k<len(fill): out.append(fill[k]); k+=1
    return out

def srd(a, s, lo, nbytes):
    a(f"s_mov_b32 s{s}, s{lo}\ns_and_b32 s{s+1}, s{lo+1}, 0xffff\ns_mov_b32 s{s+2}, {nbytes}\ns_mov_b32 s{s+3}, 0x20000")

def kdesc(name, vgpr, agpr=0, sgpr=102):
    acc=(vgpr+3)//4*4
    tot=acc+agpr if agpr else vgpr
    return (f".p2align 6\n.amdhsa_kernel {name}\n  .amdhsa_next_free_vgpr {tot}\n  .amdhsa_next_free_sgpr {sgpr}\n"
            f"  .amdhsa_accum_offset {acc}\n  .amdhsa_group_segment_fixed_size 0\n  .amdhsa_kernarg_size 112\n"
            f"  .amdhsa_user_sgpr_count 2\n  .amdhsa_user_sgpr_kernarg_segment_ptr 1\n  .amdhsa_system_sgpr_workgroup_id_x 1\n"
            f"  .amdhsa_float_denorm_mode_32 3\n.end_amdhsa_kernel\n")

def resolve_vm(paths, lenient=()):
    best={}; skipped=set()
    def cnt(issued, seen, tags, cap):
        n=None
        for tg in tags:
            if tg not in seen and pi in lenient: skipped.add(tg); continue
            assert tg in seen, "wait on never-issued tag "+tg
            if tg in issued:
                c=issued[::-1].index(tg)
                n=c if n is None else min(n,c)
        return None if n is None else min(n,cap)
    def mn(a,b): return b if a is None else (a if b is None else min(a,b))
    for pi,path in enumerate(paths):
        vi=[];li=[];seen=set()
        for seg in path:
            for ins in seg.L:
                t=ins.text
                if t.startswith("@W"):
                    p=t.split()
                    vt=[] if p[1]=="-" else p[1].split(",")
                    lt=p[2] if len(p)>2 else "-"
                    if lt=="lgkmcnt(0)": lt="0"
                    n=cnt(vi,seen,vt,63)
                    m=0 if lt=="0" else cnt(li,seen,[] if lt=="-" else lt.split(","),15)
                    if n is not None: vi=vi[len(vi)-n:] if n else []
                    if m is not None: li=li[len(li)-m:] if m else []
                    k=id(ins)
                    if k in best: n,m=mn(best[k][1],n),mn(best[k][2],m)
                    best[k]=(ins,n,m)
                elif ins.kind in("vmem","ds"):
                    mm=re.search(r";\s*@(\S+)",t); tg=mm.group(1) if mm else "?"
                    if tg!="-":
                        (vi if ins.kind=="vmem" else li).append(tg); seen.add(tg)
                elif ins.op=="s_waitcnt" and "@-" not in t:
                    mm=re.search(r"vmcnt\((\d+)\)",t)
                    if mm: k=int(mm.group(1)); vi=vi[max(0,len(vi)-k):] if k else []
                    mm=re.search(r"lgkmcnt\((\d+)\)",t)
                    if mm: k=int(mm.group(1)); li=li[max(0,len(li)-k):] if k else []
    for ins,n,m in best.values():
        txt=(f" vmcnt({n})" if n is not None else "")+(f" lgkmcnt({m})" if m is not None else "")
        ins.__init__("s_waitcnt"+txt if txt else "")
    return skipped

def cost(item):
    c=0
    for l in item.split("\n"):
        l=l.strip()
        if not l or l.endswith(":"): continue
        if l.startswith("ds_write_b128"): c+=2.5
        elif l.startswith(("buffer_","global_")): c+=1.5
        elif l.startswith("v_pk_") or l.split()[0] in TRANS: c+=2
        elif l.startswith("ds_"): c+=1.2
        else: c+=1
    return c
class Gaps:
    def __init__(self, mf): self.mf=mf; self.g=[[] for _ in mf]; self.pre=[[] for _ in mf]
    def load(self,i):
        return sum(cost(x) for x in self.g[i])+(sum(cost(x) for x in self.pre[i+1]) if i+1<len(self.mf) else 1)
    def put(self, items, start=0, end=None):
        end=len(self.mf) if end is None else end
        n=end-start
        for k,it in enumerate(items): self.g[start+k*n//len(items)].append(it)
    def fit(self, items, start=0, end=None):
        end=len(self.mf) if end is None else end
        n=end-start; m=len(items); base=[self.load(start+i) for i in range(n)]; c=[cost(x) for x in items]
        INF=1e18
        f=[[INF]*(m+1) for _ in range(n+1)]; ch=[[0]*(m+1) for _ in range(n+1)]; f[0][0]=0
        for i in range(n):
            for k in range(m+1):
                if f[i][k]>=INF: continue
                tot=base[i]; dev=0
                for r in range(0,min(4,m-k)+1):
                    if r: tot+=c[k+r-1]; dev+=((k+r-0.5)*n/m-(i+0.5))**2
                    v=f[i][k]+tot*tot+4*max(0,tot-2.2)**2+0.01*dev
                    if v<f[i+1][k+r]: f[i+1][k+r]=v; ch[i+1][k+r]=r
        assert f[n][m]<INF
        k=m
        for i in range(n,0,-1):
            r=ch[i][k]; self.g[start+i-1]+=items[k-r:k]; k-=r
    def before(self, i, item): self.pre[i].append(item)
    def over(self): return sum(max(0,self.load(i)-2.2) for i in range(len(self.mf)))
    def emit(self, a):
        for m,p,f in zip(self.mf,self.pre,self.g):
            a.extend(p); a(m); a.extend(f)

import subprocess, tempfile, os
def ins_sizes(L):
    txt='.amdgcn_target "amdgcn-amd-amdhsa--gfx950"\n.text\n'+"\n".join(i.text for i in L if i.text and not i.text.startswith(".p2align")) +"\n"
    d=tempfile.mkdtemp(); open(d+"/a.s","w").write(txt)
    r=subprocess.run(["clang","-x","assembler","-target","amdgcn-amd-amdhsa","-mcpu=gfx950","-c",d+"/a.s","-o",d+"/a.o"],capture_output=True,text=True)
    assert r.returncode==0, r.stderr[:2000]
    o=subprocess.run(["llvm-objdump","-d","--mcpu=gfx950",d+"/a.o"],capture_output=True,text=True).stdout
    sz=[4*len(m.group(1).split()) for m in re.finditer(r"// [0-9A-F]{12}: ((?:[0-9A-F]{8} ?)+)",o)]
    out=[];k=0
    for i in L:
        if i.label or not i.text: out.append(0)
        else: out.append(sz[k]); k+=1
    assert k==len(sz),(k,len(sz))
    return out
def page_landings(L, origin, chains, nw=4):
    sz=ins_sizes(L); out=[]; off=None; cur=None; land={c[0]:[] for c in chains}; nextp=0; ez=False
    for ins,n in zip(L,sz):
        t=ins.text.split(";")[0].strip()
        if t==origin+":": off=0
        if t==".p2align 12" and off is not None: off=(off+4095)//4096*4096
        for c in chains:
            if t==c[2]+":" and cur==c[0]: cur=None
        for c in chains:
            if t==c[1]+":":
                cur=c[0]
                if off is not None: nextp=off
        if off is not None and n and off>=nextp and not ez:
            if cur:
                a=Ins(f"L_pl_{cur}_{len(land[cur])}:"); b=Ins("s_nop 0"); land[cur].append(b); out+= [a,b]; off+=4
            nextp=(off//4096+1)*4096
        out.append(ins)
        if "exec" in ins.w or t.startswith("s_mov_b64 exec"): ez = t!="s_mov_b64 exec, -1"
        if off is not None: off+=n
    for name,bs in land.items():
        for k,b in enumerate(bs): b.__init__(f"s_cbranch_execz "+(f"L_pl_{name}_{k+nw}" if k+nw<len(bs) else "L_wret"))
    z=False
    for i in out:
        t=i.text.split(";")[0].strip()
        if t.startswith("s_mov_b64 exec"): z = t!="s_mov_b64 exec, -1"
        assert not (z and t.startswith("s_cbranch_execz")), "landing inside a modified-EXEC window"
    return out,{k:len(v) for k,v in land.items()}
```

```python
WS_HT=0
WS_KVT=0x240000
WS_YC=0x480000
WS_U=0x6c0000
WS_STATS=0x6c0000+0x510000
WS_STAMP=WS_STATS+0x4000
WS_FLAGS=WS_STAMP+0x20000
WS_END=WS_FLAGS+0x40000
U2_PL=17*1024; U2_KS=4*U2_PL
WS_U2=WS_END
WS_END=WS_U2+144*U2_KS
WS_XC=WS_END
WS_END=WS_XC+256*20480
WS_XB=WS_END
WS_END=WS_XB+216*24576
WS_F4=WS_END
WS_END=WS_F4+1024*128
WS_F5=WS_END
WS_FU=WS_F5+1024*128
WS_END=WS_FU+2*32768
WS_XT=WS_END
WS_END=WS_XT+864*8192
```

```python
import sys, struct, re
from asmlib import *
from layout import *
NAME="recurrent_scan__ssm_conv_h3__mixer_token_mlp__prompt"
KN=NAME+"_kernel"
OPT=dict(stamps=0, nln=4, nkv=0, npost=10, nA=9, rate=140, lat=3, lead1=1, lead2=2, cflag=0, nin=0, spinmax=100000, sleep=0,
         fpl=2, xm=1, w2=9, hrot=1, jp=23, jy=27, ostore="sc1", cvper=2, cvA=0, upad=1, b0=1, b1=1, nrot=18, tstep=0, maxb=8, jxp=29, jxf=25, gxl=0, xbf=1, xfl=1, nrk=3, cpl=4, cpr=0, w1w='3_6_7', rate2=100, q0=0, q1=0, bsp=1, jbf=44, jbp=49, jbl=53, jbu=57, nh=6, bursts='16.4_17.14_18.14_19.24', quiet=2, tburst=-1, cvs=0, bn=1, h0=4, iw=1, kvend=50, tlb=0, otouch=0, dx=1, hpat=0, hp2=0, badd=1, hs=0, hs2=0, dfit=0, tep='', tparts=1, tquiet=1, cvt=0, cvts=2, xrot=1, jxl=34, npre=0, gpre=0, npre33=0, nrg=14, jr0=3, jxr=6, n63=1, bch=1, cch=1, dch=2, f0=18, jrs=20, smove=2, je0=0, jen=12, clump=1, ramp=0, cfrac=100, pf=0, pfr=4, pf0=288, pfs=0, pfa=2, pfb=22, rgm=1, w2w='16_2', wd=2, wg=1, xe=1)
def f2h(x): return "0x%08x"%struct.unpack("<I",struct.pack("<f",x))[0]
S_Q,S_K,S_V,S_SK,S_SSM,S_D,S_BX,S_W1,S_B1,S_W2,S_B2,S_OUT,S_DBG,S_WS=16,18,20,22,24,26,28,30,32,34,36,38,40,42
WS="s[44:47]"; RW1="s[48:51]"; RW2="s[52:55]"; RA="s[56:59]"; RB_="s[60:63]"; RC="s[64:67]"
NONCE,N1,M1,N2,M2,LW,LH,TID=68,69,70,71,72,73,74,75
K1,K2,KA=76,84,18
NB_SD=2048*576*2
FLAG1=WS_FLAGS; FLAG2=WS_FLAGS+32768; FLAG3=WS_FLAGS+65536
SLOT=16384; HR=7*SLOT; HS=12288
LN_STR=1216; LN_ST=144896; KV_ST=LN_ST+8*LN_STR
OOB="0x40000000"
def P(r): return f"v[{r}:{r+1}]"
def Q(r,k="v"): return f"{k}[{r}:{r+3}]"
def flat(x): return sum(x,[])

def stamp(a,c,fine=None):
    if OPT.get("probe") is not None:
        if fine is None and c==OPT["probe"]: a("s_memrealtime s[28:29]\ns_waitcnt lgkmcnt(0)")
        return
    if OPT.get("fine") and fine!=OPT["fine"] and c!=14: return
    if fine and not OPT.get("fine"): return
    if OPT["stamps"]:
        a(f"s_memrealtime s[28:29]\ns_memtime s[0:1]\ns_waitcnt lgkmcnt(0)\nv_writelane_b32 v254, s28, {c}\nv_writelane_b32 v254, s0, {16+c}")
def stamps_out(a):
    a(f"s_lshl_b32 s4, s{TID}, 2\ns_add_u32 s4, s4, s3\ns_lshl_b32 s4, s4, 7\ns_add_u32 s4, s4, {WS_STAMP}\nv_lshlrev_b32 v255, 2, v2\ns_mov_b64 exec, 0xffffffff")
    a(f"buffer_store_dword v254, v255, {WS}, s4 offen")

def unpack(dst,src): return [f"v_and_b32 v{dst+1}, 0xffff0000, v{src}", f"v_lshlrev_b32 v{dst}, 16, v{src}"]
def reduce32(r,t):
    L=[f"v_add_f32_dpp v{r}, v{r}, v{r} row_ror:{sh} row_mask:0xf bank_mask:0xf" for sh in (8,4,2,1)]
    return L+[f"v_mov_b32 v{t}, v{r}", f"v_permlane16_swap_b32 v{r}, v{t}", f"v_add_f32 v{r}, v{r}, v{t}"]
def rbf(r): return [f"v_cvt_pk_bf16_f32 v{r}, v{r}, v{r}", f"v_lshlrev_b32 v{r}, 16, v{r}"]
NEG1="op_sel_hi:[1,0] neg_lo:[0,1] neg_hi:[0,1]"
def ln_fused(X,T,M,RS,D,ST):
    L=[f"v_pk_add_f32 {P(T+2*i)}, {P(X+4*i)}, {P(X+4*i+2)}" for i in range(4)]
    L+=[f"v_pk_add_f32 {P(T)}, {P(T)}, {P(T+2)}", f"v_pk_add_f32 {P(T+4)}, {P(T+4)}, {P(T+6)}", f"v_pk_add_f32 {P(T)}, {P(T)}, {P(X+16)}", f"v_pk_add_f32 {P(T)}, {P(T)}, {P(T+4)}"]
    L+=[f"v_add_f32 v{M}, v{T}, v{T+1}"]+reduce32(M,M+1)+[f"v_mul_f32 v{M}, 0x3ae38e39, v{M}"]
    L+=[f"v_pk_add_f32 {P(X+2*j)}, {P(X+2*j)}, {P(M)} {NEG1}" for j in range(9)]
    L+=[f"v_pk_mul_f32 {P(T)}, {P(X)}, {P(X)}", f"v_pk_mul_f32 {P(T+2)}, {P(X+2)}, {P(X+2)}"]
    L+=[f"v_pk_fma_f32 {P(T+2*(j&1))}, {P(X+2*j)}, {P(X+2*j)}, {P(T+2*(j&1))}" for j in range(2,9)]
    L+=[f"v_pk_add_f32 {P(T)}, {P(T)}, {P(T+2)}", f"v_add_f32 v{RS}, v{T}, v{T+1}"]+reduce32(RS,RS+1)
    L+=[f"v_mul_f32 v{RS}, 0x3ae38e39, v{RS}"]
    L+=[f"v_cvt_pk_bf16_f32 v{T}, v{M}, v{RS}", f"v_lshlrev_b32 v{ST}, 16, v{T}", f"v_and_b32 v{T}, 0xffff0000, v{T}",
        f"v_add_f32 v{T}, 0x3727c5ac, v{T}", f"v_sub_f32 v{M}, v{M}, v{ST}"]+rbf(T)+[f"v_sqrt_f32 v{T}, v{T}"]+rbf(T)+[f"v_rcp_f32 v{ST+1}, v{T}"]
    L+=[f"v_mul_f32 v{M}, v{M}, v{ST+1}", f"v_mul_f32 v{RS}, v{RS}, v{ST+1}", f"v_mul_f32 v{RS}, v{RS}, v{ST+1}",
        f"v_cvt_pk_bf16_f32 v{T}, v{M}, v{RS}", f"v_lshlrev_b32 v{T+1}, 16, v{T}", f"v_and_b32 v{T}, 0xffff0000, v{T}",
        f"v_add_f32 v{T}, 0x3727c5ac, v{T}", f"v_sub_f32 v{M}, v{M}, v{T+1}"]+rbf(T)+[f"v_sqrt_f32 v{T}, v{T}"]+rbf(T)+[f"v_rcp_f32 v{T}, v{T}"]
    L+=[f"v_mul_f32 v{RS}, v{ST+1}, v{T}", f"v_mul_f32 v{M}, v{M}, v{T}"]
    L+=[f"v_pk_fma_f32 {P(X+2*j)}, {P(X+2*j)}, {P(RS)}, {P(M)} op_sel_hi:[1,0,0]" for j in range(9)]
    L+=[f"v_cvt_pk_bf16_f32 v{D+j}, v{X+2*j}, v{X+2*j+1}" for j in range(9)]
    return L

VW2,VA,VAM,RB2,XR,ST,PV,B2,XO=4,8,9,10,14,26,28,30,252
ACC2,RT,AF,WV=32,116,140,220
ACC1,HF,BIAS,VW1,RW1B,VH,RH,GT=32,80,144,148,152,156,159,160
NT=18; NREG=15
SIGMA={15:9,16:0,17:1}

def w2reg(t): return ("a",16*t) if t<16 else ("v",WV+16*(t-16))
def w2dma(t,slot):
    L=[f"s_add_u32 m0, s{LW}, {slot*SLOT}\ns_lshl_b32 s14, s{K2+t}, 17"]
    return L+[f"buffer_load_dwordx4 v{VW2+r}, {RW2}, s14 offen offset:{1024*r} lds ; @w2_{t}" for r in range(4)]
def krow(dst): return f"s_and_b32 s{dst}, s{M2}, 1\ns_lshl_b32 s{dst}, s{dst}, 2\ns_add_u32 s{dst}, s{dst}, s3"
class W2R:
    def __init__(self): self.win=0
    def goto(self,w):
        d=(w-self.win)*65536; self.win=w
        return [f"v_add_u32 v{RB2+nt}, {d}, v{RB2+nt}" for nt in range(4)] if d else []
    def reads(self,t,slot):
        kind,r0=w2reg(t); adj=self.goto(slot>>2); L=[]
        for nt in range(4):
            for hf in range(2):
                s=f"ds_read_b64_tr_b16 {kind}[{r0+4*nt+2*hf}:{r0+4*nt+2*hf+1}], v{RB2+nt} offset:{(slot&3)*SLOT+2048*hf} ; @r2_{t}"
                L.append((adj[nt]+"\n" if adj and hf==0 else "")+s)
        return L
def w2setup():
    L=["v_lshrrev_b32 v24, 3, v2","v_and_b32 v25, 7, v2","v_bfe_u32 v31, v2, 4, 2","v_lshlrev_b32 v31, 1, v31","v_xor_b32 v25, v25, v31","v_lshlrev_b32 v24, 12, v24","v_lshl_add_u32 v24, v25, 4, v24",
       krow(7)+f"\ns_mul_i32 s7, s7, {576*4096}\ns_lshl_b32 s8, s{N2}, 7\ns_add_u32 s7, s7, s8\nv_add_u32 v{VW2}, s7, v24"]
    L+=[f"v_add_u32 v{VW2+i}, {32768-1024}, v{VW2+i-1}" for i in range(1,4)]
    L+=["v_lshrrev_b32 v24, 2, v2","v_lshlrev_b32 v24, 7, v24","v_and_b32 v25, 3, v2","v_lshl_add_u32 v24, v25, 3, v24",f"v_add_u32 v24, s{LW}, v24","v_bfe_u32 v31, v2, 3, 2","v_xor_b32 v31, s3, v31"]
    for nt in range(4): L+=[f"v_xor_b32 v25, {nt}, v31", f"v_lshl_add_u32 v{RB2+nt}, v25, 5, v24"]
    return L
def k2table():
    if OPT["w2w"]:
        L=[]; b=0; ws=[int(x) for x in str(OPT["w2w"]).split("_")]; assert sum(ws)==18 and ws[-1]>1
        for W in ws:
            L.append(f"s_mul_i32 s{K2+b}, s{K2+17}, {W}\ns_lshr_b32 s{K2+b}, s{K2+b}, 2\ns_add_u32 s{K2+b}, s{K2+b}, {b}")
            L+=[f"s_add_u32 s{K2+i}, s{K2+i-1}, 1\ns_cmp_eq_u32 s{K2+i}, {b+W}\ns_cselect_b32 s{K2+i}, {b}, s{K2+i}" for i in range(b+1,b+W)]
            b+=W
        return L
    W=OPT["w2"]; NRot=OPT["nrot"]
    L=[f"s_add_u32 s{K2+i}, s{K2+i-1}, 1\ns_cmp_eq_u32 s{K2+i}, {W}\ns_cselect_b32 s{K2+i}, 0, s{K2+i}" for i in range(1,W)]
    return L+[f"s_add_u32 s{K2+i}, s{K2+i-W}, {W}" for i in range(W,NRot)]+[f"s_mov_b32 s{K2+i}, {i}" for i in range(NRot,18)]
def tailtouch(v=1):
    n=(18-OPT["nrot"])*8
    if not n: return []
    k=OPT["tparts"]; m=n//k; assert n%k==0 and m<=64
    L=[krow(15)+f"\ns_mul_i32 s15, s15, 576\ns_lshr_b32 s6, s{M2}, 1\ns_mul_i32 s6, s6, {n}\ns_add_u32 s15, s15, s6\ns_add_u32 s15, s15, {OPT['nrot']*32}\nv_min_u32 v{v}, {m-1}, v2\nv_add_u32 v{v}, s15, v{v}\nv_lshlrev_b32 v{v}, 12, v{v}\ns_lshl_b32 s15, s{N2}, 7"]
    return L+[f"buffer_load_dword v255, v{v}, {RW2}, s15 offen ; @tt"+(f"\ns_add_u32 s15, s15, {m*4096}" if i<k-1 else "") for i in range(k)]
def auxpf(v):
    rp=OPT["pfr"]; f0=OPT["pf0"]; per=-(-(576-f0)//(5*rp)); skip=OPT["pfs"]
    L=[krow(15)+f"\ns_mul_i32 s15, s15, 576\ns_lshr_b32 s6, s2, 3\ns_sub_u32 s6, s6, 27\ns_mul_i32 s6, s6, {rp}\ns_add_u32 s15, s15, s6\ns_add_u32 s15, s15, {f0}\ns_lshl_b32 s15, s15, 12\n"
       f"s_lshr_b32 s6, s{N2}, 3\ns_lshl_b32 s6, s6, 10\ns_add_u32 s15, s15, s6\nv_lshrrev_b32 v{v}, 3, v2\nv_min_u32 v{v}, {rp-1}, v{v}\nv_and_b32 v255, 7, v2\n"
       +("v_cmp_eq_u32 vcc, 3, v255\nv_cndmask_b32 v255, v255, 2, vcc\n" if skip else "")+f"v_lshlrev_b32 v{v}, 12, v{v}\nv_lshl_add_u32 v{v}, v255, 7, v{v}"]
    return L+[f"buffer_load_dword v255, v{v}, {RW2}, s15 offen ; @pf\ns_add_u32 s15, s15, {5*rp*4096}" for i in range(per)]
def eprep():
    return [f"v_and_b32 v24, 15, v2\ns_lshl_b32 s7, s{N2}, 6\ns_lshl_b32 s8, s3, 4\ns_add_u32 s7, s7, s8\nv_add_u32 v24, s7, v24\nv_mul_u32_u24 v25, 1152, v24",
            f"v_lshrrev_b32 v31, 4, v2\nv_lshl_add_u32 v25, v31, 3, v25\ns_mul_i32 s8, s{M2}, 144\nv_add_u32 v25, s8, v25\ns_and_b32 s7, s{M2}, 1\ns_lshl_b32 s8, s7, 4\nv_add_u32 v{XO}, s8, v25",
            f"s_mul_i32 s8, s7, 144\ns_sub_u32 s8, 128, s8\nv_add_u32 v25, s8, v25\nv_lshrrev_b32 v31, 5, v2\nv_cmp_eq_u32 vcc, s7, v31\nv_mov_b32 v31, {OOB}\nv_cndmask_b32 v{XO+1}, v31, v25, vcc",
            f"v_lshlrev_b32 v25, 1, v24\nv_lshlrev_b32 v{ST}, 3, v24\nbuffer_load_ushort v{B2}, v25, {RB_}, 0 offen ; @eb"]

COLD=[]
def flag_prep(idx_sgpr, base, v=1):
    f=OPT["fpl"]
    return [f"s_lshr_b32 s4, s{idx_sgpr}, {f}\ns_lshl_b32 s4, s4, 7\ns_and_b32 s5, s{idx_sgpr}, {(1<<f)-1}\ns_lshl2_add_u32 s4, s5, s4\ns_add_u32 s4, s4, {base}",
            f"v_min_u32 v{v}, 1, v0\nv_lshlrev_b32 v{v}, 30, v{v}\nv_add_u32 v{v}, s4, v{v}"]
def flag_store(a): a(f"v_mov_b32 v3, s{NONCE}\nbuffer_store_dword v3, v1, {WS}, 0 offen sc1 ; @fl")
def pv(tag): return 18 if tag=="p2G" else PV
def poll_addr(first_expr, n, base, v=PV):
    f=OPT["fpl"]
    return [first_expr+f"\nv_min_u32 v{v}, {n-1}, v2", f"v_add_u32 v{v}, s4, v{v}", f"v_and_b32 v{v+1}, {(1<<f)-1}, v{v}", f"v_lshrrev_b32 v{v}, {f}, v{v}",
            f"v_lshlrev_b32 v{v}, 7, v{v}", f"v_lshl_add_u32 v{v}, v{v+1}, 2, v{v}", f"v_add_u32 v{v}, {base}, v{v}"]
def poll_issue(tag): return f"buffer_load_dword v{pv(tag)+1}, v{pv(tag)}, {WS}, 0 offen sc1 ; @{tag}"
def poll_check(tag):
    v=pv(tag); sl=f"s_sleep {OPT['sleep']}\n" if OPT["sleep"] else ""
    if not any(c.startswith(f"L_rs_{tag}:") for c in COLD): COLD.append(f"L_rs_{tag}:\ns_mov_b32 s5, 0\nL_rt_{tag}:\ns_mov_b64 exec, vcc\n{sl}"
            f"buffer_load_dword v{v+1}, v{v}, {WS}, 0 offen sc1\ns_waitcnt vmcnt(0)\nv_cmp_ne_u32 vcc, s{NONCE}, v{v+1}\ns_cbranch_vccz L_rx_{tag}\n"
            f"s_add_u32 s5, s5, 1\ns_cmp_lt_u32 s5, {OPT['spinmax']}\ns_cbranch_scc1 L_rt_{tag}\nL_rx_{tag}:\ns_mov_b64 exec, -1\ns_branch L_ok_{tag}")
    return f"@W {tag}\nv_cmp_ne_u32 vcc, s{NONCE}, v{v+1}\ns_cbranch_vccnz L_rs_{tag}\nL_ok_{tag}:"
def poll1_addr(): return poll_addr("s_lshl_b32 s4, s3, 6",64,FLAG1)
def poll2_addr(v=PV):
    L=poll_addr(krow(4)+f"\ns_mul_i32 s4, s4, 18\ns_lshr_b32 s4, s4, 2\ns_mul_i32 s4, s4, 6\ns_lshr_b32 s5, s{M2}, 1\ns_mul_i32 s5, s5, 3\ns_lshr_b32 s5, s5, 1\ns_add_u32 s4, s4, s5",10,FLAG2,v)
    return L[:1]+[f"v_lshrrev_b32 v{v+1}, 1, v{v}", f"v_lshl_add_u32 v{v}, v{v+1}, 2, v{v}"]+L[1:]

def warm(name):
    if not OPT["iw"]: return []
    return [f"s_mov_b64 exec, 0\ns_call_b64 s[82:83], L_wc_{name}\ns_mov_b64 exec, -1"]

KR,VR,TR=60,82,98
KL=HR; VL=HR+12672
def p0(a):
    a(f".globl {KN}\n.p2align 8\n.type {KN},@function\n{KN}:")
    a("s_cmp_lt_u32 s2, 256\ns_cbranch_scc0 L_exit")
    a("s_load_dwordx2 s[56:57], s[0:1], 0\ns_load_dwordx2 s[48:49], s[0:1], 8\ns_load_dwordx2 s[52:53], s[0:1], 16\ns_load_dwordx2 s[60:61], s[0:1], 24")
    a("s_load_dwordx16 s[16:31], s[0:1], 0\ns_load_dwordx8 s[32:39], s[0:1], 64\ns_load_dwordx4 s[40:43], s[0:1], 96\ns_memrealtime s[12:13]")
    a("v_lshrrev_b32 v1, 6, v0\nv_and_b32 v2, 63, v0")
    nl=OPT["cpl"]; red=OPT["cpr"]
    a(f"s_getpc_b64 s[6:7]\nL_pc:\ns_lshr_b32 s4, s2, 1\ns_and_b32 s4, s4, {(128>>red)-4}\nv_add_u32 v22, s4, v1\nv_lshl_add_u32 v22, v2, {7-red}, v22\nv_lshlrev_b32 v22, 7, v22")
    a(f"v_min_u32 v22, L_end-L_pc-4, v22\ns_mov_b64 exec, {(1<<nl)-1}\nglobal_load_dword v255, v22, s[6:7] ; @code\ns_mov_b64 exec, -1\nv_readfirstlane_b32 s3, v1")
    if OPT["rgm"]: a(f"s_and_b32 s4, s2, 7\ns_lshr_b32 s5, s2, 3\ns_lshl_b32 s4, s4, 5\ns_add_u32 s{NONCE}, s4, s5")
    else: a(f"s_mov_b32 s{NONCE}, s2")
    a(f"v_lshrrev_b32 v3, 5, v0\nv_and_b32 v4, 31, v0\nv_mul_u32_u24 v5, 1152, v3\nv_mad_u32_u24 v5, v4, 12, v5\ns_mul_i32 s15, s{NONCE}, 9216")
    a(f"s_mul_i32 s4, s3, 3072\ns_add_u32 s5, s4, s15\ns_sub_u32 s5, s5, 3456\nv_lshlrev_b32 v6, 4, v2\nv_add_u32 v7, s5, v6\nv_add_u32 v58, 1024, v7")
    a(f"s_add_u32 s4, s4, {KL}\ns_lshl_b32 s5, s3, 11\ns_add_u32 s11, s5, s15\ns_add_u32 s5, s5, {VL}\ns_mov_b32 m0, s4")
    for r,nb in ((56,NB_SD),(48,NB_SD),(52,NB_SD),(60,576*8)): a(f"s_mov_b32 s{r+2}, {nb}\ns_mov_b32 s{r+3}, 0x20000")
    a("v_lshlrev_b32 v59, 3, v0\ns_movk_i32 s10, 4096")
    a("s_waitcnt lgkmcnt(0)")
    stamp(a,1,"P")
    for j in range(3): a(f"buffer_load_dwordx3 v[{8+4*j}:{10+4*j}], v5, {RA}, s15 offen offset:{384*j} ; @x")
    a("buffer_load_dwordx4 v7, s[48:51], 0 offen lds ; @kv\ns_add_u32 m0, s4, 1024\ns_cmp_eq_u32 s3, 3")
    a("buffer_load_dwordx4 v58, s[48:51], 0 offen lds ; @kv\nbuffer_load_dwordx4 v58, s[48:51], 0 offen offset:1024 lds ; @kv\ns_cbranch_scc1 L_xld\nL_nox:\ns_mov_b32 m0, s5")
    COLD.insert(0,"L_xld:\ns_mov_b64 exec, 0xffffff\nbuffer_load_dwordx4 v58, s[48:51], 0 offen offset:2048 lds\ns_mov_b64 exec, -1\ns_mov_b32 m0, s5\nbuffer_load_dwordx4 v6, s[52:55], s11 offen offset:2048 lds\ns_branch L_nox")
    a(f"buffer_load_dwordx2 {P(TR)}, v59, {RB_}, 0 offen ; @kv")
    a("buffer_load_dwordx4 v6, s[52:55], s11 offen lds ; @kv\nbuffer_load_dwordx4 v6, s[52:55], s11 offen offset:1024 lds ; @kv")
    a(f"buffer_load_dwordx2 {P(TR+2)}, v59, {RB_}, 0 offen offset:2048 ; @kv\nbuffer_load_dwordx2 {P(TR+4)}, v59, {RB_}, s10 offen ; @kv")
    srd(a,64,S_DBG,256)
    if OPT["stamps"]: a("v_writelane_b32 v254, s12, 0")
    a(f"s_or_b32 s12, s12, 1\nv_or_b32 v22, s2, v0\nv_lshlrev_b32 v22, 8, v22\nv_mov_b32 v23, s12\nbuffer_store_dword v23, v22, {RC}, 0 offen sc1 ; @pub")
    stamp(a,2,"P")
    srd(a,44,S_WS,WS_END)
    a("s_and_b32 s5, s2, 7\ns_lshr_b32 s6, s2, 3")
    a(f"s_lshr_b32 s7, s6, 2\ns_lshr_b32 s13, s5, 1\ns_cmp_ge_u32 s7, 3\ns_addc_u32 s8, s7, 0\ns_cmp_eq_u32 s7, 7\ns_cselect_b32 s8, 3, s8\ns_lshl3_add_u32 s{N2}, s13, s8")
    a(f"s_and_b32 s7, s6, 3\ns_and_b32 s4, s5, 1\ns_lshl1_add_u32 s{M2}, s7, s4")
    if OPT["xrot"]==1: a("s_add_u32 s7, s7, s13\ns_and_b32 s7, s7, 3")
    if OPT["xrot"]==2: a("s_lshr_b32 s8, s6, 2\ns_add_u32 s7, s7, s8\ns_and_b32 s7, s7, 3")
    if OPT["xrot"]==3: a("s_lshr_b32 s8, s6, 2\ns_and_b32 s8, s8, 1\ns_lshl1_add_u32 s7, s8, s7\ns_and_b32 s7, s7, 3")
    if OPT["w2w"]: a(f"s_mov_b32 s{K2+17}, s7")
    a(f"s_mul_i32 s7, s7, {OPT['w2']}\ns_lshr_b32 s{K2}, s7, 2\ns_lshl_b32 s{LW}, s3, 12")
    srd(a,52,S_W2,4608*4096)
    if OPT["smove"]<2: a.extend(k2table())
    a("s_cmp_lt_u32 s6, 27\ns_cbranch_scc0 L_aux")
    if OPT["iw"]==1: a("s_branch L_org\nL_exit:\ns_endpgm\n.p2align 12\nL_org:")
    else: COLD.append("L_exit:\ns_endpgm")

def phaseA(a, tag, fill_ln, fill_kv, fill_post):
    X,T,M,RS,D=20,38,56,18,8
    L=flat([unpack(X+2*j,8+4*(j//3)+j%3) for j in range(9)])+ln_fused(X,T,M,RS,D,106)
    a(f"s_mov_b32 s9, {LN_ST}\ns_mov_b32 s11, {KL}")
    stamp(a,3,"P")
    if OPT.get("fine")=="P":
        a("s_waitcnt vmcnt(12)"); stamp(a,4,"P")
        a("s_waitcnt vmcnt(9)"); stamp(a,5,"P")
        a("s_waitcnt vmcnt(6)"); stamp(a,6,"P")
        a("s_waitcnt vmcnt(4)"); stamp(a,7,"P")
        a("s_waitcnt vmcnt(1)"); stamp(a,8,"P")
        a("s_waitcnt vmcnt(0)"); stamp(a,9,"P")
    a("@W x"); stamp(a,1)
    a.extend(interleave(L,fill_ln,0,len(L)-4) if fill_ln else L)
    a(f"v_lshrrev_b32 v3, 5, v0\nv_and_b32 v1, 31, v0\nv_mul_u32_u24 v17, {LN_STR}, v3\nv_mad_u32_u24 v17, v1, 12, v17\nv_add_u32 v17, {LN_ST}, v17")
    for j in range(9): a(f"ds_write_b32 v17, v{D+j} offset:{384*(j//3)+4*(j%3)}")
    a(f"v_lshlrev_b32 v3, 3, v3\ns_lshl_b32 s5, s{NONCE}, 6\ns_add_u32 s5, s5, {WS_STATS}\nv_cmp_eq_u32 vcc, 0, v1\nv_mov_b32 v18, {OOB}\nv_cndmask_b32 v3, v18, v3, vcc")
    a(f"buffer_store_dwordx2 v[106:107], v3, {WS}, s5 offen sc1 ; @st")
    a(f"v_lshrrev_b32 v19, 4, v0\nv_and_b32 v17, 3, v2\nv_lshlrev_b32 v17, 3, v17\nv_lshl_add_u32 v19, v19, 5, v17\nv_bfe_u32 v6, v2, 2, 2\nv_mul_u32_u24 v17, {LN_STR}, v6\nv_mul_u32_u24 v6, 1152, v6")
    a(f"v_add3_u32 v17, v17, v19, s9\nv_add3_u32 v6, v6, v19, s11")
    a(f"v_lshlrev_b32 v19, 4, v0\ns_add_u32 s7, s15, 4096\ns_add_u32 s8, s15, 8192\ns_cmp_eq_u32 s3, 0\ns_cselect_b32 s8, s8, {OOB}\nv_add_u32 v18, {WS_KVT}, v19\nv_mov_b32 v44, 0")
    a("@W kv 0\ns_barrier")
    hrd=[[f"ds_read_b64_tr_b16 {P(20+4*i)}, v17 offset:{512*i} ; @ht{i}", f"ds_read_b64_tr_b16 {P(22+4*i)}, v17 offset:{512*i+4*LN_STR} ; @ht{i}"] for i in range(3)]
    so=("s15","s7","s8")
    hst=[f"@W - ht{i}\nbuffer_store_dwordx4 {Q(20+4*i)}, v19, {WS}, {so[i]} offen sc1 ; @st" for i in range(3)]
    krd=[[f"ds_read_b64_tr_b16 {P(KR+10*i+2*q)}, v6 offset:{512*i+1152*(0,4,8,11,15)[q]} ; @kr{i}" for q in range(5)] for i in range(3)]
    a.extend(krd[0]+flat(hrd)+krd[1][:4])
    stamp(a,2)
    def kvc(i):
        K=KR+10*i; V_=K+6; J=108; T=114; RE=116+8*(i&1); VU=132; O=160+4*i
        L=[f"v_alignbit_b32 v{T}, v{TR+2*i+1}, v{TR+2*i+1}, 16", f"v_alignbit_b32 v{T+1}, v{TR+2*i}, v{TR+2*i}, 16", f"@W - kr{i}"]
        L+=[f"v_alignbit_b32 v{J+m}, v{K+m+1}, v{K+m}, 16" for m in range(5)]
        L+=[f"v_dot2_f32_bf16 v{RE+r}, v{(J if r&1 else K)+(r>>1)}, v{T}, 0" for r in range(8)]
        L+=[f"v_dot2_f32_bf16 v{RE+r}, v{(J if r&1 else K)+(r>>1)+1}, v{T+1}, v{RE+r}" for r in range(8)]
        L+=flat([unpack(VU+2*m,V_+m) for m in range(4)])
        L+=[f"v_pk_mul_f32 {P(RE+2*m)}, {P(RE+2*m)}, {P(VU+2*m)}" for m in range(4)]
        L+=[f"v_cvt_pk_bf16_f32 v{O+p}, v{RE+7-2*p}, v{RE+6-2*p}" for p in range(4)]
        return L+[f"buffer_store_dwordx4 {Q(O)}, v18, {WS}, {so[i]} offen sc1 ; @st"]
    c0=kvc(0)
    L=c0[:8]+interleave(c0[8:],krd[1][4:]+krd[2]+hst,0,24)+kvc(1)+kvc(2)
    a.extend(interleave(L,fill_kv,10,OPT['kvend']) if fill_kv else L)
    a(f"buffer_load_dword v45, v44, {RC}, 0 offen sc1 ; @nonce")
    stamp(a,3)
    a.extend(fill_post)
    a(f"s_bfe_u32 s6, s{NONCE}, 0x20001\ns_lshl_b32 s6, s6, 6\ns_lshr_b32 s7, s{NONCE}, 3\ns_lshl_b32 s7, s7, 1\ns_add_u32 s6, s6, s7\ns_and_b32 s7, s{NONCE}, 1\ns_add_u32 s6, s6, s7")
    a.extend(flag_prep(6,FLAG1))
    a(f"@W nonce\nv_readfirstlane_b32 s{NONCE}, v45\ns_cmp_eq_u32 s{NONCE}, 0\ns_cbranch_scc1 L_nw_{tag}\nL_ng_{tag}:\ns_barrier")
    COLD.append(f"L_nw_{tag}:\ns_mov_b32 s5, 0\nL_nl_{tag}:\nbuffer_load_dword v45, v44, {RC}, 0 offen sc1\ns_waitcnt vmcnt(0)\nv_readfirstlane_b32 s{NONCE}, v45\n"
                f"s_cmp_lg_u32 s{NONCE}, 0\ns_cbranch_scc1 L_ng_{tag}\ns_add_u32 s5, s5, 1\ns_cmp_lt_u32 s5, {OPT['spinmax']}\ns_cbranch_scc1 L_nl_{tag}\ns_branch L_ng_{tag}")
    flag_store(a)
    stamp(a,4)

SIGG={}
def private_steps(R, inflight, free, todo, nxt_drain, role="X"):
    steps=[]; free=list(free); todo=list(todo); inflight=dict(inflight)
    nreg=NREG if role=="X" else OPT["nrg"]
    def pick(t):
        if role=="G":
            if t<nreg: return 8 if 8 in free else (free or [None])[0]
            return ([s for s in free if s!=8] or [None])[0]
        if t in SIGMA: return SIGMA[t] if SIGMA[t] in free else None
        nr=[s for s in free if s not in SIGMA.values()]
        left=len([x for x in todo if x<NREG])
        return (nr or (free if left>4 else []) or [None])[0]
    def issue():
        for t in todo:
            s=pick(t)
            if s is not None:
                todo.remove(t); free.remove(s); inflight[t]=s
                if role=="G" and t>=nreg: SIGG[t]=s
                return w2dma(t,s)
            if role=="G" or (t<NREG and len([x for x in todo if x<NREG])>4): break
        return []
    while True:
        d=issue()
        if not d: break
        steps.append(d)
    prev=None
    for t in nxt_drain:
        st=[f"@W w2_{t} "+(f"r2_{prev}" if (prev is not None and todo) else "-")]
        dm=[]
        if prev is not None:
            free.append(inflight.pop(prev)); dm=issue()
        steps.append(st+interleave(R.reads(t,inflight[t]),dm)); prev=t
    if prev is not None:
        free.append(inflight.pop(prev)); steps.append([f"@W - r2_{prev}"]+issue())
    while todo:
        d=issue(); assert d; steps.append(d)
    return steps

def roleG(a):
    a(f"s_mul_i32 s7, s6, 21846\ns_lshr_b32 s7, s7, 16\ns_mul_i32 s8, s7, 3\ns_sub_u32 s12, s6, s8\ns_mul_i32 s8, s13, 9\ns_add_u32 s{N1}, s8, s7\ns_lshl1_add_u32 s{M1}, s12, s4")
    a(f"s_mul_i32 s8, s{N1}, 6\ns_add_u32 s{TID}, s8, s{M1}")
    srd(a,48,S_W1,2048*4608*2)
    if OPT["hrot"]: a("s_add_u32 s12, s12, s7\ns_mul_i32 s8, s12, 21846\ns_lshr_b32 s8, s8, 16\ns_mul_i32 s8, s8, 3\ns_sub_u32 s12, s12, s8")
    KT=list(range(18,28))+list(range(76,82)); b=0
    a(f"s_mul_i32 s4, s4, {16*73728}")
    for W in [int(x) for x in str(OPT["w1w"]).split("_")]:
        a(f"s_mul_i32 s7, s12, {W*21846}\ns_lshr_b32 s7, s7, 16\ns_mul_i32 s7, s7, 73728\ns_add_u32 s5, s4, {b*73728}\ns_add_u32 s{KT[b]}, s7, s5\ns_add_u32 s8, s5, {W*73728}")
        for i in range(b+1,b+W): a(f"s_add_u32 s{KT[i]}, s{KT[i-1]}, 73728\ns_cmp_eq_u32 s{KT[i]}, s8\ns_cselect_b32 s{KT[i]}, s5, s{KT[i]}")
        b+=W
    assert b==16
    NW1=16
    a("v_lshrrev_b32 v24, 4, v2\nv_and_b32 v25, 15, v2\nv_lshlrev_b32 v26, 1, v24\nv_xor_b32 v25, v25, v26\nv_mul_u32_u24 v24, 9216, v24\nv_lshl_add_u32 v24, v25, 4, v24")
    a(f"s_mul_i32 s7, s3, {16*9216}\ns_lshl_b32 s8, s{N1}, 8\ns_add_u32 s7, s7, s8\nv_add_u32 v{VW1}, s7, v24\nv_add_u32 v{VW1+1}, {36864-1024}, v{VW1}")
    a(f"v_xor_b32 v24, 128, v{VW1}\nv_add_u32 v{VW1+2}, {2*(36864-1024)}, v24\nv_add_u32 v{VW1+3}, {36864-1024}, v{VW1+2}")
    def w1dma(q,slot):
        L=[f"s_add_u32 m0, s{LW}, {slot*SLOT}\ns_lshl_b32 s14, s{KT[q]}, 3"]
        return L+[f"buffer_load_dwordx4 v{VW1+r}, {RW1}, s14 offen offset:{1024*r} lds ; @w1_{q}" for r in range(4)]
    def w1reads(q,slot):
        L=[]
        for ks in range(2):
            for ft in range(2):
                for hf in range(2):
                    r0=16*(q&15)+8*ks+4*ft+2*hf
                    L.append(f"ds_read_b64_tr_b16 a[{r0}:{r0+1}], v{RW1B+2*(slot>>2)+ft} offset:{(slot&3)*SLOT+ks*8192+hf*1024} ; @r1_{q}")
        return L
    rb=["v_bfe_u32 v140, v2, 2, 2","v_lshrrev_b32 v141, 4, v2","v_lshl_add_u32 v142, v141, 3, v140","v_lshlrev_b32 v142, 8, v142","v_and_b32 v143, 3, v2","v_lshl_add_u32 v142, v143, 3, v142",
        "v_and_b32 v141, 1, v141","v_lshl_add_u32 v140, v141, 2, v140","s_lshl_b32 s7, s3, 1","v_xor_b32 v140, s7, v140",f"v_lshl_add_u32 v{RW1B}, v140, 5, v142",f"v_xor_b32 v{RW1B+1}, 32, v{RW1B}",
        f"v_add_u32 v{RW1B+2}, 0x10000, v{RW1B}",f"v_add_u32 v{RW1B+3}, 0x10000, v{RW1B+1}"]
    a.extend(rb)
    UA=240; BU=128; ACCF=192; XA=246; RH2=250
    NH=OPT['nh']; NWB=(163840-NH*HS)//SLOT; HB=NWB*SLOT
    a(f"v_and_b32 v24, 15, v2\nv_lshrrev_b32 v25, 4, v2\nv_mul_u32_u24 v26, {U2_PL}, v25\nv_lshl_add_u32 v26, v24, 4, v26")
    a(f"v_mul_u32_u24 v25, 1536, v25\nv_lshl_add_u32 v25, v24, 4, v25\nv_add_u32 v{RH}, {HB}, v25\nv_add_u32 v{RH2}, {3*HS}, v{RH}")
    a(f"s_mul_i32 s7, s3, 18432\ns_xor_b32 s8, s{M1}, 1\ns_mul_i32 s8, s8, 1536\ns_add_u32 s7, s7, s8\nv_lshlrev_b32 v{XA}, 4, v2\nv_add_u32 v{VH}, s7, v{XA}")
    a(f"v_lshrrev_b32 v25, 5, v2\nv_mul_u32_u24 v25, {9216-1536}, v25\nv_add_u32 v{VH+1}, v{VH}, v25\nv_add_u32 v{VH+2}, {9216-1536}, v{VH}\ns_mul_i32 s{LH}, s3, 3072\ns_add_u32 s{LH}, s{LH}, {HB}")
    uset=[f"s_mul_i32 s7, s{M1}, 6\ns_add_u32 s7, s7, {dt}\ns_mul_i32 s8, s7, 7282\ns_lshr_b32 s8, s8, 16\ns_mul_i32 s5, s8, 9\ns_sub_u32 s7, s7, s5\ns_lshl_b32 s7, s7, 2\n"
          f"s_mov_b32 s4, 0xba864320\ns_mov_b32 s5, 12\ns_lshr_b64 s[4:5], s[4:5], s7\ns_and_b32 s4, s4, 15\ns_lshl4_add_u32 s4, s8, s4\nv_lshl_add_u32 v{UA+dt}, s4, 8, v{UA+5}" for dt in range(6)]
    a(f"v_mov_b32 v{UA+5}, v26")
    first=[]
    slot={q:s_ for q,s_ in enumerate(list(range(NWB,7))+list(range(NWB)))}
    for q in range(7):
        d=w1dma(q,slot[q]); first+=[d[0]+"\n"+d[1]]+d[2:]
    nln,nkv,npost=OPT["nln"],OPT["nkv"],OPT["npost"]
    phaseA(a,"G",first[:nln],first[nln:nln+nkv],first[nln+nkv:nln+nkv+npost]+(warm("G") if OPT["wg"]==0 else [])+(warm("D") if OPT["wd"]==1 else []))
    if OPT["iw"]==2: a("s_branch L_org\n.p2align 12\nL_org:")
    a("L_segG:")
    a.extend(first[nln+nkv+npost:])
    if OPT["wg"]==1: a.extend(warm("G"))
    if OPT["wd"]==2: a.extend(warm("D"))
    srd(a,56,S_B1,4608*2); srd(a,60,S_B2,4096)
    p1=poll_addr(f"s_and_b32 s4, s{M1}, 1\ns_lshl1_add_u32 s4, s3, s4\ns_lshl_b32 s4, s4, 5",32,FLAG1)
    setup=p1+[f"v_lshrrev_b32 v24, 4, v2\nv_lshlrev_b32 v25, 3, v24\ns_lshl_b32 s7, s{N1}, 8\ns_lshl_b32 s8, s3, 6\ns_add_u32 s7, s7, s8\n"
           f"buffer_load_dwordx2 {P(BIAS)}, v25, {RA}, s7 offen ; @bias\nbuffer_load_dwordx2 {P(BIAS+2)}, v25, {RA}, s7 offen offset:32 ; @bias"]+eprep()+w2setup()+(tailtouch(251)[:1] if OPT["tep"] else [])
    moved=[]
    if OPT["smove"]: moved=setup[8:]; setup=setup[:8]
    nA=OPT["nA"]; nd=max(2,nA-NWB+1)
    per=max(7,(len(setup)+nd-2)//(nd-1))
    assert nd-OPT["lead1"]>=1 and per*(nd-OPT["lead1"])>=7
    nq=7; freeq=[]
    for d in range(nd):
        if d%2==0: stamp(a,1+d//2,"A")
        if d==nd-OPT["lead1"]: a(poll_issue("p1G"))
        a(f"@W w1_{d} 0\ns_barrier")
        dm=[]
        if freeq and nq<nA: slot[nq]=freeq.pop(0)[0]; dm=w1dma(nq,slot[nq]); nq+=1
        a.extend(interleave(w1reads(d,slot[d]),dm)); a.extend(setup[d*per:(d+1)*per])
        if slot[d]<NWB: freeq.append((slot[d],-1))
    assert nq==nA and nd>7-NWB
    if OPT["lead1"]==0: a(poll_issue("p1G"))
    stamp(a,5)
    a(poll_check("p1G"))
    stamp(a,6); stamp(a,1,"B")
    R=W2R()
    issued_at={q:-9 for q in range(nA)}
    nxt_issue,nxt_drain,acc=nA,nd,OPT.get("acc0",50)
    ep_dma={};ep_rd={};ep_wait={};ep_h={}
    bl=[[int(y) for y in x.split(".")] for x in str(OPT["bursts"]).split("_") if "." in x]
    bursts={x[0]:x[1] for x in bl}; bnn={x[0]:(x[2] if len(x)>2 else OPT["bn"]) for x in bl}
    quiet=-1; qfrom=-1; nh=OPT['h0']; lim=NW1+min(OPT['nrg'],OPT['maxb'])
    tep=[int(x) for x in str(OPT["tep"]).split("_") if x]; tl=tailtouch(251)[1:] if tep else []
    def issue(e):
        nonlocal nxt_issue
        s=freeq.pop(0)[0]; t=nxt_issue; slot[t]=s; issued_at[t]=e; nxt_issue+=1
        ep_dma.setdefault(e,[]).extend(w1dma(t,s) if t<NW1 else w2dma(t-NW1,s))
    for e in range(0,31):
        t=nxt_drain
        if t in issued_at and t<NW1+OPT['nrg'] and issued_at[t]+OPT["lat"]+(OPT["quiet"] if (t in bursts or t-1 in bursts) else 0)<=e and (t<NW1 or t<e):
            ep_rd[e]=w1reads(t,slot[t]) if t<NW1 else R.reads(t-NW1,slot[t])
            ep_wait[e]=f"w1_{t}" if t<NW1 else f"w2_{t-NW1}"
            assert t>=NW1 or e<=t-2, (t,e)
            freeq.append((slot[t],e+2)); nxt_drain+=1
        if qfrom<e<=quiet: continue
        k=max(0,min(2,min(e+NH-OPT['hs'],31)+1-nh))
        if OPT["hpat"] and k==1 and nh<31 and OPT["hpat"]<=e:
            if not OPT["hp2"]: k=0
            else: ep_h[e]=[]; continue
        ep_h[e]=list(range(nh,nh+k)); nh+=k
        assert not k or ep_h[e][0]>=e+3, (e,ep_h[e])
        if (k==2 and not (OPT["hp2"] and OPT["hpat"]<=e)) or e<=quiet: continue
        if tep and e>=tep[0]:
            tep.pop(0); ep_dma[e]=[tl.pop(0)]; quiet=e+OPT["tquiet"]; qfrom=e; continue
        ok=len([1 for s_,f in freeq if f<=e])
        if nxt_issue in bursts:
            if e>=bursts[nxt_issue] and ok>=bnn[nxt_issue]:
                tt=nxt_issue==OPT["tburst"]
                for _ in range(bnn[nxt_issue]): issue(e)
                quiet=e+OPT["quiet"]+OPT.get("qlag",0); qfrom=e+OPT.get("qlag",0); acc=100
                if tt: ep_dma[e]=tailtouch()[:1]+ep_dma[e]+tailtouch()[1:]
            continue
        acc+=(OPT["rate"] if nxt_issue<NW1 else OPT["rate2"])*(2 if (OPT["hpat"] and OPT["hpat"]<=e and nh<32) else 1)
        if acc>=100 and ok and nxt_issue<lim and not (OPT["q0"]<=e<OPT["q1"]):
            issue(e); acc-=100
        acc=min(acc,150)
    assert nh==32
    assert nxt_drain>=NW1
    print(f"; B schedule: issue epochs {[issued_at[t] for t in range(nA,nxt_issue)]}; w2 issued {nxt_issue-NW1}, drained {nxt_drain-NW1}; h {''.join(str(len(ep_h.get(e,[]))) for e in range(31))}", file=sys.stderr)
    def hdma(p):
        L=[f"s_add_u32 m0, s{LH}, {(p%NH)*HS}"]
        if p==16: L=[f"s_and_b32 s13, s{M1}, 1\ns_mul_i32 s13, s13, 3072", "s_sub_u32 s13, s13, 1536"]+[f"v_add_u32 v{VH+r}, s13, v{VH+r}" for r in range(3)]+L
        return L+[f"buffer_load_dwordx4 v{VH+r}, {WS}, s{KT[p&15]} offen offset:{1024*r} sc1 lds ; @h{p}" for r in range(3)]
    def hreads(j):
        p,ks=divmod(j,2)
        pos=[(3*ks+(i>>1),i&1) for i in range(6)] if OPT["bch"] else [(i,ks) for i in range(6)]
        return [f"ds_read_b128 {Q(HF+24*(j&1)+4*i)}, v{RH if p%NH<3 else RH2} offset:{(p%NH%3 if p%NH<6 else p%NH-3)*HS+k*6144+dt*256}" for i,(dt,k) in enumerate(pos)]
    csteps=private_steps(R,{t-NW1:slot[t] for t in range(nxt_drain,nxt_issue)},list(range(NWB,10))+[s for s,_ in freeq],range(nxt_issue-NW1,NT),range(nxt_drain-NW1,OPT['nrg']),'G')
    for p in range(OPT['h0']): a.extend(hdma(p))
    a("@W h0 0\ns_barrier")
    a.extend(hreads(0))
    xs=[f"s_xor_b32 s7, s{TID}, 1\ns_lshl2_add_u32 s7, s7, s3", f"s_mul_i32 s9, s7, 6144\ns_add_u32 s9, s9, {WS_XB}", f"s_lshl_b32 s7, s7, 7\ns_add_u32 s6, s7, {WS_F4}",
        f"s_lshl2_add_u32 s7, s{TID}, s3\ns_mul_i32 s10, s7, 6144", f"s_add_u32 s10, s10, {WS_XB}\ns_lshl_b32 s7, s7, 7", f"s_add_u32 s7, s7, {WS_F4}\nv_mov_b32 v{PV}, s7",
        f"v_add_u32 v{XA+1}, 3072, v{XA}", "v_cmp_eq_u32 vcc, 0, v2", f"v_mov_b32 v{XA+2}, {OOB}", f"v_cndmask_b32 v{XA+2}, v{XA+2}, 0, vcc", f"v_mov_b32 v{XA+3}, s{NONCE}"]
    snd=[[f"v_cvt_pk_bf16_f32 v{ACCF+8*dt+k}, v{ACCF+8*dt+2*k}, v{ACCF+8*dt+2*k+1}" for k in range(4)]+[f"buffer_store_dwordx4 {Q(ACCF+8*dt)}, v{XA+dt//3}, {WS}, s9 offen offset:{1024*(dt%3)} sc1 ; @bs"] for dt in range(6)]
    RV=160
    rcv=[poll_check("p5")]+[f"buffer_load_dwordx4 {Q(RV+4*dt)}, v{XA+dt//3}, {WS}, s10 offen offset:{1024*(dt%3)} sc1 ; @bl" for dt in range(6)]
    EX={}
    early=flat([x.split("\n") for x in uset])+xs+["@W bias"]+flat([unpack(BU+2*q,BIAS+q) for q in range(4)])
    if OPT["smove"]: early=flat([x.split("\n") for x in moved])+(k2table() if OPT["smove"]>=2 else [])+early
    early+=flat([x.split("\n") for x in flag_prep(TID,FLAG2,17)+poll2_addr(18)+flat(list(dsetup()))])
    e0,ne=OPT["je0"],OPT["jen"]; CL={}
    nc=len(early)*OPT["cfrac"]//100; restl=early[nc:]; early=early[:nc]; nr_=29-e0-ne
    for k in range(nr_): EX[e0+ne+k]=restl[k*len(restl)//nr_:(k+1)*len(restl)//nr_]
    print("; early instrs",nc,len(restl),file=sys.stderr)
    wts=[1+OPT["ramp"]*(ne-1-k)/max(1,ne-1)/10 for k in range(ne)]; cs=[int(round(len(early)*sum(wts[:k])/sum(wts))) for k in range(ne+1)]
    for k in range(ne): (CL if OPT["clump"] else EX)[e0+k]=early[cs[k]:cs[k+1]]
    js,sp=33,OPT["bsp"]
    for dt in range(6): EX[js+dt*sp]=snd[dt]
    EX[OPT["jbf"]]=[f"@W bs\nbuffer_store_dword v{XA+3}, v{XA+2}, {WS}, s6 offen sc1 ; @bf"]
    EX[OPT["jbp"]]=[poll_issue("p5")]
    EX[OPT["jbl"]]=rcv[:4]; EX[OPT["jbl"]+1]=rcv[4:]
    up=["@W bl"]+flat([unpack(ACCF+2*k,RV+k) for k in range(24)])
    ju=OPT["jbu"]
    ADD={}
    if OPT["badd"]:
        EX[ju]=["@W bl"]
        nk=63-ju;
        for q in range(12):
            assert nk>=6; jj=ju+1+q%6; A=ACC1+4*q; t=ACCF+4*(q//6)
            ADD.setdefault(jj,[]).append((q,unpack(t,RV+2*q)+unpack(t+2,RV+2*q+1),[f"v_add_f32 v{A+r}, v{A+r}, v{t+r}" for r in range(4)]))
    else:
        for k in range(64-ju): EX[ju+k]=up[k*len(up)//(64-ju):(k+1)*len(up)//(64-ju)]
    for j in range(64):
        p,ks=divmod(j,2); e=(j-1)//2; half=(j-1)%2
        mf=[]
        for dt in range(6):
            for ft in range(2):
                acc_=Q((ACCF if j<32 else ACC1)+8*dt+4*ft)
                mf.append(f"v_mfma_f32_16x16x32_bf16 {acc_}, {Q(16*(p&15)+8*ks+4*ft,'a')}, {Q(HF+24*(j&1)+4*dt)}, "+("0" if j==0 else Q(BU+4*ft) if j==32 else acc_))
        if OPT["bch"]:
            mf=[]
            for d in range(3):
                dt=3*ks+d
                for f in range(2):
                    ft=f^(dt&1); acc_=Q((ACCF if j<32 else ACC1)+8*dt+4*ft)
                    for n_,k in enumerate((1,0) if f else (0,1)):
                        mf.append(f"v_mfma_f32_16x16x32_bf16 {acc_}, {Q(16*(p&15)+8*k+4*ft,'a')}, {Q(HF+24*(j&1)+8*d+4*k)}, "+(acc_ if (n_ or p%16) else "0" if p==0 else Q(BU+4*ft)))
        g=Gaps(mf)
        if j%8==0: stamp(a,2+j//8,"B")
        if j%4==0 and j<48: stamp(a,1+j//4,"B1")
        if j%4==0 and j>=16: stamp(a,1+(j-16)//4,"B2")
        if OPT["hs"]: g.before(0,f"@W - H{j}"+("b" if j==63 else "a")); g.before(6,f"@W - H{j}b")
        else: g.before(0,f"@W - H{j}")
        if ks==1:
            tg=([f"h{p+1}"] if p<31 else [])+([ep_wait[e]] if e in ep_wait else [])
            g.put([(f"@W {','.join(tg)}\n" if tg else "")+"s_barrier"],0,1)
        hh=ep_h.get(e,[])
        dm=(hdma(hh[0]) if hh else []) if ks==1 else (hdma(hh[1]) if len(hh)>1 else ep_dma.get(e,[]))
        if len(hh)>1 and e in ep_dma:
            allv=hdma(hh[0])+hdma(hh[1])+ep_dma[e]; dm=allv[:len(allv)//2] if ks==1 else allv[len(allv)//2:]
        if j==63:
            dm=[]
            while len(dm)<5*OPT['n63'] and csteps and not csteps[0][0].startswith("@W") and int(re.search(r"m0, s\d+, (\d+)",csteps[0][0]).group(1))>=NWB*SLOT: dm+=csteps.pop(0)
        if OPT["hs"]:
            if j<63:
                for k,r in enumerate(hreads(j+1)): g.g[(1,3,4,6,8,10)[k]].append(r)
            if e in ep_rd:
                for k,r in enumerate(ep_rd[e][4*half:4*half+4]): g.g[(2,7,9,11)[k] if OPT["hs2"] else (2,5,7,9)[k]].append(r)
            if dm:
                if OPT["dfit"]: g.fit(flat([x.split("\n") for x in dm]),ks,12)
                else: g.put(dm,1 if ks==1 else 0,12)
        else:
            if j<63: g.put(hreads(j+1),1,7)
            if e in ep_rd: g.put(ep_rd[e][4*half:4*half+4],7,11)
            if dm: g.put(dm,1 if ks==1 else 0,12)
        if OPT["bch"] and ADD.get(j):
            dt=3*(1-ks)+(j-58)//2; L_=[]
            for ft in range(2):
                q=2*dt+ft; A=ACC1+4*q; t=ACCF+4*ft
                L_+=unpack(t,RV+2*q)+unpack(t+2,RV+2*q+1)+[f"v_add_f32 v{A+r}, v{A+r}, v{t+r}" for r in range(4)]
            assert ju==57; g.fit(L_,2,11)
        for q,u_,ad in ([] if OPT["bch"] else ADD.get(j,[])):
            c=(q+7)%12
            c=min(max(c,2),10)
            g.put(u_,max(0,c-2),max(c,1)); g.put(ad,c,c+2)
        if EX.get(j): g.fit(EX[j],0,12)
        if CL.get(j):
            c_=OPT["clump"]; n_=len(CL[j])
            for i in range(c_): g.g[(2*i+1)*12//(2*c_)]+=CL[j][i*n_//c_:(i+1)*n_//c_]
        if OPT.get("gnop") and OPT.get("gn0",0)<=j<OPT["gnop"]:
            for i in range(0,12,OPT.get("gns",3)): g.g[i].append("s_nop 7")
        if OPT.get("gcut") and j<OPT.get("gcj",64): g.mf=[m if (i%OPT["gcut"]) else "s_nop 0" for i,m in enumerate(g.mf)]
        g.emit(a)
    stamp(a,7); stamp(a,10,"B"); stamp(a,13,"B2")
    c=0.7978845608028654*2*1.4426950408889634
    BU=HF
    V=[f"v_mov_b32 v{BU+8}, {f2h(-c)}", f"s_mov_b32 s10, {f2h(-c*0.044715)}",
        "v_and_b32 v24, 15, v2","v_lshrrev_b32 v25, 4, v2","v_mul_u32_u24 v25, 9216, v25","v_lshl_add_u32 v24, v24, 4, v25",
        f"s_lshl_b32 s9, s{N1}, 2\ns_add_u32 s9, s9, s3\ns_mul_i32 s9, s9, 36864", f"s_mul_i32 s8, s{M1}, 1536\ns_add_u32 s9, s9, s8\ns_add_u32 s9, s9, {WS_U}"]
    if OPT["upad"]: V=V[:2]+[f"s_lshl_b32 s9, s{N1}, 2\ns_add_u32 s9, s9, s3\ns_mul_i32 s9, s9, {U2_KS}\ns_add_u32 s9, s9, {WS_U2}"]
    for g in range(3):
        A=ACC1+16*g; T=GT; O=HF+16+8*g
        if not OPT["badd"]: V+=[f"v_pk_add_f32 {P(A+2*j)}, {P(A+2*j)}, {P(ACCF+16*g+2*j)}" for j in range(8)]
        V+=[f"v_pk_mul_f32 {P(T+2*j)}, {P(A+2*j)}, {P(A+2*j)}" for j in range(8)]
        V+=[f"v_pk_fma_f32 {P(T+2*j)}, {P(T+2*j)}, s[10:11], {P(BU+8)} op_sel_hi:[1,0,0]" for j in range(8)]
        V+=[f"v_pk_mul_f32 {P(T+2*j)}, {P(T+2*j)}, {P(A+2*j)}" for j in range(8)]
        V+=[f"v_exp_f32 v{T+j}, v{T+j}" for j in range(16)]
        V+=[f"v_pk_add_f32 {P(T+2*j)}, {P(T+2*j)}, 1.0 op_sel_hi:[1,0]" for j in range(8)]
        V+=[f"v_rcp_f32 v{T+j}, v{T+j}" for j in range(16)]
        V+=[f"v_pk_mul_f32 {P(A+2*j)}, {P(A+2*j)}, {P(T+2*j)}" for j in range(8)]
        V+=[f"v_cvt_pk_bf16_f32 v{O+j}, v{A+2*j}, v{A+2*j+1}" for j in range(8)]
        if OPT["upad"]: V+=[f"buffer_store_dwordx4 {Q(O+4*h)}, v{UA+2*g+h}, {WS}, s9 offen sc1 ; @ust" for h in range(2)]
        else: V+=[f"buffer_store_dwordx4 {Q(O+4*h)}, v24, {WS}, s9 offen offset:{256*(2*g+h)} sc1 ; @ust" for h in range(2)]
    a("@W - 0")
    nin=OPT["nin"]
    a.extend(interleave(V,flat(csteps[:nin]),0,len(V)-40))
    stamp(a,8)
    rest=csteps[nin:]
    for s in rest[:OPT["cflag"]]: a.extend(s)
    if OPT["wd"]==0: a.extend(warm("D"))
    a(f"@W ust\ns_barrier\nbuffer_store_dword v{XA+3}, v17, {WS}, 0 offen sc1 ; @fl")
    stamp(a,9)
    rest=rest[OPT["cflag"]:]
    assert OPT["nrot"]==18
    k0=max(0,len(rest)-OPT["lead2"])
    print("; C post steps:", [re.findall(r"lds ; @w2_(\d+)","\n".join(s))[:1] for s in rest], file=sys.stderr)
    for k,s in enumerate(rest):
        if k<13: stamp(a,1+k,"C")
        if k==2 and OPT["wd"]==3: a.extend(warm("D"))
        if k==k0 and OPT["xe"]!=2: a(poll_issue("p2G"))
        if k==OPT["tstep"] and OPT["tburst"]<0 and not OPT["tep"]: a.extend(tailtouch())
        a.extend(s)
    if k0==len(rest) and OPT["xe"]!=2: a(poll_issue("p2G"))
    stamp(a,13,"C")
    return R

CV_IMG=36864; CV_H0=2*CV_IMG; CV_COPY=4160; CV_BUF=2*CV_COPY
def roleX_A(a):
    if OPT["iw"]==1: a(".p2align 12")
    a("L_aux:")
    if OPT["smove"]>=2: a.extend(k2table())
    a(f"s_lshl2_add_u32 s7, s5, s6\ns_add_u32 s7, s7, 188\ns_add_u32 s8, s5, 248\ns_cmp_eq_u32 s6, 27\ns_cselect_b32 s{TID}, s8, s7")
    if OPT["tlb"]:
        sh=OPT["tlb"]
        a(f"v_lshlrev_b32 v242, {sh}, v2")
        for ptr,nb in ((S_OUT,NB_SD),(S_W1,2048*4608*2),(S_B1,9216),(S_B2,4096),(S_SSM,576*4096),(S_D,1152)):
            srd(a,48,ptr,nb); a("buffer_load_dword v255, v242, s[48:51], 0 offen ; @tl")
        a(f"buffer_load_dword v255, v242, {RW2}, 0 offen ; @tl\nbuffer_load_dword v255, v242, {WS}, 0 offen ; @tl")
    srd(a,48,S_SSM,576*4096)
    a(f"v_lshlrev_b32 v240, 4, v2\ns_mul_i32 s{LH}, s3, {2*CV_BUF}\ns_add_u32 s{LH}, s{LH}, {CV_H0}\ns_sub_u32 s{N1}, s{TID}, 216")
    a(f"s_lshl_b32 s{M1}, s{N1}, 4\ns_add_u32 s{M1}, s{M1}, s3\ns_lshl_b32 s12, s{M1}, 12\ns_lshl_b32 s{M1}, s{M1}, 1")
    a(krow(7)+f"\ns_mul_i32 s7, s7, 576\ns_lshr_b32 s8, s{M2}, 1\ns_mul_i32 s8, s8, 144\ns_add_u32 s7, s7, s8\nv_min_u32 v241, 47, v2\nv_add_u32 v241, s7, v241\nv_lshlrev_b32 v241, 12, v241\ns_lshl_b32 s7, s{N2}, 7\nv_add_u32 v241, s7, v241")
    touch=[f"s_mov_b32 s14, {48*4096*i}\nbuffer_load_dword v255, v241, {RW2}, s14 offen ; @tw" for i in range(3)]
    nt=OPT["cvA"]
    a("v_lshrrev_b32 v242, 5, v2\nv_and_b32 v243, 31, v2\nv_lshlrev_b32 v242, 14, v242\nv_lshl_add_u32 v242, v243, 7, v242\ns_add_u32 s13, s12, 32768")
    st=[f"buffer_load_dword v255, v242, {RW1}, s12 offen ; @ts", f"buffer_load_dword v255, v242, {RW1}, s13 offen ; @ts"]
    k=OPT["cvs"]
    phaseA(a,"X",st[:1] if k>=2 else [],[],(st[1:] if k>=2 else [])+warm("X"))
    a.extend(warm("D"))
    a("L_segX:")
    if k==1: a.extend(st)
    a.extend(cv_hdma(0))
    a.extend(touch[:nt])
    if OPT["pf"]: a.extend(auxpf(243)[:1])
    if OPT["cvt"]==0: a.extend(tailtouch())
    else: a.extend(tailtouch(243)[:1])
    srd(a,60,S_B2,4096)
    a.extend(eprep()); a.extend(w2setup())
    a(f"s_cmp_lt_u32 s{TID}, 252\ns_cbranch_scc0 L_idle")
def cv_hdma(c):
    L=[f"s_add_u32 m0, s{LH}, {(c&1)*CV_BUF+32}\ns_add_u32 s13, s12, {16384*c}"]
    return L+[f"buffer_load_dwordx4 v240, {RW1}, s13 offen offset:{1024*i} lds ; @hc{c}" for i in range(4)]
def conv(a):
    ACC=32; S0=64; T=192; U=208; BT=212
    VHD,BA,FX,EB,YO,DR,AB,BB,DV,VK=240,241,242,243,8,9,236,244,248,24
    R=W2R()
    srd(a,56,S_D,576*2)
    def dload(c): return f"v_mov_b32 v{DR}, {8*c}\nbuffer_load_ushort v{DR}, v{DR}, {RA}, s{M1} offen ; @hd{c}"
    a(dload(0))
    def dbuild(): return [f"v_lshl_or_b32 v{DR}, v{DR}, 16, v{DR}"]+[f"v_and_b32 v{DV+k}, v{DR}, v{U+k}" for k in range(4)]
    a(f"v_and_b32 v196, 15, v2\nv_lshrrev_b32 v197, 4, v2\nv_lshlrev_b32 v197, 3, v197\nv_add_u32 v196, v196, v197\nv_sub_u32 v196, 15, v196")
    a("v_and_b32 v197, 1, v196\nv_lshlrev_b32 v197, 4, v197\nv_mov_b32 v198, 0xffff\nv_lshlrev_b32 v197, v197, v198\nv_ashrrev_i32 v196, 1, v196")
    for k in range(4): a(f"v_cmp_eq_u32 vcc, {k}, v196\nv_cndmask_b32 v{U+k}, 0, v197, vcc")
    WT=list(range(16)); per=OPT["cvper"]
    a.extend(poll1_addr())
    a(f"v_add_u32 v{BA}, s{LH}, v{VHD}\nv_cmp_eq_u32 vcc, 0, v2\nv_mov_b32 v196, 4136\nv_cndmask_b32 v196, v196, 30, vcc\nv_add_u32 v{FX}, s{LH}, v196")
    a(f"v_bfe_u32 v196, v2, 3, 2\nv_mul_u32_u24 v196, {CV_COPY}, v196\nv_and_b32 v197, 7, v2\nv_lshl_add_u32 v196, v197, 2, v196\nv_add_u32 v200, s{LH}, v196")
    a("v_mov_b32 v196, 0\nv_mov_b32 v197, 0\nv_mov_b32 v198, 0\nv_mov_b32 v199, 0\nds_write_b32 v200, v196\nv_lshlrev_b32 v201, 4, v0")
    a(f"ds_write_b128 v201, v[196:199]\nds_write_b128 v201, v[196:199] offset:{CV_IMG}")
    def brd(c):
        o=(c&1)*CV_BUF+32
        return flat([[f"ds_read_b128 {Q(BT+6*i)}, v{BA} offset:{o+1024*i} ; @b{c}", f"ds_read_b32 v{BT+6*i+4}, v{BA} offset:{o+1024*i+16} ; @b{c}"] for i in range(4)])
    def bwr(c):
        o=(c&1)*CV_BUF+CV_COPY; L=[f"ds_write_b16 v{FX}, v{BT} offset:{o}"]
        for i in range(4):
            t=BT+6*i
            L+=[f"v_alignbit_b32 v{t+k}, v{t+k+1}, v{t+k}, 16" for k in range(4)]+[f"ds_write_b128 v{BA}, {Q(t)} offset:{o+32+1024*i} ; @bw"]
        return L
    a("@W hc0"); a.extend(brd(0))
    a(f"v_lshrrev_b32 v202, 3, v2\nv_and_b32 v203, 7, v2\nv_lshrrev_b32 v204, 1, v202\nv_xor_b32 v203, v203, v204\nv_mul_u32_u24 v202, 9216, v202")
    a(f"v_lshl_add_u32 v{VK}, v203, 4, v202\nv_xor_b32 v{VK+1}, 64, v{VK}")
    a(f"v_and_b32 v202, 15, v2\nv_add_u32 v202, 1, v202\nv_and_b32 v203, 1, v202\nv_mul_u32_u24 v203, {CV_COPY}, v203\nv_lshrrev_b32 v202, 1, v202\nv_lshl_add_u32 v203, v202, 2, v203")
    a(f"v_lshrrev_b32 v204, 4, v2\nv_lshl_add_u32 v203, v204, 4, v203\nv_add_u32 v{AB}, s{LH}, v203")
    for p in range(1,4): a(f"v_add_u32 v{AB+p}, 1024, v{AB+p-1}")
    a("@W - b0"); a.extend(bwr(0))
    for v in range(4):
        a(f"v_and_b32 v202, 15, v2\nv_lshlrev_b32 v202, 1, v202\nv_sub_u32 v202, v202, v204\nv_add_u32 v202, {17-4*v}, v202")
        a(f"v_bfe_u32 v203, v202, 1, 3\nv_xor_b32 v203, s3, v203\nv_lshlrev_b32 v203, 4, v203\nv_lshl_add_u32 v{BB+v}, v202, 7, v203")
    a(f"v_and_b32 v202, 15, v2\nv_lshlrev_b32 v202, 5, v202\nv_lshl_add_u32 v{YO}, v204, 3, v202")
    a(f"s_mul_i32 s7, s3, {64*9216}\ns_lshl_b32 s8, s{N1}, 8\ns_add_u32 s7, s7, s8\ns_add_u32 s7, s7, {WS_KVT}\ns_lshl_b32 s9, s3, 13\ns_add_u32 s9, s9, 4096")
    def rdA(G,c):
        g0=G&7; r=S0+64*(G&1)+4*c; o=(64*g0+512*(c&1))//4; tg=f"f{G}" if c==0 else f"g{G}"
        return [f"ds_read2_b32 {P(r)}, v{AB+(c>>1)} offset0:{o} offset1:{o+1} ; @{tg}", f"ds_read2_b32 {P(r+2)}, v{AB+(c>>1)} offset0:{o+2} offset1:{o+3} ; @{tg}"]
    def rdB(G):
        g0=G&7
        return [f"ds_read_b128 {Q(S0+64*(G&1)+32+4*c)}, v{BB+(g0&3)} offset:{4096*c+(0 if g0>>2 else 2048)} ; @f{G}" for c in range(8)]
    def reads(G):
        if OPT["cch"]:
            L=flat([[rdB(G)[c]]+rdA(G,c) for c in range(8)])
            return [re.sub(r"@[fg]","@f" if i<12 else "@g",x) for i,x in enumerate(L)]
        return rdA(G,0)+rdB(G)+flat([rdA(G,c) for c in range(1,8)])
    a.extend(flat([rdA(0,c) for c in range(8)]))
    a(poll_issue("p1X"))
    a("@W hd0"); a.extend(dbuild())
    a.extend(R.goto(2))
    stamp(a,5)
    a(poll_check("p1X"))
    a("s_barrier")
    stamp(a,6); stamp(a,1,"B")
    def kvdma(img):
        return [f"s_add_u32 m0, s9, {img*CV_IMG+i*1024}\ns_add_u32 s13, s7, {i*8*9216+img*128}\nbuffer_load_dwordx4 v{VK+(i&1)}, {WS}, s13 offen sc1 lds ; @kvi{img}" for i in range(8)]
    a.extend(kvdma(0))
    a("@W kvi0 0\ns_barrier")
    a.extend(rdB(0))
    def epi(ch,q):
        A=ACC+4*q; k=T+2*q
        return [f"v_cvt_pk_bf16_f32 v{k}, v{A}, v{A+1}", f"v_cvt_pk_bf16_f32 v{k+1}, v{A+2}, v{A+3}",
                f"buffer_store_dwordx2 {P(k)}, v{YO}, {WS}, s6 offen offset:{512*q} sc1 ; @yst"]
    inv={s:t for t,s in SIGMA.items()}
    inflight={}; done=[]
    plan=[(9,0,2,3.6),(3,2,2,5.6),(9,4,2,7.6),(3,6,2,9.4),(9,8,2,11.6),(9,12,2,15.6),(9,16,1.5,19.2)]
    t0=17.5
    for k in range(9): plan.append(((0,1,9)[k%3], t0+k*1.33, 1.33, t0+k*1.33+3.2))
    tiles=WT+[inv[0],inv[1]]
    plan+=[(0,29.5,1.2,None),(1,30.7,1.2,None)]
    GS=[]
    for G in range(32):
        ch,rho=divmod(G,8); s=S0+64*(G&1)
        def M(c,q):
            if c<0: return f"v_mfma_f32_16x16x32_bf16 {Q(ACC+4*q)}, {Q(DV)}, {Q(s+32+4*q)}, 0"
            return f"v_mfma_f32_16x16x32_bf16 {Q(ACC+4*q)}, {Q(s+4*c)}, {Q(s+32+4*(q-c))}, {Q(ACC+4*q)}"
        qmaj = rho==7 or (rho==0 and ch>0); c0=-1 if rho==0 else 0
        g=Gaps([M(c,q) for q in range(7,-1,-1) for c in range(c0,q+1)] if qmaj else [M(c,q) for c in range(c0,8) for q in range(max(c,0),8)])
        if OPT["cch"] and not qmaj: g=Gaps([M(c,q) for q in range(8) for c in ([-1] if c0 else [])+(list(range(q+1)) if q&1==0 else list(range(q,-1,-1)))])
        n=len(g.mf); GS.append(g)
        if qmaj: g.before(0,f"@W - g{G}")
        elif OPT["cch"]: g.before(0,f"@W - f{G}"); g.before(10-4*c0,f"@W - g{G}")
        else: g.before(0,f"@W - f{G}"); g.before(n-28,f"@W - g{G}")
        if G==10: g.put([f"@W - r2_{tiles[3]}\ns_barrier"],6,7)
        if G==17: g.put(["s_barrier"],2,3)
    def late():
      for G,g in enumerate(GS):
        ch,rho=divmod(G,8); n=len(g.mf)
        if ch<3:
            r=[f"@W - b{ch+1}"]+bwr(ch+1)
            if rho==3: g.fit([f"@W hc{ch+1}"]+brd(ch+1),16,36)
            if rho==4: g.fit(r[:12],4,36)
            if rho==5: g.fit(r[12:]+[f"@W hd{ch+1}"]+dbuild(),0,36)
            if rho==6:
                g.fit([f"v_xor_b32 v{BB+v}, 64, v{BB+v}" for v in range(4)]+([f"v_add_u32 v{BB+v}, {CV_IMG}, v{BB+v}" for v in range(4)] if ch==1 else []),18,36)
                g.fit([f"v_add_u32 v{AB+p}, {CV_BUF if ch%2==0 else -CV_BUF}, v{AB+p}" for p in range(4)]+(["@W kvi1\ns_barrier"] if ch==1 else []),29,36)
        if rho==6: g.fit([f"s_add_u32 s6, s12, {WS_YC+16384*ch}"],0,36)
        if rho==7: g.fit(epi(ch,7),12,20); g.fit(epi(ch,6),20,28); g.fit(epi(ch,5),28,36)
        if rho==0 and ch>0:
            g.fit(epi(ch-1,4)+epi(ch-1,3)+epi(ch-1,2),0,23); g.fit(epi(ch-1,1)+epi(ch-1,0),23,38)
        if G<31:
            rr=reads(G+1)
            if rho==6:
                if OPT["cch"]:
                    rr=[x for x in rr if "b128" in x]+[x for x in rr if "b128" not in x]; rr=[re.sub(r"@f","@g",x) for x in rr]
                g.fit(rr[:10],0,14); g.fit(rr[10:],14,29)
            else: g.fit(rr,0,n-7 if rho==7 else n-1)
    def place(items, start, length):
        for k,it in enumerate(items):
            x=start+length*k/len(items); G=int(x); g=GS[G]; g.g[int((x-G)*len(g.mf))].append(it)
    flatg=[(G,i) for G,g in enumerate(GS) for i in range(len(g.mf))]; used=set()
    def nextgap(pre, item, start):
        G=int(start); p=flatg.index((G,int((start-G)*len(GS[G].mf))))
        while p in used or p+1 in used: p+=1
        used.update((p,p+1))
        GS[flatg[p][0]].g[flatg[p][1]].append(pre); GS[flatg[p+1][0]].g[flatg[p+1][1]].append(item)
    last={}
    ev=[]
    for t,(sl,st,ln,dr) in zip(tiles,plan):
        d=w2dma(t,sl); m0,so=d[0].split("\n",1)
        if sl in last: so=f"@W - r2_{last[sl]}\n"+so
        place([so],st,1)
        for r in range(4): nextgap(m0,d[1+r],st+0.03+ln*r/4)
        inflight[t]=sl
        if t<NREG: ev.append((dr,t,sl)); last[sl]=t
        else: assert SIGMA[t]==sl
    for dr,t,sl in sorted(ev):
        place([f"@W w2_{t}"]+flat([x.split("\n") for x in R.reads(t,sl)]),dr,0.36); del inflight[t]; done.append(t)
    for ch in range(3):
        d=cv_hdma(ch+1); m0,so=d[0].split("\n",1); st=8*ch+1
        place([so],st+0.1,1)
        for r in range(4): nextgap(m0,d[1+r],st+0.15+0.22*r)
        place([dload(ch+1)],st+1.25,1)
    for i,it in enumerate(kvdma(1)):
        pre,ld=it.rsplit("\n",1); nextgap(pre,ld,11.2+0.25*i)
    if OPT["cvt"]:
        for i,it in enumerate(tailtouch(243)[1:]): place([it],OPT["cvt"]+0.5+i*OPT["cvts"],1)
    if OPT["pf"]: place(auxpf(243)[1:],OPT["pfa"]+0.4,OPT["pfb"]-OPT["pfa"])
    place(flat([x.split("\n") for x in poll2_addr()]),30.05,0.9)
    late()
    print("; conv overload", " ".join(f"{g.over():.0f}" for g in GS), file=sys.stderr)
    for G,g in enumerate(GS):
        if G%4==0: stamp(a,2+G//4,"B")
        if 8<=G<=20: stamp(a,G-7,"V")
        if OPT.get("cvcut"): g.mf=[m if (i%OPT["cvcut"]) else "s_nop 0" for i,m in enumerate(g.mf)]
        g.emit(a)
    a(poll_issue("p2X"))
    for q in range(4,-1,-1): a.extend(epi(3,q))
    stamp(a,7); stamp(a,10,"B")
    a.extend(R.goto(0))
    a("@W - 0\ns_barrier")
    stamp(a,9)
def idle(a):
    a("L_idle:")
    a("s_waitcnt vmcnt(0)\ns_barrier")
    R=W2R()
    stp=private_steps(R,{},range(10),range(NT),range(NREG))
    for k,s in enumerate(stp):
        if k==9 and OPT["pf"]: a.extend(auxpf(243)[1:])
        a.extend(s)
    a.extend(R.goto(0))
    a.extend(warm("D"))
    a.extend(poll2_addr())
    a(poll_issue("p2X"))
    a("s_branch L_DX")

def dsetup():
    PL,KS=U2_PL,U2_KS; XS,YS=8*SLOT,9*SLOT
    h=[f"v_lshrrev_b32 v31, 4, v2\nv_mul_u32_u24 v24, {PL}, v31\nv_and_b32 v25, 15, v2\nv_lshl_add_u32 v24, v25, 4, v24",
       krow(7)+f"\ns_mul_i32 s7, s7, {18*KS}\ns_lshr_b32 s8, s{M2}, 1\ns_lshl_b32 s8, s8, 12\ns_add_u32 s7, s7, s8\ns_add_u32 s7, s7, {WS_U2}\nv_add_u32 v{VAM}, s7, v24",
       f"s_and_b32 s12, s{M2}, 1\ns_xor_b32 s8, s12, 1\ns_lshl_b32 s8, s8, 11\nv_add_u32 v{VA}, s8, v{VAM}\ns_lshl_b32 s11, s12, 12\ns_sub_u32 s11, s11, 2048"]
    t=Asm(); srd(t,64,S_OUT,NB_SD); srd(t,56,S_Q,NB_SD); r=[i.text for i in t.L]
    for i in range(3):
        r+=[f"v_add_u32 v24, {64*i}, v2", "v_mul_u32_u24 v25, 7282, v24", "v_lshrrev_b32 v25, 16, v25", f"v_mul_u32_u24 v25, {1152-144}, v25", f"v_lshl_add_u32 v{XR+i}, v2, 4, v25"]
    r+=["v_cmp_gt_u32 vcc, 16, v2", f"v_mov_b32 v25, {OOB}", f"v_cndmask_b32 v{XR+2}, v25, v{XR+2}, vcc"]
    r+=[f"{krow(7)}\ns_mul_i32 s7, s7, {576*4096}", f"v_subrev_u32 v3, s7, v{VW2}"]
    r+=["v_and_b32 v24, 15, v2","v_mul_u32_u24 v24, 144, v24","v_lshrrev_b32 v25, 4, v2","v_lshl_add_u32 v24, v25, 3, v24",f"s_add_u32 s7, s{LW}, {XS}\ns_lshl_b32 s4, s12, 4",
        "s_add_u32 s4, s4, s7\nv_add_u32 v1, s4, v24", "s_mul_i32 s4, s12, 144\ns_sub_u32 s4, s7, s4", "v_add_u32 v24, s4, v24"]
    r+=["v_bfe_u32 v25, v2, 2, 3","v_lshlrev_b32 v25, 7, v25","v_lshrrev_b32 v31, 5, v2","v_lshl_add_u32 v25, v31, 12, v25","v_bfe_u32 v31, v2, 3, 2","v_xor_b32 v31, s3, v31","v_lshl_add_u32 v25, v31, 5, v25",
        "v_and_b32 v31, 3, v2","v_lshl_add_u32 v25, v31, 3, v25",f"v_add_u32 v25, {YS}, v25"]
    return h,r
def phaseD(a, ac, role, R):
    JS=12; sig,nreg=(SIGG,OPT["nrg"]) if role=="G" else (SIGMA,NREG)
    a(f"L_D{role}:")
    PL,KS,FO=U2_PL,U2_KS,(0,512,768,1024)
    if role=="X": a.extend(dsetup()[0])
    a(f"s_mov_b32 s8, {WS_STATS}")
    order=list(range(18))+[16,17]+list(range(16))
    XS,YS=8*SLOT,9*SLOT
    C=OPT["dch"]; NF=20; assert 18%C==0 and JS%C==0 and nreg>=JS
    def tmp(f): return RT+4*f
    groups=[(ps,u,dt) for ps in range(2) for u in range(18//C) for dt in range(5-ps)]
    frags=[(ps,order[18*ps+u*C+k],dt) for ps,u,dt in groups for k in range(C)]
    def fload(f):
        ps,t,dt=frags[f]
        s_=f"buffer_load_dwordx4 {Q(AF+4*(f%NF))}, v{VA if dt<4 else VAM}, {WS}, s{K2+t} offen offset:{FO[dt] if dt<4 else 1536} sc1 ; @u{f//C}"
        return (f"v_add_u32 v{VA}, s11, v{VA}\n" if f==90 else "")+s_
    def accr(ps,dt,nt):
        if ps==0: return ACC2+4*dt if nt==0 else ACC2+20+4*(3*dt+nt-1)
        return ACC2+20+4*(4*dt+(nt-1)%4)
    mf=[]
    for g_,(ps,u,dt) in enumerate(groups):
        nts=(1,2,3,0) if (g_&1)==(len(groups)-1)&1 else (0,3,2,1)
        if ps==0 and u==18//C-1 and dt==4: nts=(1,2,3,0)
        for n_,nt in enumerate(nts):
            acc=Q(accr(ps,dt,nt))
            for i,k in enumerate(range(C) if n_%2==0 else range(C-1,-1,-1)):
                kind,r0=w2reg(frags[g_*C+k][1])
                mf.append(f"v_mfma_f32_16x16x32_bf16 {acc}, {Q(AF+4*((g_*C+k)%NF))}, {Q(r0+4*nt,kind)}, "+(acc if (i or u) else Q(112) if (ps and nt==0) else "0"))
    kmul=[f"s_mul_i32 s{K2+t}, s{K2+t}, {KS}" for t in range(18)]
    MB=4
    msetup=flat([[f"s_xor_b32 s7, s3, {k}\ns_lshl_b32 s7, s7, 14", f"s_add_u32 s7, s7, {(k-1)*5120}\nv_lshl_add_u32 v{MB+k-1}, v2, 4, s7"] for k in (1,2,3)])
    msetup+=[f"s_lshl_b32 s7, s3, 14\nv_lshl_add_u32 v{MB+3}, v2, 4, s7"]
    mnext=[f"v_add_u32 v{MB+k}, 0x10000, v{MB+k}" for k in range(4)]
    xsetup=[f"s_lshr_b32 s7, s{M2}, 1\ns_lshl_b32 s7, s7, 5", f"s_add_u32 s7, s7, s{N2}\ns_lshl_b32 s7, s7, 1", "s_add_u32 s15, s7, s12\ns_xor_b32 s6, s15, 1",
            "s_lshl_b32 s7, s6, 2\ns_add_u32 s7, s7, s3", f"s_mul_i32 s9, s7, 5120\ns_add_u32 s9, s9, {WS_XC}", "s_lshl_b32 s7, s15, 2\ns_add_u32 s7, s7, s3", f"s_mul_i32 s10, s7, 5120\ns_add_u32 s10, s10, {WS_XC}",
            f"v_lshlrev_b32 v{RB2}, 4, v2", f"v_add_u32 v{RB2+1}, 4096, v{RB2}"]
    red=[]
    for dt in range(5):
        t=[tmp(3*(dt&1)+k) for k in range(3)]; A=ACC2+4*dt
        rd_=[f"ds_read_b128 {Q(t[k])}, v{MB+3} offset:{k*5120+dt*1024} ; @m{dt}" for k in range(3)]
        ad=[f"@W - m{dt}"]+[f"v_add_f32 v{A+r}, v{A+r}, v{t[0]+r}" for r in range(4)]+[f"v_add_f32 v{t[1]+r}, v{t[1]+r}, v{t[2]+r}" for r in range(4)]+[f"v_add_f32 v{A+r}, v{A+r}, v{t[1]+r}" for r in range(4)]
        st=[f"buffer_store_dwordx4 {Q(A)}, v{RB2+(dt>>2)}, {WS}, s9 offen offset:{1024*(dt&3)} sc1 ; @xs"]
        red.append((rd_,ad,st))
    fs=(9,7) if OPT["xfl"] else (7,2)
    xflag=[f"s_lshl_b32 s7, s6, {fs[0]}\ns_lshl_b32 s4, s3, {fs[1]}", f"s_add_u32 s7, s7, s4\ns_add_u32 s14, s7, {FLAG3}", "v_cmp_eq_u32 vcc, 0, v2", f"v_mov_b32 v12, {OOB}", "v_cndmask_b32 v12, v12, 0, vcc", f"v_mov_b32 v13, s{NONCE}",
           f"@W xs\nbuffer_store_dword v13, v12, {WS}, s14 offen sc1 ; @xf"]
    xpoll=[f"s_lshl_b32 s7, s15, {fs[0]}\ns_lshl_b32 s4, s3, {fs[1]}", f"s_add_u32 s7, s7, s4\ns_add_u32 s7, s7, {FLAG3}", f"v_mov_b32 v{PV}, s7", poll_issue("p4")]
    PM=tmp(5)
    xld=[poll_check("p4")]+[f"buffer_load_dwordx4 {Q(ACC2+4*dt if dt<4 else PM)}, v{RB2+(dt>>2)}, {WS}, s10 offen offset:{1024*(dt&3)} sc1 ; @xl" for dt in range(5)]
    assert OPT["fpl"]==2
    FLAGY=FLAG2+16384
    ypoll=poll_addr(f"s_mul_i32 s4, s{M2}, 9\ns_lshr_b32 s4, s4, 1\ns_lshl_b32 s4, s4, 2",20,FLAGY)+[poll_issue("p3")]
    yflag=[f"s_sub_u32 s4, s{TID}, 216\ns_lshl_b32 s7, s4, 7", f"s_lshl2_add_u32 s7, s3, s7\ns_add_u32 s7, s7, {FLAGY}", f"s_cmp_lt_u32 s4, 36\ns_cselect_b32 s7, s7, {OOB}",
           f"v_min_u32 v{PV}, 1, v2", f"v_lshlrev_b32 v{PV}, 30, v{PV}", f"v_mov_b32 v{PV+1}, s{NONCE}", f"buffer_store_dword v{PV+1}, v{PV}, {WS}, s7 offen sc1 ; @yf"]
    ydma=[poll_check("p3"),
          f"s_mul_i32 s7, s{M2}, {72*4096}\ns_add_u32 s7, s7, {WS_YC}", "s_add_u32 s4, s3, s12\ns_lshl_b32 s4, s4, 15", f"s_add_u32 m0, s{LW}, {YS}\ns_add_u32 s4, s4, s7",
          f"buffer_load_dwordx4 v3, {WS}, s4 offen sc1 lds ; @ey", f"s_add_u32 m0, s{LW}, {YS+1024}\ns_add_u32 s4, s4, {4*32768}",
          f"buffer_load_dwordx4 v3, {WS}, s4 offen sc1 lds ; @ey", "s_xor_b32 s4, s12, 1\ns_lshl_b32 s4, s4, 18", f"s_add_u32 s4, s4, s7\ns_add_u32 m0, s{LW}, {YS+2048}",
          f"s_cmp_lt_u32 s3, 2\ns_cselect_b32 s4, s4, {OOB}", f"buffer_load_dwordx4 v3, {WS}, s4 offen sc1 lds ; @ey"]
    XF=WV; YF=WV+20; Y=XR
    def nr_(j): return tmp(j>>2)+(j&3)
    xdma=[f"s_lshl_b32 s7, s{N2}, 6\ns_lshl_b32 s4, s3, 4", "s_add_u32 s7, s7, s4\ns_mul_i32 s7, s7, 1152", f"s_mul_i32 s4, s{M2}, 144\ns_add_u32 s7, s7, s4", f"s_add_u32 m0, s{LW}, {XS}"]
    xdma+=[f"buffer_load_dwordx4 v{XR+i}, {RA}, s7 offen offset:{1024*i} lds ; @ex" for i in range(3)]
    xrd=["@W ex"]+[f"ds_read_b64 {P(XR+2*dt)}, v{1 if dt<4 else 24} offset:{32*dt} ; @rx" for dt in range(5)]
    xf=["@W es rx"]+flat([unpack(XF+2*j,XR+j) for j in range(10)])+[f"v_mul_f32 v{ST}, v{ST}, v{ST+1}"]
    xn=[f"v_fma_f32 v{nr_(j)}, v{XF+j}, v{ST+1}, -v{ST}" for j in range(20)]
    yrd=[f"ds_read_b64_tr_b16 {P(Y+2*dt)}, v25 offset:{((2*dt)&3)*4096+(dt>>1)*1024} ; @ry" for dt in range(5)]
    ymul=["@W - ry"]+flat([unpack(YF+2*(j&3),Y+j)+[f"v_mul_f32 v{nr_(2*j+h)}, v{nr_(2*j+h)}, v{YF+2*(j&3)+h}" for h in (1,0)] for j in range(10)])
    binit=[f"@W eb\nv_lshlrev_b32 v{B2}, 16, v{B2}"]+[f"v_mov_b32 v{112+k}, v{B2}" for k in range(4)]
    esetup=mnext+[f"s_mov_b32 s8, {f2h(-1.4426950408889634)}"]+[f"v_add_f32 v{ACC2+16+k}, v{ACC2+16+k}, v{B2}" for k in range(4)]
    esetup+=["v_bfe_u32 v31, v2, 4, 1", f"v_mad_u32_u24 v{XO}, v31, 24, v{XO}"]
    stat=[f"buffer_load_dwordx2 {P(ST)}, v{ST}, {WS}, s8 offen sc1 ; @es"]
    xe=OPT["xe"] if role=="G" else 0
    a.extend((xdma+stat+kmul) if xe else kmul[:4])
    if xe==2: a(poll_issue("p2G"))
    stamp(a,10)
    a(poll_check("p2"+role))
    stamp(a,11); stamp(a,1,"D")
    F0=OPT["f0"]
    if xe: a.extend([fload(f) for f in range(F0)])
    else: a.extend([fload(f) for f in range(10)]+kmul[4:]+(dsetup()[1] if role=='X' else [])+[fload(f) for f in range(10,F0)]+xdma+stat)
    resid=[[f"@W w2_{t}"]+flat([x.split("\n") for x in R.reads(t,sig[t])]) for t in range(nreg,NT)]
    xst=["\n".join(flat([r[2] for r in red]))]
    if OPT["xbf"]:
        for dt in range(5):
            A=ACC2+4*dt; d=ACC2+2*dt
            red[dt][1].extend([f"v_cvt_pk_bf16_f32 v{d}, v{A}, v{A+1}", f"v_cvt_pk_bf16_f32 v{d+1}, v{A+2}, v{A+3}"])
        st=[f"buffer_store_dwordx4 {Q(ACC2+4*k)}, v{RB2}, {WS}, s9 offen offset:{1024*k} sc1 ; @xs" for k in range(2)]+[f"buffer_store_dwordx2 {P(ACC2+8)}, v{RB2+1}, {WS}, s9 offen offset:2048 sc1 ; @xs"]
        if OPT["xbf"]==1: red[1][1].append(st[0]); red[3][1].append(st[1]); xst=[st[2]]
        else: xst=["\n".join(st)]
        xsetup[-1]=f"v_lshlrev_b32 v{RB2+1}, 3, v2"
        xld=xld[:1]+[f"buffer_load_dwordx4 {Q(YF+4*k)}, v{RB2}, {WS}, s10 offen offset:{1024*k} sc1 ; @xl" for k in range(2)]+[f"buffer_load_dwordx2 {P(YF+8)}, v{RB2+1}, {WS}, s10 offen offset:2048 sc1 ; @xl"]
    jf=OPT["jxf"]; nrk=OPT["nrk"]
    rseq=red[0][0]+red[1][0]+red[0][1]+red[2][0]+red[1][1]+red[3][0]+red[2][1]+red[4][0]+red[3][1]+red[4][1]+xst
    post=xf+["@W ey\ns_barrier"]+yrd+xn+ymul+esetup
    EX={0:(yflag if role=="X" else []),1:msetup,2:binit,OPT["jxr"]:xrd,9:ypoll,12:xsetup,13:ydma,14:["s_barrier"]+xflag[:-1]}
    j0=OPT["jr0"]; rl=flat(resid); nk=JS-1-j0
    RD={j0+k:rl[k*len(rl)//nk:(k+1)*len(rl)//nk] for k in range(nk)}
    jr=OPT["jrs"]
    for k in range(nrk): EX[jr+k]=(["@W - mw4\ns_barrier"] if k==0 else [])+rseq[k*len(rseq)//nrk:(k+1)*len(rseq)//nrk]
    np_=OPT['jxl']-jr-nrk; assert jr+nrk>=18+C
    for k in range(np_): EX[jr+nrk+k]=post[k*len(post)//np_:(k+1)*len(post)//np_]
    for k,v in ((jf,xflag[-1:]),(OPT["jxp"],xpoll)): EX[k]=v+EX.get(k,[])
    of=OPT["ostore"]; jxl=OPT["jxl"]; assert jxl<=36-C
    EX[jxl]=EX.get(jxl,[])+xld
    A=ACC2+16; n=tmp(4); r=PM
    pre=["@W xl"]+flat([unpack(PM+2*(j-8),YF+j) for j in (8,9)])+[f"v_add_f32 v{A+k}, v{A+k}, v{r+k}" for k in range(4)]+[f"v_mul_f32 v{r+k}, s8, v{A+k}" for k in range(4)]
    pre+=[f"v_exp_f32 v{r+k}, v{r+k}" for k in range(4)]+[f"v_mul_f32 v{n+k}, v{n+k}, v{A+k}" for k in range(4)]+[f"v_add_f32 v{r+k}, 1.0, v{r+k}" for k in range(4)]
    pre+=[f"v_rcp_f32 v{r+k}, v{r+k}" for k in range(4)]+[f"v_fma_f32 v{n+k}, v{n+k}, v{r+k}, v{XF+16+k}" for k in range(4)]
    pre+=[f"v_cvt_pk_bf16_f32 v{A}, v{n}, v{n+1}",f"v_cvt_pk_bf16_f32 v{A+1}, v{n+2}, v{n+3}",f"buffer_store_dwordx2 {P(A)}, v{XO+1}, {RC}, 0 offen {of}"]
    pre=pre[:1]+flat([unpack(ACC2+2*j,YF+j) for j in range(8)])+pre[1:]
    for j_,k in ((34,OPT["npre33"]),(35,OPT["npre"])):
        if k: EX[j_]=EX.get(j_,[])+pre[:k]; pre=pre[k:]
    g=Gaps(mf); n4=4*C; tail=[]
    nxt=F0
    for g_,(ps,u,dt) in enumerate(groups):
        lw="r2_17" if g_*n4==20*JS else f"mw{(1,2,3,4)[dt]}" if (ps==1 and u==0) else "-"
        g.before(g_*n4,f"@W u{g_} {lw}")
        lim=min(len(frags),g_*C+NF); k=min(lim-nxt,C+1)
        if k>0: g.put([fload(f) for f in range(nxt,nxt+k)],g_*n4+1,(g_+1)*n4); nxt+=k
        if u==18//C-1:
            w=[f"ds_write_b128 v{MB+nt-1}, {Q(accr(ps,dt,nt))} offset:{dt*1024}" for nt in (1,2,3)]
            if dt<4-ps:
                if mf[(g_+1)*n4-1].split(",")[0].endswith(Q(accr(ps,dt,1))): w=w[::-1]
                g.put(w,(g_+1)*n4+2,(g_+2)*n4)
            else:
                for i,x in enumerate(w):
                    p_=g_*n4+(i+1)*C+5
                    if p_<len(mf): g.g[p_].append(x)
                    else: tail.append(x)
    assert nxt==len(frags)
    def pos(J): return 20*J if J<=18 else 360+16*(J-18)
    for J in range(36):
        if RD.get(J): g.fit(RD[J],pos(J),pos(J+1))
        if EX.get(J): g.fit(EX[J],pos(J),pos(J+1))
    for i,(m,p_,f) in enumerate(zip(g.mf,g.pre,g.g)):
        if i==20*JS:
            if ac is None: a("s_branch L_Dc"); return
            a=ac; a("L_Dc:")
        for J in range(1,36,4):
            if i==pos(J): stamp(a,2+J//4,"D")
        a.extend(p_); a(m); a.extend(f)
    a.extend(tail)
    stamp(a,12); stamp(a,11,"D")
    a("s_waitcnt lgkmcnt(0)\ns_barrier")
    def Rr(dt): return accr(1,dt,1)
    for dt in range(4):
        for k in range(3): a(f"ds_read_b128 {Q(Rr(dt)+4*k)}, v{MB+3} offset:{k*5120+dt*1024}")
    def fin(d0):
        two=lambda f: flat([f(ACC2+4*dt,Rr(dt),tmp(dt),dt) for dt in (d0,d0+1)])
        s1=two(lambda A,r,n,dt:[f"s_waitcnt lgkmcnt({3*(3-dt)})",f"v_pk_add_f32 {P(A)}, {P(A)}, {P(r)}",f"v_pk_add_f32 {P(A+2)}, {P(A+2)}, {P(r+2)}",f"v_pk_add_f32 {P(r+4)}, {P(r+4)}, {P(r+8)}",f"v_pk_add_f32 {P(r+6)}, {P(r+6)}, {P(r+10)}",
                f"v_pk_add_f32 {P(A)}, {P(A)}, {P(r+4)}",f"v_pk_add_f32 {P(A+2)}, {P(A+2)}, {P(r+6)}"])
        s1+=two(lambda A,r,n,dt:[f"v_pk_mul_f32 {P(r)}, {P(A)}, s[8:9] op_sel_hi:[1,0]",f"v_pk_mul_f32 {P(r+2)}, {P(A+2)}, s[8:9] op_sel_hi:[1,0]"])
        s1+=two(lambda A,r,n,dt:[f"v_exp_f32 v{r+k}, v{r+k}" for k in range(4)])
        s1+=two(lambda A,r,n,dt:[f"v_pk_mul_f32 {P(n)}, {P(n)}, {P(A)}",f"v_pk_mul_f32 {P(n+2)}, {P(n+2)}, {P(A+2)}"])
        s1+=two(lambda A,r,n,dt:[f"v_pk_add_f32 {P(r)}, {P(r)}, 1.0 op_sel_hi:[1,0]",f"v_pk_add_f32 {P(r+2)}, {P(r+2)}, 1.0 op_sel_hi:[1,0]"])
        s1+=two(lambda A,r,n,dt:[f"v_rcp_f32 v{r+k}, v{r+k}" for k in range(4)])
        s1+=two(lambda A,r,n,dt:[f"v_pk_fma_f32 {P(n)}, {P(n)}, {P(r)}, {P(XF+4*dt)}",f"v_pk_fma_f32 {P(n+2)}, {P(n+2)}, {P(r+2)}, {P(XF+4*dt+2)}"])
        o=ACC2+4*d0; n0,n1=tmp(d0),tmp(d0+1)
        s1+=[f"v_cvt_pk_bf16_f32 v{o}, v{n0}, v{n0+1}",f"v_cvt_pk_bf16_f32 v{o+2}, v{n1}, v{n1+1}",f"v_cvt_pk_bf16_f32 v{o+1}, v{n0+2}, v{n0+3}",f"v_cvt_pk_bf16_f32 v{o+3}, v{n1+2}, v{n1+3}",
             f"v_permlane16_swap_b32 v{o}, v{o+2}",f"v_permlane16_swap_b32 v{o+1}, v{o+3}",f"buffer_store_dwordx4 {Q(o)}, v{XO}, {RC}, 0 offen offset:{32*d0} {of}"]
        return s1
    assert OPT["xbf"]
    a.extend(pre)
    for j in range(8): a(f"v_pk_add_f32 {P(ACC2+2*j)}, {P(ACC2+2*j)}, {P(accr(1,j>>1,0)+2*(j&1))}")
    a.extend(fin(0)+fin(2))
    stamp(a,13)
    if OPT["stamps"]:
        a("s_waitcnt vmcnt(0)"); stamp(a,14); stamps_out(a)
    if OPT.get("probe") is not None:
        a("s_waitcnt vmcnt(0)"); stamp(a,14)
        if OPT["probe"]==0: a(f"s_mov_b32 s28, s{NONCE}")
        if OPT.get("prole")=="G": a(f"s_cmp_lt_u32 s{TID}, 216\ns_cselect_b32 s28, s28, s{NONCE}")
        if OPT.get("prole")=="X": a(f"s_sub_u32 s4, s{TID}, 216\ns_cmp_lt_u32 s4, 36\ns_cselect_b32 s28, s28, s{NONCE}")
        a("s_add_u32 s28, s28, 6000\ns_mov_b32 s5, 0\nL_spin:\ns_memrealtime s[0:1]\ns_waitcnt lgkmcnt(0)\ns_sub_u32 s4, s0, s28\ns_add_u32 s5, s5, 1\ns_cmp_gt_u32 s5, 20000\ns_cbranch_scc1 L_spe\ns_cmp_lt_i32 s4, 0\ns_cbranch_scc1 L_spin\nL_spe:")
    a("s_endpgm\nL_segE:")

def check_m0(seg):
    cur=None
    for ins in seg.L:
        if "m0" in ins.w: cur=ins.text.split(",")[1].strip()
        if ins.kind=="vmem" and " lds" in ins.text:
            tg=ins.text.split("@")[1]; want={"w":f"s{LW}","h":f"s{LH}","k":"s9"}[tg[0]]
            assert cur==want,(ins.text,cur)
def build(**kw):
    OPT.update(kw)
    hdr=open("cdna_kernels/"+NAME+".s.ref").read().split("; Override launch")[0]
    segs=s0,sG,sDG,sD,sXA,sC,sDX,sI=[Asm() for _ in range(8)]
    p0(s0); R=roleG(sG); roleX_A(sXA); conv(sC); idle(sI); phaseD(sDG,sD,"G",R); phaseD(sDX,None,"X",W2R())
    for seg in segs:
        for ins in seg.L:
            m=re.search(r";\s*@(\S+)",ins.text)
            if OPT.get("drop"):
                if ins.kind=="vmem" and m and re.fullmatch(OPT["drop"],m.group(1)): ins.__init__("")
                elif ins.text.startswith("@W"):
                    p=ins.text.split(); tg=[t for t in p[1].split(",") if not re.fullmatch(OPT["drop"],t)]
                    ins.__init__(" ".join(["@W",",".join(tg) or "-"]+p[2:]))
            if OPT.get("dropds") and ins.kind=="ds" and m and re.fullmatch(OPT["dropds"],m.group(1)): ins.__init__("ds_nop ; @"+m.group(1))
            if OPT.get("nomf") and ins.kind=="mfma" and (OPT["nomf"]==1 or (id(ins)>>6)%OPT["nomf"]): ins.__init__("s_nop 0")
            if OPT.get("nt") and ins.kind=="vmem" and m and re.fullmatch(OPT["nt"],m.group(1)):
                ins.__init__(ins.text.replace(" lds ;"," nt lds ;") if " lds ;" in ins.text else ins.text.replace(" ;"," nt ;"))
            if OPT.get("nosc1") and ins.kind=="vmem" and m and re.fullmatch(OPT["nosc1"],m.group(1)): ins.__init__(ins.text.replace(" sc1",""))
    resolve_vm([[s0,sG,sDG,sD],[s0,sXA,sC,sDX,sD],[s0,sXA,sI,sDX,sD]])
    a=Asm(); a.L=flat([s.L for s in segs]); c=Asm(); c.extend(COLD)
    if OPT["iw"]:
        k=[i for i,x in enumerate(a.L) if x.text==".p2align 12"][0]; a.L=a.L[:k]+c.L+a.L[k:]
    else: a.L+=c.L
    a("L_end:"); a.fix()
    check_m0(sC)
    if OPT["iw"]:
        def disp(cnt):
            d=Asm()
            for nm in "GXD":
                d(f"L_wc_{nm}:")
                for w in range(4):
                    tgt=f"L_pl_{nm}_{w}" if w<cnt[nm] else "L_wret"
                    d(f"s_cmp_eq_u32 s3, {w}\ns_cbranch_scc1 {tgt}" if w<3 else f"s_branch {tgt}")
            d("L_wret:\ns_setpc_b64 s[82:83]")
            return d.L
        k=[i for i,x in enumerate(a.L) if x.text==".p2align 12"][0]
        L,cnt=page_landings(a.L[:k]+disp(dict(G=0,X=0,D=0))+a.L[k:],"L_org",[("G","L_segG","L_Dc"),("X","L_segX","L_idle"),("D","L_Dc","L_segE")])
        n=len(disp(cnt)); a.L=L[:k]+disp(cnt)+L[k+n:]
        print("; landings",cnt,file=sys.stderr)
    return (hdr+"; @launch grid=(256,1,1) block=(256,1,1) lds=163840\n"+'.amdgcn_target "amdgcn-amd-amdhsa--gfx950"\n.text\n'+a.text()
            +'.section .rodata,"a"\n'+kdesc(KN,256,256))
if __name__=="__main__":
    kw={}
    for x in sys.argv[2:]:
        k,v=x.split("=",1); kw[k]=int(v) if v.lstrip("-").isdigit() else v
    open(sys.argv[1],"w").write(build(**kw))
```

```python
GS=12288
WS_HT=4096
WS_KVT=0x310000
WS_YC=0x610000
WS_STATS=0x850000
WS_STAMP=0x854000
F1H=0x874000; F1K=F1H+0x2000
FB=F1K+0x2000
FU=FB+0x1c000
FY=FU+0x7000
FD=FY+0x5000
WS_XB=FD+0x20000
WS_XD=WS_XB+864*6144
WS_U2=WS_XD+1024*8192
WS_END=WS_U2+72*131072
def dtoff(g): return (g//3)*1024+(0,512,768)[g%3]
```

```python
import re
from asmlib import *
def lines(item): return [l.strip() for l in item.split("\n") if l.strip()]
def is_scalar(l): return l.startswith(("s_","@W"))
def vcost(l):
    op=l.split()[0]
    if op.startswith("ds_write_b128"): return 20
    if op.startswith("ds_write_b64"): return 12
    if op.startswith("ds_write"): return 8
    if op.startswith("buffer_store"): return 27 if "x4" in op else 18 if "x2" in op else 13
    if op.startswith("v_pk_"): return 24
    if op.startswith("v_mfma"): return 20
    if op in TRANS or op.startswith("v_permlane"): return 8
    return 4
def gapcost(L):
    t=4; pd=None; bar=False; pk=False
    for l in L:
        if l.endswith(":"): continue
        if is_scalar(l):
            t+=4; bar=bar or l=="s_barrier"
        else:
            t=max(t,8); c=vcost(l)
            if l.startswith("v_pk_"):
                if pk: c=6
                pk=True
            if bar: c+=8; bar=False
            if l.startswith("ds_"):
                if pd and not (pd.startswith("ds_read_b64_tr") and l.startswith("ds_read_b128")): c+=40 if (pd.startswith("ds_write_b128") and l.startswith("ds_write_b128")) else 4
                pd=l
            t+=c
    return max(16,t)
_rw={}
def rw(l):
    if l not in _rw:
        i=Ins(l); _rw[l]=(i.r,i.w)
    return _rw[l]
def can_front(item, L):
    ls=lines(item)
    if not all(is_scalar(x) for x in ls): return False
    if L and is_scalar(L[0]): return False
    for x in ls:
        if x.startswith(("s_barrier","s_cbranch","s_branch","s_call")): return False
        if x.startswith("@W"):
            tg=set(",".join(x.split()[1:]).split(","))
            for y in L:
                m=re.search(r";\s*@(\S+)",y)
                if m and m.group(1) in tg: return False
            continue
        r,w=rw(x)
        for y in L:
            if y.startswith("@W") or y.endswith(":"): continue
            r2,w2=rw(y)
            if w&(r2|w2) or r&w2: return False
    return True
class TS(str): pass
class Strm:
    def __init__(self, mf): self.mf=list(mf); self.g=[[] for _ in mf]; self.job=0
    def add(self, i, item, front=None, job=None):
        L=self.g[i]
        if front is None: front=can_front(item,L)
        if job is None: self.job+=1; job=self.job
        ls=[TS(l) for l in lines(item)]
        for l in ls: l.job=job
        if front: self.g[i]=ls+L
        else: L.extend(ls)
    def check(self):
        last={}; mine={}
        for i,(m,L) in enumerate(zip(self.mf,self.g)):
            for r in rw(m)[1]: last[r]=(0,m)
            for l in L:
                if l.startswith("@W") or l.endswith(":"): continue
                r_,w_=rw(l)
                for r in r_:
                    if (l.job,r) in mine and last[r][0]!=l.job and not (last[r][0]==0 and l.startswith("v_mfma")): raise AssertionError(f"gap {i}: '{l}' reads {r} overwritten by '{last[r][1]}'")
                for r in w_: last[r]=(l.job,l); mine[(l.job,r)]=1
    def cost(self,i): return gapcost(self.g[i])
    def fit(self, items, start, end, dev=0.02, maxr=6):
        start=int(start); end=int(end); n=end-start; m=len(items)
        if not m: return []
        assert n>0
        maxr=max(maxr,-(-m//n)+2)
        INF=1e18; f=[[INF]*(m+1) for _ in range(n+1)]; ch=[[0]*(m+1) for _ in range(n+1)]; f[0][0]=0
        il=[lines(x) for x in items]
        for i in range(n):
            base=self.g[start+i]; c0=gapcost(base)
            for k in range(m+1):
                if f[i][k]>=INF: continue
                L=base; d=0
                for r in range(0,min(maxr,m-k)+1):
                    if r:
                        L=(il[k]+base) if (r==1 and can_front(items[k],base)) else L+il[k+r-1]
                        d+=((k+r-0.5)*n/m-(i+0.5))**2
                    o=gapcost(L)-c0
                    v=f[i][k]+o+0.002*o*o+dev*d/max(1,n/m)
                    if v<f[i+1][k+r]: f[i+1][k+r]=v; ch[i+1][k+r]=r
        assert f[n][m]<INF
        k=m; pos=[0]*m; pl=[]
        for i in range(n,0,-1):
            r=ch[i][k]; pl.append((start+i-1,k-r,k)); k-=r
        self.job+=1; job=self.job
        for g,a,b in pl:
            for q in range(a,b):
                self.add(g,items[q],front=None if q==a else False,job=job); pos[q]=g
        return pos
    def over(self,a=0,b=None): return sum(self.cost(i)-16 for i in range(a,len(self.mf) if b is None else b))
    def emit(self, a, lo=0, hi=None, hook=None):
        for i in range(lo,len(self.mf) if hi is None else hi):
            if hook: hook(a,i)
            a(self.mf[i]); a.extend(self.g[i])

class Pipe:
    def __init__(self,cap,lc): self.q=[]; self.cap=cap; self.lc=lc; self.last=0; self.busy=0; self.wr=0
    def out(self,t):
        while self.q and self.q[0][0]<=t: self.q.pop(0)
        return sum(n for d,n in self.q)
    def when(self,t,n):
        o=self.out(t); k=0
        while o+n>self.cap and k<len(self.q): t=max(t,self.q[k][0]); o-=self.q[k][1]; k+=1
        return t
    def put(self,t,n,lat):
        t=self.when(t,n); self.busy=max(self.busy,t)+max(32,n*self.lc)
        if lat<0: self.wr=max(self.wr,self.busy)+9*n; d=self.wr-lat
        else: d=self.busy+lat
        self.last=max(d,self.last+n*1.3); self.q.append((self.last,n)); return t,self.last
def simulate(S,cls,pre,cap=256,lc=2.2,k=1.07):
    p=Pipe(cap,lc); t=0; done={}; T=[]; st=[]
    def vm(l,g):
        nonlocal t
        tg=re.search(r";\s*@(\S+)",l); tg=tg.group(1) if tg else "?"
        n,lat=cls(tg,l); t1,d=p.put(t,n,lat); done[tg]=d
        if t1>t: st.append((g,"full:"+tg,t1-t)); t=t1
    for l in pre:
        if l.startswith("buffer"): vm(l,-1); t+=20
    t=max(t,done.get("h0",0)); t0=t; p0=len(st)
    for g in range(len(S.mf)):
        T.append(t-t0)
        for l in S.g[g]:
            if l.startswith("buffer"): vm(l,g)
            elif l.startswith("@W"):
                for tg in l.split()[1].split(","):
                    if done.get(tg,0)>t: st.append((g,"wait:"+tg,done[tg]-t)); t=done[tg]
        t+=k*gapcost(S.g[g])
    T.append(t-t0)
    return T,st[p0:]
```

```python
import sys, struct, re
from lib8 import *
from layout8 import *
NAME="recurrent_scan__ssm_conv_h3__mixer_token_mlp__prompt"
KN=NAME+"_kernel"
OPT=dict(stamps=0, spinmax=100000, sl=8, slt=0, sl_pkX=16, sl_p1=16, cpl=6, hrot=0, w1w='3_3_3_7', w2w='4_4_4_4_2', w2p=1, Lp=600, ostore="sc1", iw=1, xbar=0, ft=0,
         c3=0, c3r=0, c3n=8, nw=4, xs_=3, nA0=2, nA1=1, aseq='iiiiGSdddpd', pseq='hhhhhh', fr=62, fw=50, hold=60, hw=60, hw1=110, hc=64, cap=290, rw=4, mr=32, dw=100, ncold=0, um=1, kvx=1, kvd=4, kva=4, kvl=3, kvf=6, gx=3, ue=0, g2x=3, g2e=34.4, gn=7, d2=34, cm=0,
         w20=11, w2e='13.0_15.0_20.0_20.0_21.0_23.0_23.2_23.2_24.0_25.0_26.0_27.4_28.4_29.4_30.0_31.0_32.5_33.5', jen=6, clump=0, cfrac=100,
         bs='16.5_16.7_16.9_19.6_20.5_21.5', bl='21.1_27.6', bc='23.4_29.7', g1e=25.0, fu='28_34', kp=13.5, kc=15.2, tb=18,
         u1p=32.7, u1c=33.3, u2p=38.8, u2c=41.1, fy=40, yp=44.8, yc=46.3, yb=48, xl='41.6_41.8_41.9_39.4',
         xs='41.6_42.2_47.7_44.5_50.3_53.5_56.2', op0=50.0, cl=49.9, cc=52.0, ce=55.3, o1l=52.8, o1c=56.2, o2l=59.0, o2c=62.4, ut=0, ote=0, xt0=0, xlat=3, xw='16_2', xn=3, xlh=2, xp=2, xa=1, xm=2, xtd=10, xtl=3, pf=0, pf0=0.3, pfs=1.25, pfa=0, Lh=350, Lu=310, Lm=850, Lc=1100, Ls=1000, Lw=300)
LOGS={}
def LOG(k,*a,file=None): LOGS[k]=' '.join(str(x) for x in a)
def f2h(x): return "0x%08x"%struct.unpack("<I",struct.pack("<f",x))[0]
S_SSM,S_D,S_W1,S_B1,S_W2,S_B2,S_OUT,S_DBG,S_WS=24,26,30,32,34,36,38,40,42
WS="s[44:47]"; RW1="s[48:51]"; RW2="s[52:55]"; RA="s[56:59]"; RB_="s[60:63]"; RC="s[64:67]"
NONCE,GAM,N1,M1,LW,LR,M2,KQ=16,17,18,19,20,21,22,23
US,PKO,PKW,CH,LA,LB,XBS,XBR,FUS,TM,YS,CM=30,31,35,34,40,41,42,43,32,33,36,26
KT,K2=68,84
OFF,MB,IB=68,77,83
NB_SD=2048*576*2
SLOT=16384; RS=12288
KL=131072; VL=KL+12672; LN_ST=VL+9216; LN_STR=1216
def lds_layout():
    global NW,NH,TE,RING,TI,TO,MBX,CV_F0
    NW=OPT["nw"]; NH=10-NW; TE=NW*SLOT; RING=TE+24576; TI=TE+4640; TO=TI+4096; MBX=TE
    CV_F0=max(CV_IMG,TO+4128-CV_BUF); assert RING+NH*RS<=163840 and CV_F0<=TE
OOB="0x40000000"
def P(r,k="v"): return f"{k}[{r}:{r+1}]"
def Q(r,k="v"): return f"{k}[{r}:{r+3}]"
def flat(x): return sum(x,[])
def sp(x): return flat([lines(i) for i in x])
def flts(k): return [float(x) for x in str(OPT[k]).split('_')]
def ints(k): return [int(x) for x in str(OPT[k]).split("_")]
VW1,VW2,RB,RH,VH,L16,UL,FZ,NV,FW,PA,PB,BBC=4,8,12,16,18,21,22,23,24,25,26,28,30
AB=4; TG=(253,255,FZ,0)
HF,AF,AO1,BU,TA=32,64,112,128,112
XO,XC,ST,B2,YA,YR,DR,BIAS=144,145,146,152,155,252,30,148; PK_=142
W2V=156; NV2=6
def w2reg(t): return ("v",W2V+16*t) if t<NV2 else ("a",16*(t-NV2)) if t<14 else ("a",192+16*(t-14))

def stamp(a,c,fine=None):
    if OPT.get("fine") and fine!=OPT["fine"] and c!=14: return
    if fine and not OPT.get("fine"): return
    if OPT["stamps"]:
        a(f"s_memrealtime s[28:29]\ns_memtime s[0:1]\ns_waitcnt lgkmcnt(0)\nv_writelane_b32 v254, s28, {c}\nv_writelane_b32 v254, s0, {16+c}")
def stl(c,f):
    t=Asm(); stamp(t,c,f); return [i.text for i in t.L]
def stamps_out(a):
    a(f"s_lshl_b32 s4, s2, 2\ns_add_u32 s4, s4, s3\ns_lshl_b32 s4, s4, 7\ns_add_u32 s4, s4, {WS_STAMP}\nv_lshlrev_b32 v255, 2, v2\ns_mov_b64 exec, 0xffffffff")
    a(f"buffer_store_dword v254, v255, {WS}, s4 offen")

def unpack(dst,src):
    h,l=f"v_and_b32 v{dst+1}, 0xffff0000, v{src}", f"v_lshlrev_b32 v{dst}, 16, v{src}"
    return [l,h] if src==dst+1 else [h,l]
def reduce32(r,t):
    L=[f"v_add_f32_dpp v{r}, v{r}, v{r} row_ror:{sh} row_mask:0xf bank_mask:0xf" for sh in (8,4,2,1)]
    return L+[f"v_mov_b32 v{t}, v{r}", f"v_permlane16_swap_b32 v{r}, v{t}", f"v_add_f32 v{r}, v{r}, v{t}"]
def rbf(r): return [f"v_cvt_pk_bf16_f32 v{r}, v{r}, v{r}", f"v_lshlrev_b32 v{r}, 16, v{r}"]
NEG1="op_sel_hi:[1,0] neg_lo:[0,1] neg_hi:[0,1]"
def ln_fused(X,T,M,RS_,D,ST_):
    L=[f"v_pk_add_f32 {P(T+2*i)}, {P(X+4*i)}, {P(X+4*i+2)}" for i in range(4)]
    L+=[f"v_pk_add_f32 {P(T)}, {P(T)}, {P(T+2)}", f"v_pk_add_f32 {P(T+4)}, {P(T+4)}, {P(T+6)}", f"v_pk_add_f32 {P(T)}, {P(T)}, {P(X+16)}", f"v_pk_add_f32 {P(T)}, {P(T)}, {P(T+4)}"]
    L+=[f"v_add_f32 v{M}, v{T}, v{T+1}"]+reduce32(M,M+1)+[f"v_mul_f32 v{M}, 0x3ae38e39, v{M}"]
    L+=[f"v_pk_add_f32 {P(X+2*j)}, {P(X+2*j)}, {P(M)} {NEG1}" for j in range(9)]
    L+=[f"v_pk_mul_f32 {P(T)}, {P(X)}, {P(X)}", f"v_pk_mul_f32 {P(T+2)}, {P(X+2)}, {P(X+2)}"]
    L+=[f"v_pk_fma_f32 {P(T+2*(j&1))}, {P(X+2*j)}, {P(X+2*j)}, {P(T+2*(j&1))}" for j in range(2,9)]
    L+=[f"v_pk_add_f32 {P(T)}, {P(T)}, {P(T+2)}", f"v_add_f32 v{RS_}, v{T}, v{T+1}"]+reduce32(RS_,RS_+1)
    L+=[f"v_mul_f32 v{RS_}, 0x3ae38e39, v{RS_}"]
    L+=[f"v_cvt_pk_bf16_f32 v{T}, v{M}, v{RS_}", f"v_lshlrev_b32 v{ST_}, 16, v{T}", f"v_and_b32 v{T}, 0xffff0000, v{T}",
        f"v_add_f32 v{T}, 0x3727c5ac, v{T}", f"v_sub_f32 v{M}, v{M}, v{ST_}"]+rbf(T)+[f"v_sqrt_f32 v{T}, v{T}"]+rbf(T)+[f"v_rcp_f32 v{ST_+1}, v{T}"]
    L+=[f"v_mul_f32 v{M}, v{M}, v{ST_+1}", f"v_mul_f32 v{RS_}, v{RS_}, v{ST_+1}", f"v_mul_f32 v{RS_}, v{RS_}, v{ST_+1}",
        f"v_cvt_pk_bf16_f32 v{T}, v{M}, v{RS_}", f"v_lshlrev_b32 v{T+1}, 16, v{T}", f"v_and_b32 v{T}, 0xffff0000, v{T}",
        f"v_add_f32 v{T}, 0x3727c5ac, v{T}", f"v_sub_f32 v{M}, v{M}, v{T+1}"]+rbf(T)+[f"v_sqrt_f32 v{T}, v{T}"]+rbf(T)+[f"v_rcp_f32 v{T}, v{T}"]
    L+=[f"v_mul_f32 v{RS_}, v{ST_+1}, v{T}", f"v_mul_f32 v{M}, v{M}, v{T}"]
    L+=[f"v_pk_fma_f32 {P(X+2*j)}, {P(X+2*j)}, {P(RS_)}, {P(M)} op_sel_hi:[1,0,0]" for j in range(9)]
    L+=[f"v_cvt_pk_bf16_f32 v{D+j}, v{X+2*j}, v{X+2*j+1}" for j in range(9)]
    return L
def s_dtoff(d,g,t):
    return [f"s_mul_i32 s{t}, s{g}, 43", f"s_lshr_b32 s{t}, s{t}, 7", f"s_add_u32 s{d}, s{g}, s{t}", f"s_mul_i32 s{t}, s{t}, 3", f"s_sub_u32 s{t}, s{g}, s{t}", f"s_min_u32 s{t}, s{t}, 1",
            f"s_add_u32 s{d}, s{d}, s{t}", f"s_lshl_b32 s{d}, s{d}, 8"]
def srdl(s,lo,n):
    t=Asm(); srd(t,s,lo,n); return [i.text for i in t.L]

M0EXP={}
def dma(m0, ins):
    for x in ins:
        m=re.search(r" lds ; @(\S+)",x)
        if m: M0EXP[m.group(1)]=m0
    return [m0]+ins
def wdma(kind,t,base):
    so=f"s_mul_i32 s14, s{KT+t}, 6" if kind==1 else f"s_lshl_b32 s14, s{K2+t}, 1"
    v,r=(VW1,RW1) if kind==1 else (VW2,RW2)
    return dma(f"s_add_u32 m0, s{LW}, {base}",[so]+[f"buffer_load_dwordx4 v{v+i}, {r}, s14 offen offset:{1024*i} lds ; @w{kind}_{t}" for i in range(4)])
def wreads(kind,t,rb,off):
    k,r0=("a",16*t) if kind==1 else w2reg(t)
    return [f"ds_read_b64_tr_b16 {P(r0+8*ks+4*ft+2*hf,k)}, v{rb+ft} offset:{off+ks*8192+hf*1024} ; @r{kind}_{t}" for ks in range(2) for ft in range(2) for hf in range(2)]
def slot_rd(kind,t,s): return wreads(kind,t,RB+2*(s>>2),(s&3)*SLOT)
def rbsetup(dst,base):
    return ["v_bfe_u32 v1, v2, 2, 2","v_lshrrev_b32 v3, 4, v2","v_lshl_add_u32 v31, v3, 3, v1","v_lshlrev_b32 v31, 8, v31","v_and_b32 v3, 1, v3","v_lshl_add_u32 v1, v3, 2, v1",
            "v_and_b32 v3, 3, v2","v_lshl_add_u32 v31, v3, 3, v31","s_lshl_b32 s7, s3, 1","v_xor_b32 v1, s7, v1",f"v_lshl_add_u32 v{dst}, v1, 5, v31"]+([f"v_add_u32 v{dst}, {base}, v{dst}"] if base else [])+[f"v_xor_b32 v{dst+1}, 32, v{dst}"]
def w2order(w,k0):
    if not k0:
        od=[[] for m in range(4)]; b=0
        for W in [int(x) for x in str(w).split("_")]:
            for m in range(4): od[m]+=[b+(m*W//4+i)%W for i in range(W)]
            b+=W
        assert b==18; return od
    od=[[4*k+m for k in range(k0)] for m in range(4)]; new=4*k0
    for st in range(k0,18):
        old=new
        for m in range(4):
            if m==st%4 and new<18: od[m].append(new); new+=1
            else: od[m].append(min(t for t in range(old) if t not in od[m]))
    return od
def w2setup(X=False):
    L=["v_lshrrev_b32 v1, 4, v2","v_and_b32 v3, 15, v2","v_lshlrev_b32 v31, 1, v1","v_xor_b32 v3, v3, v31","v_lshlrev_b32 v1, 12, v1","v_and_b32 v31, 7, v3","v_lshl_add_u32 v1, v31, 4, v1",
       "s_lshr_b32 s4, s3, 1","s_lshl_b32 s4, s4, 2","s_and_b32 s5, s3, 1","s_add_u32 s4, s4, s5","s_lshl_b32 s4, s4, 15","v_add_u32 v1, s4, v1",
       f"v_mov_b32 v31, s{LA}",f"v_mov_b32 v{VW2+3}, s{LB}",
       f"v_cmp_lt_u32 vcc, 7, v3\nv_cndmask_b32 v{VW2}, v31, v{VW2+3}, vcc\nv_cndmask_b32 v{VW2+2}, v{VW2+3}, v31, vcc",
       f"v_add_u32 v{VW2}, v{VW2}, v1",f"v_add_u32 v{VW2+2}, v{VW2+2}, v1",f"v_add_u32 v{VW2+1}, {65536-1024}, v{VW2}",f"v_add_u32 v{VW2+2}, {16384-2048}, v{VW2+2}",f"v_add_u32 v{VW2+3}, {65536-1024}, v{VW2+2}"]
    od=w2order(OPT["w2w"],OPT["w2p"]); ox=w2order(OPT["xw"],0) if (X and OPT["xw"]) else od
    for k in range(3):
        c=[sum(o[6*k+i]<<(5*i) for i in range(6)) for o in ox+od[3:]]
        L+=[f"s_mov_b32 s4, {c[0]}"]+[f"s_cmp_eq_u32 s{M2}, {m}\ns_cselect_b32 s4, {c[m]}, s4" for m in (1,2,3)]
        if ox is not od: L+=[f"s_cmp_lt_u32 s2, {28*8}\ns_cselect_b32 s4, {c[4]}, s4"]
        L+=[f"s_bfe_u32 s{K2+6*k+i}, s4, {(5<<16)|(5*i):#x}" for i in range(6)]
    L+=[f"s_mul_i32 s4, s{KQ}, 18"]+flat([[f"s_add_u32 s{K2+i}, s{K2+i}, s4",f"s_lshl_b32 s{K2+i}, s{K2+i}, 17"] for i in range(18)])
    return L

COLD=[]
def poll_issue(tag,v,off=0): return f"buffer_load_dword v{v+1}, v{v}, {WS}, 0 offen offset:{off} sc1 ; @{tag}"
def poll_check(tag,v,off=0):
    sl=OPT.get("sl_"+tag,OPT["sl"]); sl=f"s_sleep {sl}\n" if sl else ""
    COLD.append(f"L_rs_{tag}:\ns_mov_b32 s13, 0\nL_rt_{tag}:\ns_mov_b64 exec, vcc\n{sl}"
            f"buffer_load_dword v{v+1}, v{v}, {WS}, 0 offen offset:{off} sc1\ns_waitcnt vmcnt(0)\nv_cmp_ne_u32 vcc, s{NONCE}, v{v+1}\ns_cbranch_vccz L_rx_{tag}\n"
            f"s_add_u32 s13, s13, 1\ns_cmp_lt_u32 s13, {OPT['spinmax']}\ns_cbranch_scc1 L_rt_{tag}\nL_rx_{tag}:\ns_mov_b64 exec, -1\ns_branch L_ok_{tag}")
    return [f"@W {tag}", f"v_cmp_ne_u32 vcc, s{NONCE}, v{v+1}\ns_cbranch_vccnz L_rs_{tag}\nL_ok_{tag}:"]
def tagsetup():
    L=[f"s_mul_i32 s4, s{NONCE}, 0x9e3779b1","s_lshr_b32 s5, s4, 15","s_xor_b32 s4, s4, s5","s_mul_i32 s4, s4, 0x85ebca77","s_lshr_b32 s5, s4, 13","s_xor_b32 s4, s4, s5",f"s_mov_b32 s{TM}, 0x10001",
       "v_and_b32 v1, 3, v2","v_lshlrev_b32 v1, 3, v1","v_lshrrev_b32 v1, v1, s4"]
    return L+flat([[f"v_bfe_u32 v31, v1, {2*k+1}, 1",f"v_bfe_u32 v{TG[k]}, v1, {2*k}, 1",f"v_lshl_or_b32 v{TG[k]}, v31, 16, v{TG[k]}"] for k in range(4)])
SB=146; STA=14
def idsetup():
    return ["v_and_b32 v1, 15, v2","v_lshrrev_b32 v31, 4, v2","v_lshlrev_b32 v31, 2, v31","v_sub_u32 v1, v1, v31","v_and_b32 v31, 1, v1","v_lshlrev_b32 v31, 4, v31","s_movk_i32 s4, 0x3f80","v_lshlrev_b32 v31, v31, s4","v_ashrrev_i32 v1, 1, v1",
            f"v_cmp_eq_u32 vcc, 0, v1\nv_cndmask_b32 v{SB+2}, 0, v31, vcc",f"v_cmp_eq_u32 vcc, 1, v1\nv_cndmask_b32 v{SB+3}, 0, v31, vcc"]+[f"v_mov_b32 v{SB+k}, 0" for k in (0,1,4,5)]
def madd(acc,m,h,inD): return f"v_mfma_f32_16x16x32_bf16 {Q(acc)}, {Q(130-2*h,'a') if inD else Q(SB+2-2*h)}, {Q(m)}, {Q(acc)}"
def pack(d,A): return [f"v_cvt_pk_bf16_f32 v{d+k}, v{A+2*k}, v{A+2*k+1}" for k in range(4)]+[f"v_bfi_b32 v{d+k}, s{TM}, v{TG[k]}, v{d+k}" for k in range(4)]
def tagged(tag,loads,msgs):
    R=[m+k for m in msgs for k in range(4)]; n=len(R)
    x=[f"v_xor_b32 v{r}, v{TG[k&3]}, v{r}" for k,r in enumerate(R)]
    ck=x[:4]+[f"v_or3_b32 v1, v{R[0]}, v{R[1]}, v{R[2]}"]+flat([x[k+1:k+3]+[f"v_or3_b32 v1, v{R[k]}, v{R[k+1]}, v1"] for k in range(3,n-1,2)])+[f"v_or_b32 v1, v{R[n-1]}, v1",f"v_and_b32 v1, s{TM}, v1"]
    assert sorted(l for l in ck if "xor" in l)==sorted(x)
    COLD.append(f"L_rs_{tag}:\ns_mov_b32 s13, 0\nL_rt_{tag}:\ns_add_u32 s13, s13, 1\ns_cmp_lt_u32 s13, {OPT['spinmax']}\ns_cbranch_scc0 L_ok_{tag}\n"+(f"s_sleep {OPT['slt']}\n" if OPT["slt"] else "")+"\n".join(x.split(";")[0] for x in loads)+"\ns_waitcnt vmcnt(0)\n"
                +"\n".join(ck)+f"\nv_cmp_ne_u32 vcc, 0, v1\ns_cbranch_vccnz L_rt_{tag}\ns_branch L_ok_{tag}")
    return [f"@W {tag}"]+ck+[f"v_cmp_ne_u32 vcc, 0, v1\ns_cbranch_vccnz L_rs_{tag}\nL_ok_{tag}:"]
def flag4(v,base):
    return [f"v_and_b32 v{v+1}, 3, v{v}", f"v_lshrrev_b32 v{v}, 2, v{v}", f"v_lshlrev_b32 v{v}, 7, v{v}", f"v_lshl_add_u32 v{v}, v{v+1}, 2, v{v}", f"v_add_u32 v{v}, {base}, v{v}"]
def kvpoll_addr(v): return ["s_lshl_b32 s6, s3, 6", f"v_add_u32 v{v}, s6, v2"]+flag4(v,F1K)
def warm(name):
    if not OPT["iw"]: return []
    return [f"s_mov_b64 exec, 0\ns_call_b64 s[10:11], L_wc_{name}\ns_mov_b64 exec, -1"]

def c3touch():
    r0,nr=OPT["c3r"],OPT["c3n"]
    return srdl(60,S_W1,2048*4608*2)+[f"s_mul_i32 s4, s{KQ}, 18","s_add_u32 s4, s4, 4","s_andn2_b32 s4, s4, 7","s_add_u32 s4, s4, 3","s_lshl_b32 s4, s4, 7",
        "s_and_b32 s7, s2, 1","s_lshl_b32 s7, s7, 10","s_lshr_b32 s8, s2, 3","s_lshl2_add_u32 s8, s8, s3","s_add_u32 s7, s7, s8",f"s_add_u32 s7, s7, {r0}","s_mul_i32 s7, s7, 9216","s_add_u32 s4, s4, s7",
        f"s_cmp_eq_u32 s{KQ}, 1","s_cselect_b32 s8, 2, 1","v_and_b32 v1, 3, v2","v_min_u32 v1, s8, v1","v_lshrrev_b32 v3, 2, v2",f"v_min_u32 v3, {nr-1}, v3",f"v_mul_u32_u24 v3, {128*9216}, v3","v_lshl_add_u32 v1, v1, 10, v3",
        f"buffer_load_dword v255, v1, {RB_}, s4 offen ; @c3"]
XA,KD,KD2,TAP,HSA,LNW,HRD,KRD,TR=215,217,218,219,212,220,221,222,138
def p0(a):
    a(f".globl {KN}\n.p2align 8\n.type {KN},@function\n{KN}:")
    a("s_cmp_lt_u32 s2, 256\ns_cbranch_scc0 L_exit")
    a("s_load_dwordx2 s[56:57], s[0:1], 0\ns_load_dwordx2 s[48:49], s[0:1], 8\ns_load_dwordx2 s[52:53], s[0:1], 16\ns_load_dwordx2 s[60:61], s[0:1], 24")
    a("s_load_dwordx4 s[24:27], s[0:1], 32\ns_load_dwordx2 s[30:31], s[0:1], 56\ns_load_dwordx8 s[32:39], s[0:1], 64\ns_load_dwordx4 s[40:43], s[0:1], 96\ns_memrealtime s[12:13]")
    a("v_lshrrev_b32 v1, 6, v0\nv_and_b32 v2, 63, v0")
    a(f"s_getpc_b64 s[6:7]\nL_pc:\ns_lshr_b32 s4, s2, 1\ns_and_b32 s4, s4, 124\nv_add_u32 v3, s4, v1\nv_lshl_add_u32 v3, v2, 7, v3\nv_lshlrev_b32 v3, 7, v3")
    a(f"v_min_u32 v3, L_end-L_pc-4, v3\ns_mov_b64 exec, {(1<<OPT['cpl'])-1}\nglobal_load_dword v255, v3, s[6:7] ; @code\ns_mov_b64 exec, -1\nv_readfirstlane_b32 s3, v1")
    a(f"s_and_b32 s4, s2, 7\ns_lshr_b32 s5, s2, 3\ns_lshl_b32 s4, s4, 5\ns_add_u32 s{GAM}, s4, s5")
    a(f"v_lshrrev_b32 v3, 5, v0\nv_and_b32 v31, 31, v0\nv_mul_u32_u24 v{XA}, 1152, v3\nv_mad_u32_u24 v{XA}, v31, 12, v{XA}\ns_mul_i32 s15, s{GAM}, 9216")
    kvx=OPT["kvx"]
    if kvx: a(f"v_lshlrev_b32 v{L16}, 4, v2")
    else: a(f"s_mul_i32 s4, s3, 3072\ns_add_u32 s5, s4, s15\ns_sub_u32 s5, s5, 3456\nv_lshlrev_b32 v{L16}, 4, v2\nv_add_u32 v{KD}, s5, v{L16}\nv_add_u32 v{KD2}, 1024, v{KD}")
    if not kvx: a(f"s_add_u32 s4, s4, {KL}\ns_lshl_b32 s5, s3, 11\ns_add_u32 s11, s5, s15\ns_add_u32 s5, s5, {VL}\ns_mov_b32 m0, s4")
    for r,nb in ((56,NB_SD),(48,NB_SD),(52,NB_SD),(60,576*8)): a(f"s_mov_b32 s{r+2}, {nb}\ns_mov_b32 s{r+3}, 0x20000")
    a(f"v_lshlrev_b32 v{TAP}, 3, v0\ns_movk_i32 s10, 4096")
    a("s_waitcnt lgkmcnt(0)")
    stamp(a,1,"P")
    for j in range(3): a(f"buffer_load_dwordx3 v[{64+4*j}:{66+4*j}], v{XA}, {RA}, s15 offen offset:{384*j} ; @x")
    if not kvx:
        if OPT["xbar"]: a("s_barrier")
        a(f"buffer_load_dwordx4 v{KD}, s[48:51], 0 offen lds ; @kv\ns_add_u32 m0, s4, 1024\ns_cmp_eq_u32 s3, 3")
        a(f"buffer_load_dwordx4 v{KD2}, s[48:51], 0 offen lds ; @kv\nbuffer_load_dwordx4 v{KD2}, s[48:51], 0 offen offset:1024 lds ; @kv\ns_cbranch_scc1 L_xld\nL_nox:\ns_mov_b32 m0, s5")
        COLD.insert(0,f"L_xld:\ns_mov_b64 exec, 0xffffff\nbuffer_load_dwordx4 v{KD2}, s[48:51], 0 offen offset:2048 lds\ns_mov_b64 exec, -1\ns_mov_b32 m0, s5\nbuffer_load_dwordx4 v{L16}, s[52:55], s11 offen offset:2048 lds\ns_branch L_nox")
        a(f"buffer_load_dwordx2 {P(TR)}, v{TAP}, {RB_}, 0 offen ; @kv")
        a(f"buffer_load_dwordx4 v{L16}, s[52:55], s11 offen lds ; @kv\nbuffer_load_dwordx4 v{L16}, s[52:55], s11 offen offset:1024 lds ; @kv")
        a(f"buffer_load_dwordx2 {P(TR+2)}, v{TAP}, {RB_}, 0 offen offset:2048 ; @kv\nbuffer_load_dwordx2 {P(TR+4)}, v{TAP}, {RB_}, s10 offen ; @kv")
    srd(a,64,S_DBG,256)
    if OPT["stamps"]: a("v_writelane_b32 v254, s12, 0")
    a(f"s_or_b32 s12, s12, 1\nv_or_b32 v1, s2, v0\nv_lshlrev_b32 v1, 8, v1\nv_mov_b32 v3, s12\nbuffer_store_dword v3, v1, {RC}, 0 offen sc1 ; @pub")
    stamp(a,2,"P")
    srd(a,44,S_WS,WS_END)
    if kvx: a(f"s_mov_b64 s[{XBS}:{XBS+1}], s[{S_W2}:{S_W2+1}]")
    else: srd(a,52,S_W2,4608*4096)
    if OPT["ft"]:
        a(f"s_lshr_b32 s4, s{GAM}, 2\ns_lshl_b32 s4, s4, 7\ns_add_u32 s4, s4, {F1H}\nv_and_b32 v1, 1, v2\nv_mul_u32_u24 v1, {F1K-F1H}, v1\nbuffer_load_dword v255, v1, {WS}, s4 offen {'sc1' if OPT['ft']==2 else ''} ; @ft")
    a(f"s_and_b32 s5, s2, 7\ns_lshr_b32 s6, s2, 3\ns_and_b32 s{M2}, s6, 3\ns_lshr_b32 s{KQ}, s5, 1\ns_lshl_b32 s{LW}, s3, 12\ns_mul_i32 s{LR}, s3, 3072\ns_add_u32 s{LR}, s{LR}, {RING}")
    a(f"s_mul_i32 s{CH}, s5, 72\ns_add_u32 s{CH}, s{CH}, s6")
    a(f"s_lshr_b32 s7, s6, 2\ns_lshl_b32 s8, s7, 1\ns_and_b32 s4, s5, 1\ns_lshl_b32 s4, s4, 4")
    for r,c,k in ((LA,3,0),(LB,11,1)):
        a(f"s_add_u32 s9, s8, {k}\ns_cmp_ge_u32 s9, 3\ns_addc_u32 s{r}, s9, 0\ns_cmp_ge_u32 s9, 10\ns_addc_u32 s{r}, s{r}, 0\ns_cmp_eq_u32 s7, 7\ns_cselect_b32 s{r}, {c}, s{r}\ns_add_u32 s{r}, s{r}, s4\ns_lshl_b32 s{r}, s{r}, 7")
    a(f"v_min_u32 v{FW}, 1, v0\nv_lshlrev_b32 v{FW}, 30, v{FW}\nv_min_u32 v{FZ}, 1, v2\nv_lshlrev_b32 v{FZ}, 30, v{FZ}")
    a(f"v_and_b32 v1, 15, v2\nv_lshrrev_b32 v3, 4, v2\nv_mul_u32_u24 v3, {GS}, v3\nv_lshl_add_u32 v{UL}, v1, 4, v3")
    if OPT["c3"]==1: a.extend(c3touch())
    a("s_cmp_lt_u32 s6, 27\ns_cbranch_scc0 L_aux")
    if OPT["iw"]: a("s_branch L_org\nL_exit:\ns_endpgm\n.p2align 12\nL_org:")
    else: COLD.append("L_exit:\ns_endpgm")

KR,J,TT,RE,VU,O=108,156,162,164,180,188
def kvrd(b,vk,ok,vv,ov,tg=""):
    return [f"ds_read_b64_tr_b16 {P(KR+10*b+2*q)}, v{vk if q<3 else vv} offset:{ok+4608*q if q<3 else ov+4608*(q-3)} ; @kr{b}{tg}" for q in range(5)]
def kvc(b,i,va,so,tg="",o=None):
    K=KR+10*b; V_=K+6; R=RE+8*(b&1); o=O+4*b if o is None else o
    L=[f"v_alignbit_b32 v{TT}, v{TR+2*i+1}, v{TR+2*i+1}, 16", f"v_alignbit_b32 v{TT+1}, v{TR+2*i}, v{TR+2*i}, 16", f"@W - kr{b}{tg}"]
    L+=[f"v_alignbit_b32 v{J+m}, v{K+m+1}, v{K+m}, 16" for m in range(5)]
    L+=[f"v_dot2_f32_bf16 v{R+r}, v{(J if r&1 else K)+(r>>1)}, v{TT}, 0" for r in range(8)]
    L+=[f"v_dot2_f32_bf16 v{R+r}, v{(J if r&1 else K)+(r>>1)+1}, v{TT+1}, v{R+r}" for r in range(8)]
    L+=flat([unpack(VU+2*m,V_+m) for m in range(4)])
    L+=[f"v_pk_mul_f32 {P(R+2*m)}, {P(R+2*m)}, {P(VU+2*m)}" for m in range(4)]
    L+=[f"v_cvt_pk_bf16_f32 v{o+p}, v{R+7-2*p}, v{R+6-2*p}" for p in range(4)]
    return L+[f"buffer_store_dwordx4 {Q(o)}, v{va}, {WS}, {so} offen sc1 ; @kst"]
class KVX:
    VX=69632; G0,SO=KT+4,KT; KA,VA,VRD,K2R,V2R,HS2=227,228,229,230,231,232
    def __init__(s): s.n=[0,0]; s.st=[]
    def kvc(s,*a):
        L=kvc(*a,o=32+4*len([x for x in s.st if 'store' in x]))
        if OPT['kvd']: s.st.append(L.pop())
        return L
    def setup(s):
        L=["s_mul_i32 s7, s5, 5","s_add_u32 s7, s7, s6","s_sub_u32 s7, s7, 27","s_mul_i32 s7, s7, 52429",f"s_lshr_b32 s{s.G0}, s7, 13",f"s_mul_i32 s7, s{s.G0}, 9216","s_lshl_b32 s8, s3, 10","s_add_u32 s7, s7, s8",f"v_add_u32 v{s.VA}, s7, v{L16}",f"v_subrev_u32 v{s.KA}, 3456, v{s.VA}",
           f"buffer_load_dwordx2 {P(TR)}, v{TAP}, {RB_}, 0 offen ; @tap",f"buffer_load_dwordx2 {P(TR+2)}, v{TAP}, {RB_}, 0 offen offset:2048 ; @tap","v_lshlrev_b32 v1, 3, v2",f"buffer_load_dwordx2 {P(TR+4)}, v1, {RB_}, s10 offen ; @tap"]
        return L+[f"s_lshr_b32 s{s.SO+1}, s{LW}, 2"]+s.upto(0)
    def one(s,w):
        n=s.n[w]; s.n[w]+=1; v=(s.KA,s.VA)[w]
        return [f"s_add_u32 m0, s{s.SO+1}, {4096*n+w*s.VX}\n"+(f"v_add_u32 v{v}, 4096, v{v}\n" if n else "s_nop 0\n")+f"buffer_load_dwordx4 v{v}, {('s[48:51]','s[52:55]')[w]}, 0 offen lds ; @{'kv'[w]}x{n}"]
    def need(s,r): return [min(17,-(-(8*r+11)*1152//4096)),min(16,-(-(8*r+8)*1152//4096))]
    def upto(s,r,m=99):
        L=[]; nd=s.need(min(r,6))
        while len(L)<m and (s.n[0]<nd[0] or s.n[1]<nd[1]): L+=s.one(0 if (s.n[0]-nd[0]<=s.n[1]-nd[1]) else 1)
        return L
    def rnd(s,r):
        nd=s.need(r); L=[f"@W kx{nd[0]-1},vx{nd[1]-1}"+(",tap" if r==0 else "")+"\ns_barrier"]+flat([kvrd(i,KRD,512*i+9216*(r%4),s.VRD,512*i+9216*(r%4),f"_{r}") for i in range(2)])
        if r==3: L+=[f"v_add_u32 v{x}, {4*9216}, v{x}" for x in (KRD,s.VRD)]
        c=flat([s.kvc(i,i,HSA+i,f"s{s.SO}",f"_{r}") for i in range(2)]); (s.st if OPT["kvd"] else c).append(f"s_add_u32 s{s.SO}, s{s.SO}, {GS}")
        d=s.upto(r+OPT["kvl"]) if r else []
        return L+(interleave(c,d,2,len(c)-10) if d else c)
    def flush(s):
        L=[x for x in s.st if not x.startswith('done')]; s.st=['done store' if 'store' in x else 'done' for x in s.st]; return L
    def first(s):
        L=[f"v_add_u32 v{s.VRD}, {s.VX}, v{KRD}",f"s_mul_i32 s{s.SO}, s{s.G0}, {GS}",f"s_add_u32 s{s.SO}, s{s.SO}, {WS_KVT}"]
        return s.upto(1,OPT["kva"])+L+s.rnd(0)
    def rest(s,touch,mid,post):
        L=stl(1,"K")+s.upto(OPT["kvl"])
        L+=["v_bfe_u32 v1, v2, 2, 2","v_mul_u32_u24 v1, 1152, v1","v_lshrrev_b32 v3, 4, v2","v_lshl_add_u32 v1, v3, 5, v1","v_and_b32 v31, 3, v2","v_lshl_add_u32 v1, v31, 3, v1","s_mul_i32 s4, s3, 9216","s_add_u32 s4, s4, 1024",f"v_add_u32 v{s.K2R}, s4, v1",f"v_add_u32 v{s.V2R}, {s.VX}, v{s.K2R}",
            f"s_mov_b32 s4, {sum((dtoff(32+k)>>8)<<(8*k) for k in range(4))}","v_lshlrev_b32 v3, 3, v3","v_lshrrev_b32 v3, v3, s4","v_and_b32 v3, 255, v3","v_lshlrev_b32 v3, 8, v3","v_and_b32 v1, 15, v2",f"v_lshl_add_u32 v{s.HS2}, v1, 4, v3",
            f"s_add_u32 s4, s{s.G0}, s3",f"s_mul_i32 s4, s4, {GS}",f"s_add_u32 s{s.SO+2}, s4, {WS_KVT}",f"s_add_u32 s{s.SO+3}, s{s.SO+2}, {4*GS}",f"s_cmp_eq_u32 s3, 3\ns_cselect_b32 s{s.SO+3}, {OOB}, s{s.SO+3}"]
        for r in range(1,7):
            if r==OPT["kvf"]: L+=touch
            L+=s.rnd(r)+stl(1+r,"K")
            if r in (3,6): q=r//4; L+=kvrd(2,s.K2R,36864*q,s.V2R,36864*q,f"_{r}")+s.kvc(2,2,s.HS2,f"s{s.SO+2+q}",f"_{r}")
            if r==6 and OPT["xm"]==0: L+=["@W - 0\ns_barrier"]+mid
            if r>=OPT["kvd"]: L+=s.flush()
            if r==6 and OPT["xm"]==1: L+=["@W - 0\ns_barrier"]+mid
        L+=["v_min_u32 v1, 6, v0",f"v_add_u32 v{PB}, s{s.G0}, v1"]+flag4(PB,F1K)+[f"v_mov_b32 v1, {OOB}",f"v_cmp_gt_u32 vcc, 7, v0\nv_cndmask_b32 v{PB}, v1, v{PB}, vcc"]
        return L+stl(8,"K")+post+["@W kst 0\ns_barrier",f"buffer_store_dword v{NV}, v{PB}, {WS}, 0 offen sc1 ; @fl"]+(mid if OPT["xm"]==2 else [])+stl(9,"K")
def phaseA(a, tag, fill_pre, fill_kv, fill_post, kvr=None):
    X,T,M,RS_,D,STA=76,94,102,104,64,106
    L=flat([unpack(X+2*j,64+4*(j//3)+j%3) for j in range(9)])+ln_fused(X,T,M,RS_,D,STA)
    a(f"v_lshrrev_b32 v3, 5, v0\nv_and_b32 v1, 31, v0\nv_mul_u32_u24 v{LNW}, {LN_STR}, v3\nv_mad_u32_u24 v{LNW}, v1, 12, v{LNW}\nv_add_u32 v{LNW}, {LN_ST}, v{LNW}")
    a(f"v_lshlrev_b32 v3, 3, v3\nv_cmp_eq_u32 vcc, 0, v1\nv_mov_b32 v31, {OOB}\nv_cndmask_b32 v216, v31, v3, vcc")
    a(f"v_lshrrev_b32 v31, 4, v0\nv_and_b32 v1, 3, v2\nv_lshlrev_b32 v1, 3, v1\nv_lshl_add_u32 v1, v31, 5, v1\nv_bfe_u32 v3, v2, 2, 2")
    a(f"v_mul_u32_u24 v{HRD}, {LN_STR}, v3\nv_mul_u32_u24 v{KRD}, 1152, v3\ns_mov_b32 s9, {LN_ST}\ns_mov_b32 s8, {0 if OPT['kvx'] else KL}\nv_add3_u32 v{HRD}, v{HRD}, v1, s9\nv_add3_u32 v{KRD}, v{KRD}, v1, s8")
    a("v_and_b32 v223, 15, v0\nv_lshlrev_b32 v223, 4, v223")
    for i in range(3):
        a(f"v_add_u32 v1, {16*i}, v31\nv_mul_u32_u24 v3, 43, v1\nv_lshrrev_b32 v3, 7, v3\nv_mad_i32_i24 v224, v3, -3, v1\nv_min_u32 v224, 1, v224\nv_add3_u32 v1, v1, v3, v224\nv_lshl_add_u32 v{HSA+i}, v1, 8, v223")
    a(f"s_mul_i32 s4, s{GAM}, {GS}\ns_add_u32 s6, s4, {WS_HT}\ns_add_u32 s7, s4, {WS_KVT}\ns_cmp_eq_u32 s3, 0\ns_cselect_b32 s8, s6, {OOB}\ns_cselect_b32 s9, s7, {OOB}")
    a(f"s_lshl_b32 s5, s{GAM}, 6\ns_add_u32 s5, s5, {WS_STATS}\nv_mov_b32 v225, 0")
    a(f"s_lshr_b32 s12, s{GAM}, 2\ns_lshl_b32 s12, s12, 7\ns_and_b32 s4, s{GAM}, 3\ns_lshl2_add_u32 s12, s4, s12\ns_add_u32 s12, s12, {F1H}")
    a.extend(fill_pre)
    stamp(a,3,"P")
    a("@W x"); stamp(a,1)
    a.extend(L)
    for j in range(9): a(f"ds_write_b32 v{LNW}, v{D+j} offset:{384*(j//3)+4*(j%3)}")
    a(f"buffer_store_dwordx2 {P(STA)}, v216, {WS}, s5 offen sc1 ; @st")
    a("@W - 0\ns_barrier")
    HD=200
    for i in range(3): a(f"ds_read_b64_tr_b16 {P(HD+4*i)}, v{HRD} offset:{512*i} ; @ht{i}\nds_read_b64_tr_b16 {P(HD+2+4*i)}, v{HRD} offset:{512*i+4*LN_STR} ; @ht{i}")
    for i in range(3): a(f"@W - ht{i}\nbuffer_store_dwordx4 {Q(HD+4*i)}, v{HSA+i}, {WS}, {('s6','s6','s8')[i]} offen sc1 ; @hst")
    a(f"buffer_load_dword v226, v225, {RC}, 0 offen sc1 ; @nonce")
    stamp(a,2)
    if not OPT["kvx"]:
        a("@W kv\ns_barrier")
        a.extend(flat([kvrd(i,KRD,512*i,KRD,512*i+1152*11) for i in range(3)]))
        L=flat([kvc(i,i,HSA+i,('s7','s7','s9')[i]) for i in range(3)])
        a.extend(interleave(L,fill_kv,4,len(L)-10) if fill_kv else L)
    else: a.extend(fill_kv)
    stamp(a,3)
    a(f"@W nonce\nv_readfirstlane_b32 s{NONCE}, v226\ns_cmp_eq_u32 s{NONCE}, 0\ns_cbranch_scc1 L_nw_{tag}\nL_ng_{tag}:\nv_mov_b32 v{NV}, s{NONCE}\ns_barrier")
    COLD.append(f"L_nw_{tag}:\ns_mov_b32 s13, 0\nL_nl_{tag}:\nbuffer_load_dword v226, v225, {RC}, 0 offen sc1\ns_waitcnt vmcnt(0)\nv_readfirstlane_b32 s{NONCE}, v226\n"
                f"s_cmp_lg_u32 s{NONCE}, 0\ns_cbranch_scc1 L_ng_{tag}\ns_add_u32 s13, s13, 1\ns_cmp_lt_u32 s13, {OPT['spinmax']}\ns_cbranch_scc1 L_nl_{tag}\ns_branch L_ng_{tag}")
    a(f"buffer_store_dword v{NV}, v{FW}, {WS}, s12 offen sc1 ; @fl\ns_add_u32 s12, s12, {F1K-F1H}")
    stamp(a,4); stamp(a,1,"A")
    a.extend(fill_post)
    stamp(a,2,"A")
def kvflag(): return f"buffer_store_dword v{NV}, v{FW}, {WS}, s12 offen sc1 ; @fl"

def smalls():
    return srdl(60,S_B2,4096)+[f"s_cmp_lt_u32 s3, 2\ns_cselect_b32 s4, s{LA}, s{LB}","s_and_b32 s14, s3, 1","s_lshl_b32 s14, s14, 6","s_add_u32 s4, s4, s14","v_and_b32 v1, 15, v2","v_lshl_add_u32 v3, v1, 1, s4",
        f"s_and_b32 s14, s{KQ}, 1","s_lshl_b32 s14, s14, 5",f"buffer_load_ushort v{B2}, v3, {RB_}, 0 offen ; @eb",f"buffer_load_ushort v{B2+1}, v3, {RB_}, 0 offen offset:32 ; @eb",f"buffer_load_ushort v{B2+2}, v3, {RB_}, s14 offen ; @eb"
        ]+srdl(60,S_D,576*2)+[f"s_lshl_b32 s4, s{CH}, 1",f"v_mov_b32 v{DR}, 0",f"buffer_load_ushort v{DR}, v{DR}, {RB_}, s4 offen ; @hd"]
def dsetup():
    L=srdl(64,S_OUT,NB_SD)
    L+=[f"s_cmp_lt_u32 s3, 2\ns_cselect_b32 s4, s{LA}, s{LB}","s_lshr_b32 s4, s4, 1","s_and_b32 s5, s3, 1","s_lshl_b32 s5, s5, 5","s_add_u32 s4, s4, s5",
        "v_and_b32 v1, 15, v2","v_add_u32 v1, s4, v1",f"v_lshlrev_b32 v{STA}, 3, v1",f"s_and_b32 s9, s{KQ}, 1",
        f"s_sub_u32 s{CM}, 0, s9",f"s_sub_u32 s{CM+1}, 0, s9",
        "v_mul_u32_u24 v1, 1152, v1",
        f"s_and_b32 s6, s{M2}, 1",f"s_movk_i32 s7, {0x1753}",f"s_cmp_eq_u32 s6, 0\ns_cselect_b32 s7, {0x6420}, s7",f"s_lshl_b32 s8, s{KQ}, 2","s_lshr_b32 s7, s7, s8","s_and_b32 s7, s7, 15",f"s_mul_i32 s8, s{M2}, 9","s_add_u32 s7, s7, s8",
        "s_xor_b32 s6, s6, 1","s_lshl3_add_u32 s6, s6, s8",
        "s_lshl_b32 s8, s7, 5","v_bfe_u32 v3, v2, 4, 1","v_lshl_add_u32 v3, v3, 5, v1","v_lshrrev_b32 v31, 5, v2","v_lshl_add_u32 v3, v31, 4, v3",f"v_add_u32 v{XO}, s8, v3",
        "s_mul_i32 s8, s9, 18432","s_lshl_b32 s5, s6, 5","s_add_u32 s8, s8, s5","v_lshrrev_b32 v3, 4, v2","v_lshl_add_u32 v3, v3, 3, v1","v_add_u32 v3, s8, v3",f"s_lshr_b32 s8, s{KQ}, 1",f"v_mov_b32 v1, {OOB}",
        f"v_cmp_eq_u32 vcc, s8, v31\nv_cndmask_b32 v{XC}, v1, v3, vcc",
        f"s_lshl_b32 s{YS}, s7, 16",f"s_add_u32 s{YS}, s{YS}, {WS_YC}",f"s_lshl_b32 s{YS+1}, s6, 16",f"s_add_u32 s{YS+1}, s{YS+1}, {WS_YC}",
        f"v_mov_b32 v3, s{LA}",f"v_mov_b32 v31, s{LB}","v_and_b32 v1, 8, v2","v_cmp_lt_u32 vcc, 0, v1\nv_cndmask_b32 v3, v3, v31, vcc","v_and_b32 v1, 7, v2","v_lshl_add_u32 v3, v1, 4, v3",
        "v_lshrrev_b32 v1, 4, v2","v_lshl_add_u32 v3, v1, 12, v3","s_lshl_b32 s8, s3, 14",f"v_add_u32 v{YA}, s8, v3",
        "v_lshrrev_b32 v1, 2, v2","v_lshlrev_b32 v1, 8, v1","v_and_b32 v3, 3, v2","v_lshl_add_u32 v1, v3, 3, v1","s_lshl_b32 s8, s3, 6",f"v_add_u32 v{YR}, s8, v1",
        "v_min_u32 v1, 17, v2","v_lshrrev_b32 v3, 1, v1","v_and_b32 v1, 1, v1","v_lshlrev_b32 v3, 8, v3","v_lshl_add_u32 v3, v1, 2, v3",
        f"s_mul_i32 s8, s{KQ}, 18",f"s_lshr_b32 s5, s{M2}, 1","s_add_u32 s8, s8, s5","s_lshl_b32 s8, s8, 5",f"s_and_b32 s5, s{M2}, 1","s_add_u32 s8, s8, s5","s_lshl_b32 s8, s8, 2",f"s_add_u32 s8, s8, {FU}",f"v_add_u32 v{PA}, s8, v3"]
    return L
def tsetup():
    L=["v_and_b32 v1, 15, v2","v_lshrrev_b32 v31, 4, v2","v_lshlrev_b32 v3, 1, v1","v_sub_u32 v3, v3, v31","s_lshl_b32 s4, s3, 7",f"s_sub_u32 s4, {TI-512-64+33*16}, s4",f"v_lshl_add_u32 v{BBC}, v3, 4, s4"]
    return L
def absetup():
    return ["v_and_b32 v1, 15, v2","v_add_u32 v1, 1, v1","v_and_b32 v3, 1, v1",f"v_mul_u32_u24 v3, {TO-TE}, v3","v_lshrrev_b32 v1, 1, v1","v_lshl_add_u32 v3, v1, 2, v3","v_lshrrev_b32 v1, 4, v2","v_lshl_add_u32 v3, v1, 4, v3",
            "s_lshl_b32 s4, s3, 7",f"s_add_u32 s4, s4, {TE}",f"v_add_u32 v{AB}, s4, v3"]+[f"v_add_u32 v{AB+p}, 1024, v{AB+p-1}" for p in range(1,4)]
def tprep(t1=136,sa=12,sb=15):
    t0=147; B=t1+2
    pre=srdl(60,S_SSM,576*4096)+[f"s_lshl_b32 s{sa}, s{CH}, 12","s_lshl_b32 s8, s3, 10",f"s_add_u32 s{sa}, s{sa}, s8",f"s_lshr_b32 s9, s{CH}, 4"]+s_dtoff(sb,9,8)
    pre+=[f"s_and_b32 s8, s{CH}, 15",f"s_lshl4_add_u32 s{sb}, s8, s{sb}",f"s_mul_i32 s8, s3, {64*GS}",f"s_add_u32 s{sb}, s{sb}, s8",f"s_add_u32 s{sb}, s{sb}, {WS_KVT}",f"v_mul_u32_u24 v{t0}, {GS}, v2",f"s_lshr_b32 s10, s{LW}, 2"]
    d1=dma(f"s_add_u32 m0, s10, {TE+32}",[f"buffer_load_dwordx4 v{L16}, {RB_}, s{sa} offen lds ; @tf"])
    d2=dma(f"s_add_u32 m0, s10, {TI}",[f"buffer_load_dwordx4 v{t0}, {WS}, s{sb} offen sc1 lds ; @ti"])
    z=[f"v_mov_b32 v{t0+1}, 0",f"v_mov_b32 v{t0+2}, 0",f"v_lshlrev_b32 v{t0+3}, 3, v2",f"v_add_u32 v{t0+3}, {TI-512}, v{t0+3}",f"ds_write_b64 v{t0+3}, {P(t0+1)} ; @tz",
       f"v_bfe_u32 v{t0+3}, v2, 3, 1",f"v_mul_u32_u24 v{t0+3}, {TO-TE}, v{t0+3}",f"v_and_b32 v{t0+4}, 7, v2",f"v_lshl_add_u32 v{t0+3}, v{t0+4}, 2, v{t0+3}",f"v_add_u32 v{t0+3}, {TE}, v{t0+3}",f"ds_write_b32 v{t0+3}, v{t0+1} ; @tz"]
    b=[f"s_add_u32 s{sa}, s10, {TE+32}",f"v_add_u32 v{t1}, s{sa}, v{L16}",f"ds_read_b128 {Q(B)}, v{t1} ; @tb",f"ds_read_b32 v{B+4}, v{t1} offset:16 ; @tb",
       f"v_lshrrev_b32 v{t1+1}, 30, v{FW}",f"v_mul_u32_u24 v{t1+1}, 28, v{t1+1}",f"v_sub_u32 v{t1+1}, {TE+32}, v{t1+1}","@W hd",f"v_lshlrev_b32 v{DR}, 16, v{DR}","@W - tb",
       f"v_lshlrev_b32 v{B+5}, 16, v{B}",f"v_add_f32 v{B+5}, v{B+5}, v{DR}"]+[f"v_alignbit_b32 v{B+k}, v{B+k+1}, v{B+k}, 16" for k in range(4)]
    b+=[f"v_cvt_pk_bf16_f32 v{B+5}, v{B+5}, v{B+5}",f"ds_write_b128 v{t1}, {Q(B)} offset:{TO-TE} ; @tw",f"v_cmp_eq_u32 vcc, 0, v{FW}\nv_cndmask_b32 v{B+5}, 0, v{B+5}, vcc",
        f"ds_write_b16 v{t1+1}, v{B+5} ; @tw",f"ds_write_b16 v{t1+1}, v{B+5} offset:{TO-TE-2} ; @tw"]
    return pre,d1,d2,z,b
YF=PB+1
def yfsetup(oc=None):
    L=[f"v_mov_b32 v1, s{CH}"]+([f"s_add_u32 s4, s{oc}, 3","v_add_u32 v31, s4, v0","v_cmp_eq_u32 vcc, 0, v0\nv_cndmask_b32 v1, v31, v1, vcc"] if oc else [])
    L+=["v_and_b32 v31, 3, v1","v_lshrrev_b32 v1, 2, v1","v_lshlrev_b32 v1, 7, v1","v_lshl_add_u32 v1, v31, 2, v1",f"v_add_u32 v1, {FY}, v1",f"v_mov_b32 v31, {OOB}"]
    return L+[f"v_cmp_gt_u32 vcc, {5 if oc else 1}, v0\nv_cndmask_b32 v{YF}, v31, v1, vcc"]
class TConv:
    def __init__(self,op=128,acc=TA):
        self.op,self.acc=op,acc
        self.tm=[(0,c,q) for c in range(8) for q in range(c,8)]+[(1,c,q) for c in range(7,-1,-1) for q in range(c,8)]
        self.mf=[f"v_mfma_f32_16x16x32_bf16 {Q(acc+4*q)}, {Q(self.A(r,c),'a')}, {Q(self.B(r,q-c),'a')}, "+("0" if (r,c)==(0,0) else Q(acc+4*q)) for r,c,q in self.tm]
    def A(self,r,c): return self.op+32+4*(c if r==0 else 7-c)
    def B(self,r,c): return self.op+4*(c if r==0 else 7-c)
    def rdA(self,r,c):
        o=(64*r+512*(c&1))//4
        return [f"ds_read2_b32 {P(self.A(r,c)+2*h,'a')}, v{AB+(c>>1)} offset0:{o+2*h} offset1:{o+2*h+1} ; @tA{r}{c}" for h in range(2)]
    def rdB(self,r,c): return [f"ds_read_b128 {Q(self.B(r,c),'a')}, v{BBC} offset:{512*c+64*(1-r)} ; @tB{r}{c}"]
    def first(self): return flat([self.rdB(0,c) for c in range(8)])+flat([self.rdA(0,c) for c in range(8)])
    def second(self,S,t0):
        g=t0
        for j in range(8):
            g+=8-j; S.fit(self.rdA(1,7-j)+self.rdB(1,j),g,g+(6 if j<6 else 9))
        seen=set()
        for i,(r,c,q) in enumerate(self.tm):
            tg=[t for t in (f"tA{r}{c}",f"tB{r}{q-c}") if t not in seen]; seen.update(tg)
            if tg and (r,c)!=(0,0): S.add(t0+i-1,"@W - "+",".join(tg),front=True)
    def reduce(self):
        MW,MR,YO=BBC,AB,AB+1; TA=self.acc
        tr=["s_lshl_b32 s8, s3, 13",f"s_add_u32 s8, s8, {MBX}",f"v_add_u32 v{MW}, s8, v{L16}","s_lshl_b32 s8, s3, 11",f"s_add_u32 s8, s8, {MBX}",f"v_add_u32 v{MR}, s8, v{L16}",
            "v_and_b32 v1, 15, v2","v_lshlrev_b32 v1, 5, v1","v_lshrrev_b32 v31, 4, v2","v_lshl_add_u32 v1, v31, 3, v1","s_lshl_b32 s8, s3, 10",f"v_add_u32 v{YO}, s8, v1",f"s_lshl_b32 s15, s{CH}, 12",f"s_add_u32 s15, s15, {WS_YC}"]
        mw=[f"ds_write_b128 v{MW}, {Q(TA+4*q)} offset:{1024*q} ; @mw" for q in range(8)]
        mo=[0,8192,16384,24576]
        mr=[f"ds_read_b128 {Q(TA+16*h+4*k)}, v{MR} offset:{mo[k]+1024*h} ; @mr{h}" for h in range(2) for k in range(4)]
        red=[]
        for h in range(2):
            b=TA+16*h
            red+=[f"@W - mr{h}"]+[f"v_add_f32 v{b+8*k+r}, v{b+8*k+r}, v{b+8*k+4+r}" for k in range(2) for r in range(4)]+[f"v_add_f32 v{b+r}, v{b+r}, v{b+8+r}" for r in range(4)]
            red+=[f"v_cvt_pk_bf16_f32 v{b}, v{b}, v{b+1}",f"v_cvt_pk_bf16_f32 v{b+1}, v{b+2}, v{b+3}",f"buffer_store_dwordx2 {P(b)}, v{YO}, {WS}, s15 offen offset:{512*h} sc1 ; @ys"]
        return tr,mw,mr,red,f"buffer_store_dword v{NV}, v{YF}, {WS}, 0 offen sc1 ; @yf"

PATA,PATB=(0,3,6,2,4,7),(0,3,4,2,6,7)
def pk3(p): return sum(x<<(3*i) for i,x in enumerate(p))
def roleG_A(a):
    a(f"s_mul_i32 s7, s6, 21846\ns_lshr_b32 s7, s7, 16\ns_mul_i32 s8, s7, 3\ns_sub_u32 s9, s6, s8\ns_mul_i32 s8, s{KQ}, 9\ns_add_u32 s{N1}, s8, s7\ns_and_b32 s4, s5, 1\ns_lshl1_add_u32 s{M1}, s9, s4")
    srd(a,48,S_W1,2048*4608*2)
    if OPT["kvx"]: srd(a,52,XBS,4608*4096)
    if OPT["hrot"]: a("s_add_u32 s9, s9, s7\ns_mul_i32 s8, s9, 21846\ns_lshr_b32 s8, s8, 16\ns_mul_i32 s8, s8, 3\ns_sub_u32 s9, s9, s8")
    b=0; TS=8*GS
    a(f"s_mul_i32 s4, s4, {16*TS}")
    for W in ints("w1w"):
        a(f"s_mul_i32 s7, s9, {W*21846}\ns_lshr_b32 s7, s7, 16\ns_mul_i32 s7, s7, {TS}\ns_add_u32 s5, s4, {b*TS}\ns_add_u32 s{KT+b}, s7, s5\ns_add_u32 s8, s5, {W*TS}")
        for i in range(b+1,b+W): a(f"s_add_u32 s{KT+i}, s{KT+i-1}, {TS}\ns_cmp_eq_u32 s{KT+i}, s8\ns_cselect_b32 s{KT+i}, s5, s{KT+i}")
        b+=W
    assert b==16
    a("v_lshrrev_b32 v1, 4, v2\nv_and_b32 v3, 15, v2\nv_lshlrev_b32 v31, 1, v1\nv_xor_b32 v3, v3, v31\nv_mul_u32_u24 v1, 9216, v1\nv_lshl_add_u32 v1, v3, 4, v1")
    a(f"s_mul_i32 s7, s3, {16*9216}\ns_lshl_b32 s8, s{N1}, 8\ns_add_u32 s7, s7, s8\nv_add_u32 v{VW1}, s7, v1\nv_add_u32 v{VW1+1}, {36864-1024}, v{VW1}")
    a(f"v_xor_b32 v1, 128, v{VW1}\nv_add_u32 v{VW1+2}, {2*(36864-1024)}, v1\nv_add_u32 v{VW1+3}, {36864-1024}, v{VW1+2}")
    srd(a,60,S_B1,4608*2)
    bias=[f"v_lshrrev_b32 v1, 4, v2\nv_lshlrev_b32 v1, 3, v1\ns_lshl_b32 s4, s{N1}, 8\ns_lshl_b32 s14, s3, 6\ns_add_u32 s4, s4, s14\n"
          f"buffer_load_dwordx2 {P(BIAS)}, v1, {RB_}, s4 offen ; @bias\nbuffer_load_dwordx2 {P(BIAS+2)}, v1, {RB_}, s4 offen offset:32 ; @bias"]
    SA=list(range(NW+OPT['xs_']-1,NW-1,-1))+list(range(NW))
    def grp(t): d=wdma(1,t,SA[t]*SLOT); return ["\n".join(d[:3])]+d[3:]
    n0,n1=OPT["nA0"],OPT["nA1"]
    phaseA(a,"G",flat([grp(t) for t in range(n0)]),bias+["\n".join(smalls())]+flat([grp(t) for t in range(n0,n0+n1)]),[])
    a("L_segG:")
    need=rbsetup(RB,0)+[f"v_add_u32 v{RB+2}, 0x10000, v{RB}",f"v_add_u32 v{RB+3}, 0x10000, v{RB+1}",f"v_add_u32 v{RH}, {RING}, v{L16}",f"v_add_u32 v{RH+1}, {RING+3*RS}, v{L16}"]
    hp=[f"s_and_b32 s4, s{M1}, 1","s_lshl2_add_u32 s4, s4, s3","s_lshl_b32 s4, s4, 5",f"v_min_u32 v{PB}, 31, v2",f"v_add_u32 v{PB}, s4, v{PB}"]+flag4(PB,F1H)
    def pat(d,m): return [f"s_mov_b32 s{d}, {pk3(PATA)}",f"s_cmp_eq_u32 s{m}, 1\ns_cselect_b32 s{d}, {pk3(PATB)}, s{d}",f"s_cmp_eq_u32 s{m}, 4\ns_cselect_b32 s{d}, {pk3(PATB)}, s{d}"]
    vh=[f"s_xor_b32 s4, s{M1}, 1"]+pat(5,4)+["s_lshr_b32 s6, s3, 1","s_mul_i32 s6, s6, 3","s_lshr_b32 s5, s5, s6","s_and_b32 s7, s3, 1",f"s_mul_i32 s7, s7, {4*GS}",f"s_add_u32 s7, s7, {WS_HT}",
        "s_lshl_b32 s4, s4, 11","s_add_u32 s4, s4, s7"]
    for r in range(3): vh+=[f"s_bfe_u32 s8, s5, {(3<<16)|(6*r):#x}","s_lshl_b32 s8, s8, 8","s_add_u32 s8, s8, s4",f"s_sub_u32 s8, s8, {1024*r}",f"v_add_u32 v{VH+r}, s8, v{UL}"]
    vh+=pat(PKO,M1)+[f"s_lshl_b32 s4, s{M1}, 11",f"s_add_u32 s{GAM}, s4, s7"]
    bu=["@W bias"]+flat([unpack(BU+2*q,BIAS+q) for q in range(4)])
    slot={t:SA[t] for t in range(n0+n1)}; free=SA[n0+n1:]; nd=0; rest=vh+bu; seq=OPT["aseq"]; per=0 if "r" in seq else -(-len(rest)//seq.count("d")); kv=0; did=False; pend=[]; ns=0
    for q,c in enumerate(seq):
        if c in "dpkn234" and not did: a.extend(need+hp); did=True
        if c=="i": t=len(slot); slot[t]=free.pop(0); a.extend(wdma(1,t,slot[t]*SLOT))
        elif c in "GS": a.extend(warm(c))
        elif c=="p": a(poll_issue("ph",PB))
        elif c=="k": kv=1-OPT["kvx"]
        elif c=="r": a.extend(rest)
        elif c!="n":
            k=1 if c=="d" else int(c)
            if nd==0: stamp(a,3,"A")
            a(f"@W w1_{nd+k-1}"+(",kst" if kv else "")+" 0\ns_barrier")
            stamp(a,4+ns,"A")
            if kv: a(kvflag()); kv=0
            free+=pend; pend=[slot[t] for t in range(nd,nd+k) if slot[t]<NW]
            for t in range(nd,nd+k): a.extend(slot_rd(1,t,slot[t]))
            a.extend(rest[ns*per:(ns+1)*per]); nd+=k; ns+=1
    free+=pend
    assert nd>=OPT['xs_'] and all(x<NW for x in free)
    stamp(a,5); stamp(a,11,"A")
    a.extend(poll_check("ph",PB)); a("@W - 0\ns_barrier")
    stamp(a,6); stamp(a,12,"A")
    return slot,nd,free

def w1touch():
    b=ints("w1w")[0]
    L=["v_bfe_u32 v1, v2, 1, 4","v_mul_u32_u24 v1, 9216, v1","v_and_b32 v3, 1, v2","v_lshl_add_u32 v1, v3, 7, v1",f"s_mul_i32 s4, s3, {16*9216}",f"s_lshl_b32 s5, s{N1}, 8","s_add_u32 s4, s4, s5",
       f"s_mul_i32 s5, s{KT+b}, 6",f"s_mul_i32 s6, s{KT+b+1}, 6","v_mov_b32 v3, s5","v_mov_b32 v31, s6","v_cmp_lt_u32 vcc, 31, v2","v_cndmask_b32 v3, v3, v31, vcc","v_add_u32 v3, v3, v1",
       f"buffer_load_dword v255, v3, {RW1}, s4 offen ; @tw0",f"s_mul_i32 s5, s{KT+b+2}, 6","s_add_u32 s4, s4, s5",f"buffer_load_dword v255, v1, {RW1}, s4 offen ; @tw1"]
    return L+srdl(60,S_SSM,576*4096)+[f"s_lshl_b32 s4, s{CH}, 12","s_lshl_b32 s5, s3, 10","s_add_u32 s4, s4, s5",f"buffer_load_dword v255, v{L16}, {RB_}, s4 offen ; @tw2"]

HTV=14
def htsetup():
    return [f"s_mul_i32 s4, s{KQ}, 9",f"s_sub_u32 s4, s{N1}, s4","s_lshl2_add_u32 s4, s4, s3","s_mul_i32 s4, s4, 43","v_min_u32 v1, 42, v2","v_add_u32 v1, s4, v1","v_min_u32 v1, 1535, v1","v_mul_u32_u24 v3, 5462, v1","v_lshrrev_b32 v3, 16, v3",
            "v_mad_i32_i24 v1, v3, -12, v1","v_cmp_lt_u32 vcc, 1, v1\nv_cndmask_b32 v31, 0, 2, vcc","v_cmp_lt_u32 vcc, 7, v1\nv_cndmask_b32 v31, v31, 4, vcc","v_add_u32 v1, v1, v31",f"v_mul_u32_u24 v3, {GS}, v3",f"v_lshl_add_u32 v{HTV}, v1, 7, v3",
            f"s_and_b32 s4, s{M1}, 1",f"s_mul_i32 s4, s4, {128*GS}",f"s_lshl_b32 s5, s{M1}, 11","s_add_u32 s4, s4, s5",f"s_add_u32 s{TM}, s4, {WS_HT}"]
def htouch(own): return ([] if own else [f"s_xor_b32 s4, s{TM}, 2048"])+[f"buffer_load_dword v255, v{HTV}, {WS}, s{TM if own else 4} offen sc1 ; @ht"]
UT,USEL=14,15
def utsetup():
    return ["s_lshr_b32 s4, s2, 5","s_lshl2_add_u32 s4, s4, s3","s_mul_i32 s4, s4, 27","v_min_u32 v1, 26, v2","v_add_u32 v1, s4, v1","v_mul_u32_u24 v3, 10923, v1","v_lshrrev_b32 v3, 16, v3","v_mad_i32_i24 v1, v3, -6, v1",
            f"v_lshrrev_b32 v{USEL}, 1, v1",f"v_mul_u32_u24 v{USEL}, 5, v{USEL}","v_and_b32 v1, 1, v1","v_and_b32 v31, 7, v3","v_lshrrev_b32 v3, 3, v3",f"v_mul_u32_u24 v31, {GS}, v31","v_lshl_add_u32 v3, v3, 17, v31","v_lshl_add_u32 v3, v1, 7, v3",
            f"s_mul_i32 s4, s{KQ}, {18<<17}",f"s_lshr_b32 s5, s{M2}, 1","s_mul_i32 s5, s5, 6144","s_add_u32 s4, s4, s5",f"s_add_u32 s4, s4, {WS_U2}",f"v_add_u32 v{UT}, s4, v3"]

CUT=768
def rslot(e): return (e-34)%NH
def E(e): return int(round(24*e))
def BAR(e): return 24*e+11
def gelu(acc,T,O,lam,pre):
    L=list(pre)
    L+=[f"v_mul_f32 v{T+j}, v{acc+j}, v{acc+j}" for j in range(8)]
    L+=[f"v_fma_f32 v{T+j}, v{T+j}, s10, v3" for j in range(8)]
    L+=[f"v_mul_f32 v{T+j}, v{T+j}, v{acc+j}" for j in range(8)]
    L+=[f"v_exp_f32 v{T+j}, v{T+j}" for j in range(8)]
    L+=[f"v_add_f32 v{T+j}, 1.0, v{T+j}" for j in range(8)]
    L+=[f"v_rcp_f32 v{T+j}, v{T+j}" for j in range(8)]
    L+=[f"s_bfe_u32 s11, s{PKO}, {(3<<16)|(3*lam):#x}","s_lshl_b32 s11, s11, 8",f"s_add_u32 s11, s11, s{US}"]
    L+=[f"v_mul_f32 v{T+j}, v{acc+j}, v{T+j}" for j in range(8)]
    L+=[f"v_cvt_pk_bf16_f32 v{O+k}, v{T+2*k}, v{T+2*k+1}" for k in range(4)]
    return L+[f"buffer_store_dwordx4 {Q(O)}, v{UL}, {WS}, s11 offen sc1 ; @us{lam//3}"]
def mainstream(slot0,nd,free0,prev=None):
    units=[]
    def unit(e,pos,w,acc,init,par,wa): units.append((e,pos,w,acc,init,par,wa))
    OA=(AO1,AF); FA=(AF,AF+24)
    for p in range(16):
        for dt in range(6): unit(p,[3*(2*(dt&1)+ks)+(dt>>1) for ks in range(2)],("a",16*p),AF+8*dt,"bu" if p==0 else None,dt&1,True)
    for s in range(32):
        sg,p=divmod(s,16)
        for dl in range(3): unit(16+s//2,[3*(2*(s&1)+ks)+dl for ks in range(2)],("a",16*p),OA[sg]+8*dl,"0" if p==0 else None,(s+dl)&1,True)
    nB=len(units)
    DB=(112,120); DACC={3:DB[0],4:DB[1],5:DB[0],6:DB[1],7:DB[0],8:128,9:136}
    for t in range(18):
        for d in range(2): unit(35+t//3,[3*(2*d+ks)+t%3 for ks in range(2)],w2reg(t),AF+8*d,"0" if t==0 else None,d,False)
    for p in range(3,10):
        for t in range(18): unit(41+3*(p-3)+t//6,[3*(2*(t&1)+ks)+(t%6>>1) for ks in range(2)],w2reg(t),DACC[p],"0" if t==0 else None,t&1,False)
    def umf(u):
        e,pos,(k,w),acc,init,par,wa=units[u]; h=HF+8*(u%4); L=[]
        for f in range(2):
            ft=f^par; A=Q(acc+4*ft)
            for n,ks in enumerate((1,0) if f else (0,1)):
                x,y=Q(w+8*ks+4*ft,k),Q(h+4*ks)
                c=A if (n or init is None) else Q(BU+4*ft) if init=="bu" else "0"
                L.append(f"v_mfma_f32_16x16x32_bf16 {A}, "+(f"{x}, {y}" if wa else f"{y}, {x}")+f", {c}")
        return L
    T=TConv()
    mf=flat([umf(u) for u in range(nB)])+T.mf+flat([umf(u) for u in range(nB,len(units))])
    S=Strm(mf)
    def um(u): return 4*u+(72 if u>=nB else 0)
    def urd(u):
        e,pos=units[u][:2]; s=rslot(e)
        return [f"ds_read_b128 {Q(HF+8*(u%4)+4*ks)}, v{RH+(s>2)} offset:{(s-3*(s>2))*RS+pos[ks]*1024} ; @u{u}" for ks in range(2)]
    BW={e:[[],[]] for e in range(62)}
    ORD=[[(i,0) for i in o]+[((m+k)&3,1) for k in (1,2,3)] for m,o in enumerate(((1,2,3),(2,0,3),(0,1,3),(0,1,2)))]
    loc=[[b+o for b in bs for o in (0,1)]+[c] for bs,c in (((0,2,4,6),8),((3,5,7,1),0))]
    LOC=[sum((dtoff(9*e+g)>>8)<<(5*i) for i,g in enumerate(loc[e])) for e in range(2)]
    oc=[sum((2*i+o)<<(3*k) for k,(i,o) in enumerate(ORD[m]))|(2*m)<<18|(2*m+1)<<21 for m in range(4)]
    dc=[sum((((i^m)<<3)|(3*o+(i^m)-1))<<(5*k) for k,(i,o) in enumerate(ORD[m])) for m in range(4)]
    def sel4(d,c): return [f"s_mov_b32 s{d}, {c[0]}"]+[f"s_cmp_eq_u32 s{KQ}, {k}\ns_cselect_b32 s{d}, {c[k]}, s{d}" for k in (1,2,3)]
    tab1=[f"s_mov_b32 s6, {LOC[0]&0xffffffff}",f"s_mov_b32 s7, {LOC[0]>>32}",f"s_bitcmp1_b32 s{M2}, 0\ns_cselect_b32 s6, {LOC[1]&0xffffffff}, s6\ns_cselect_b32 s7, {LOC[1]>>32}, s7"]+sel4(IB,oc)
    tab1+=["s_and_b32 s12, s3, 1",f"s_mul_i32 s12, s12, {4*GS}",f"s_lshr_b32 s4, s{M2}, 1","s_mul_i32 s4, s4, 6144","s_add_u32 s12, s12, s4",f"s_add_u32 s12, s12, {WS_U2}"]
    def offp(p):
        if p==1: L=["s_lshr_b32 s4, s7, 8"]
        else: L=[f"s_bfe_u32 s4, s{IB}, {(3<<16)|(3*(p-2)):#x}","s_mul_i32 s4, s4, 5","s_lshr_b64 s[4:5], s[6:7], s4"]
        return L+["s_and_b32 s4, s4, 31","s_lshl_b32 s4, s4, 8",f"s_add_u32 s{OFF+p-1}, s4, s12"]
    tab1+=offp(1)+offp(2)+[f"s_cmp_lt_u32 s3, 2\ns_cselect_b32 s{OFF}, s{OFF}, s{OFF+1}"]
    tab2=flat([offp(p) for p in range(3,10)])+sel4(6,dc)
    for k in range(6): tab2+=[f"s_bfe_u32 s4, s6, {(2<<16)|(5*k+3):#x}","s_lshl_b32 s4, s4, 1","s_xor_b32 s4, s4, s2","s_lshl2_add_u32 s4, s4, s3",f"s_bfe_u32 s5, s6, {(3<<16)|(5*k):#x}","s_lshl3_add_u32 s4, s4, s5",f"s_lshl_b32 s4, s4, 10",f"s_add_u32 s{MB+k}, s4, {WS_XD}"]
    tab2+=["s_lshl2_add_u32 s4, s2, s3","s_lshl_b32 s4, s4, 13",f"s_add_u32 s{IB}, s4, {WS_XD}"]
    cur={0:"F",1:"F",2:"F"}
    def refill(x):
        L=[f"s_add_u32 m0, s{LR}, {rslot(x)*RS}"]; ins=[]
        for r in range(3):
            if x<16: key,so="F",KT+x
            elif x<32: key,so=f"O{(x-16)//8}",KT+2*(x%8)
            elif x<41: key,so="S",K2+3*(x-35)+r
            else: key,so=f"P{3+(x-41)//3}",K2+2*(3*((x-41)%3)+r)
            if cur[r]!=key:
                o=[q for q in range(3) if cur[q]==key]
                if o and key[0]!="O": ins.append(f"v_add_u32 v{VH+r}, {1024*(o[0]-r)}, v{VH+o[0]}")
                elif key[0]=="O": ins+=[f"s_bfe_u32 s14, s{PKO}, {(3<<16)|(9*int(key[1])+3*r):#x}","s_lshl_b32 s14, s14, 8",f"s_add_u32 s14, s14, s{GAM}"]+([f"s_sub_u32 s14, s14, {1024*r}"] if r else [])+[f"v_add_u32 v{VH+r}, s14, v{UL}"]
                else: assert r==0; ins.append(f"v_add_u32 v{VH}, s{OFF if key=='S' else OFF+int(key[1])-1}, v{UL}")
                cur[r]=key
            ins.append(f"buffer_load_dwordx4 v{VH+r}, {WS}, s{so} offen offset:{1024*r} sc1 lds ; @h{x}")
        return dma(L[0],ins)
    slot=dict(slot0); issued={t:-99 for t in slot}; free=[(x,0) for x in free0]; pro=[]; h0=0
    for c in OPT["pseq"]:
        if c=="h": pro.append(refill(h0)); h0+=1
        elif c=="t": pro.append(w1touch())
        elif c=="u": pro.append(htouch(0))
        else: t=len(slot); slot[t]=free.pop(0)[0]; issued[t]=-24; pro.append(wdma(1,t,slot[t]*SLOT))
    gate={}
    def poll(tag,v,pe,ce,off=0,pre=[],post=[]):
        S.fit(pre+[poll_issue(tag,v,off)],max(E(pe)-2*len(pre)-2,CUT if pe>=32 else 0),E(pe)+2)
        p=S.fit(poll_check(tag,v,off)+post,E(ce),E(ce)+3+2*len(post)); gate[tag]=p[1]+1; return p[-1]+1
    for u in range(3,len(units)):
        g=um(u)-12
        for ks,x in enumerate(urd(u)): S.add(g+2*ks,x,front=False)
    T.second(S,CUT)
    kq=poll("pk",PK_,OPT["kp"],OPT["kc"])
    assert OPT["u1c"]>=32 and OPT["u2p"]>=32
    poll("p1",PA,OPT["u1p"],OPT["u1c"],post=[f"v_add_u32 v{PA}, 9216, v{PA}"])
    poll("p2",PA,OPT["u2p"],OPT["u2c"])
    ypre=[f"s_sub_u32 s4, s{YS}, {WS_YC}","s_lshr_b32 s4, s4, 12",f"s_sub_u32 s5, s{YS+1}, {WS_YC+32*4096}","s_ashr_i32 s5, s5, 12",f"v_min_u32 v{PB}, 47, v2",f"v_add_u32 v{PB+1}, s5, v{PB}",f"v_add_u32 v{PB}, s4, v{PB}",
          f"v_cmp_lt_u32 vcc, 31, v2\nv_cndmask_b32 v{PB}, v{PB}, v{PB+1}, vcc"]+flag4(PB,FY)
    poll("py",PB,OPT["yp"],OPT["yc"],pre=ypre)
    tpre,td1,td2,tz,tb=tprep()
    ydma=[dma(f"s_lshr_b32 m0, s{LW}, 2",[f"buffer_load_dwordx4 v{YA}, {WS}, s{YS+1} offen sc1 lds ; @ey0"]),
          dma(f"s_add_u32 m0, m0, 4096",[f"buffer_load_dwordx4 v{YA}, {WS}, s{YS} offen sc1 lds ; @ey1"]),
          dma(f"s_add_u32 m0, m0, 4096 ",[f"s_add_u32 s14, s{YS}, 65536",f"buffer_load_dwordx4 v{YA}, {WS}, s14 offen sc1 lds ; @ey2"])]
    fixed=[(kq,td2,256,48),(kq,td1,32,48),(gate["py"],flat(ydma),96,36)]
    def rgate(x):
        g=24*(x-NH+1)+12 if x>=NH else 0
        if 35<=x: g=max(g,gate["p1"])
        if x==34+NH: g=max(g,24*36+12)
        if x>=44: g=max(g,gate["p2"])
        return g
    def regfree(W):
        return 0 if W<16+NV2 else um(96+48+3*(W-16-NV2 if W<30 else W-18)+2)+4
    w2e=flts("w2e"); c1=set(); b=0
    for W in ints("w1w")[:1 if "t" in OPT["pseq"] else 9]: c1.update(range(b,b+(W+2)//3)); b+=W
    b=0; cw=set()
    for W in ints("xw" if OPT["xw"] else "w2w"): cw.update(range(b,b+(W+3)//4)); b+=W
    b=16
    for W in ints("w2w"):
        if OPT["cm"]: c1.update(range(b,b+(W+3)//4))
        b+=W
    def iscold(W): return W in c1 or 16<=W<16+OPT["ncold"]
    LH,LU,LM,LC,LS,LW_=[OPT[k] for k in ("Lh","Lu","Lm","Lc","Ls","Lw")]
    def cls(tg,l):
        m=re.fullmatch(r"w(\d)_(\d+)",tg)
        if m and m.group(1)=="2" and OPT["w2p"] and OPT["ncold"]<=int(m.group(2))<=18-3*OPT["w2p"]: return 32,OPT["Lp"]
        if m: return 32,(LC if iscold(int(m.group(2))+16*(m.group(1)=="2")) else LW_)
        if re.fullmatch(r"h\d+",tg): return 32,(LH if int(tg[1:])<32 else LU)
        if "store" in l: return (32 if "x4" in l else 16 if "x2" in l else 2),-LS
        return {"ti":(256,LM),"tf":(32,LW_ if "t" in OPT["pseq"] else LC),"ht":(172,LM),"ut0":(108,LM),"ut1":(108,LM),"ut2":(108,LM),"tw0":(256,LC),"tw1":(128,LC),"tw2":(32,LC),"eo0":(64,LC),"eo1":(64,LC),"ex":(32,LC),"es":(8,LM),"eb":(4,LC),"hd":(1,LC),"pk":(64,LM),"py":(48,LM),"p1":(36,LM),"p2":(36,LM),"p3":(36,LM)}.get(tg,(32,LM))
    def dl(W): return W-2 if W<16 else (um(nB+2*(W-16))-35)//24
    def wish(W): return 9999 if W<16 else E(w2e[W-16])
    nI=len(slot); nD=nd; rx=[x for x in range(h0,62) if not 32<=x<35]
    comp={}; drains={}; last={}; pipe=Pipe(OPT["cap"],2.2); now=0; grp=[]; cur_=None; done={}
    fx,cost=prev if prev else ([[] for _ in mf],[18]*len(mf))
    for l in flat(pro):
        if l.startswith("buffer"): tg=l.split("@")[1]; now,done[tg]=pipe.put(now,*cls(tg,l)); now+=20
    now=max(now,done["h0"])
    for W in slot: comp[W]=done.get(f"w1_{W}",0)
    def ahead(a,b): return sum(cost[max(a,0):max(b,0)])
    for t in range(len(mf)):
        e=t//24
        if t%24==11:
            k=0
            while nD<34 and nD in comp and k<(2 if OPT['d2']<=e!=31 else 1) and (comp[nD]<=now+OPT["dw"] or e>=dl(nD)) and regfree(nD)<=24*e+(14 if e==31 else 24):
                assert e<=dl(nD), (nD,e)
                drains.setdefault(e,[]).append(nD); free.append((slot[nD],24*(e+1)+12)); now=max(now,comp[nD]); nD+=1; k+=1
            now=max(now,done.get(f"h{e+1}",0))
        for kind,tg,n,lat in fx[t]:
            if kind=="w": now=max(now,done.get(tg,0))
            else: now,done[tg]=pipe.put(now,n,lat)
        if t&1 and t%24!=11:
            res=sum(n for g in range(t,min(t+OPT["rw"],len(mf))) for kind,tg,n,lat in fx[g] if kind=="v")
            room=OPT["cap"]-pipe.out(now)-res
            c=[]
            if rx and rgate(rx[0])<=t: c.append(("r",BAR(rx[0]-1)-OPT["fr"],BAR(rx[0]-1)-OPT["hold"]))
            for f in fixed:
                if f[0]<=t: c.append(("f",f[0]+f[3],f[0],f)); break
            if nI<34 and free and free[0][1]<=t and (nI<16 or t>=24*OPT["w20"]): c.append(("w",BAR(dl(nI))-OPT["fw"],min(BAR(dl(nI))-OPT["hw" if nI>=16 else "hw1"]-(OPT["hc"] if iscold(nI) else 0),wish(nI))))
            must=min([y[1] for y in c]+[99999])<=t+(2*len(grp) if grp else 0)
            if not grp and c and not t<CUT<=t+10 and (room>=OPT["mr"] or must):
                x=min(c,key=lambda y:y[1] if must else y[2])
                if x[0]=="r": cur_=("r",rx.pop(0)); grp=list(refill(cur_[1]))
                elif x[0]=="f": grp=list(x[3][1]); fixed.remove(x[3]); cur_=grp[-1].split("@")[1]
                else: cur_=nI; slot[nI]=free.pop(0)[0]; grp=list(wdma(1,nI,slot[nI]*SLOT) if nI<16 else wdma(2,nI-16,slot[nI]*SLOT)); nI+=1
                issued[cur_]=t; lim=x[1]
            if grp and (room>=32 or must or t>=lim or t<CUT<=t+10):
                k=[i for i,l in enumerate(grp) if l.startswith("buffer")][0]; l=grp[k]; tg=l.split("@")[1]
                if k: S.fit(grp[:k],t-1,t)
                S.add(t,l,front=False); grp=grp[k+1:]; now,done[tg]=pipe.put(now,*cls(tg,l)); last[cur_]=t
                if not grp and isinstance(cur_,int): comp[cur_]=done[tg]
        now+=cost[t]
    assert not rx and not fixed and nD==34
    for x in list(range(1,32))+list(range(35,62)):
        if ("r",x) in issued: assert last[("r",x)]<BAR(x-1), ("refill too late",x)
    LOG("; w issue",[round(issued[W]/24,1) for W in range(len(slot0),34)],"drain",{W:e for e,l in drains.items() for W in l},file=sys.stderr)
    LOG("; refill lead",[round(x-0.5-issued[("r",x)]/24,1) for x in list(range(h0,32))+list(range(35,62))],file=sys.stderr)
    for e,l in drains.items():
        for W in l:
            k,tt=(1,W) if W<16 else (2,W-16)
            S.fit(slot_rd(k,tt,slot[W]),max(24*e+12,regfree(W)),CUT-1 if e==31 else 24*e+35); BW[e][0].append(f"w{k}_{tt}"); BW[e+1][1].append(f"r{k}_{tt}")
            if k==2: assert 24*e+35<=um(nB+2*tt)
    lastw1=max(last.get(W,0) for W in range(16))+1; lastw2=last[33]+1; lastdr=max(drains)+2
    def timed(pre,x,t,lo):
        t=max(E(t),lo+(len(pre)+1)//2)
        if pre: S.fit(pre,max(lo,t-3*len(pre)),t)
        return S.fit([x],t,t+3)[0]+1
    bs=flts("bs"); bl=flts("bl"); g=gp=E(16)+5
    for l in range(6):
        A=AF+8*l; t=max(min(E(bs[l]),E(bl[0])-5*(5-l)-1),gp+4); gp=S.fit(pack(A,A),max(gp,t-24),t)[-1]+1
        g=timed([f"s_add_u32 s{XBS}, s{XBS}, 3072"] if l==3 else [],f"buffer_store_dwordx4 {Q(A)}, v{L16}, {WS}, s{XBS} offen offset:{1024*(l%3)} sc1 ; @bs",bs[l],max(g,gp))
    assert gp<=E(bl[0]) and g<E(24)-2
    RV=[136,140,AF+44]; bc=flts("bc")
    S.fit([f"s_add_u32 s9, s{XBR}, 3072"],E(17),E(19))
    for sg in range(2):
        ld=[f"buffer_load_dwordx4 {Q(RV[d])}, v{L16}, {WS}, s{(XBR,9)[sg]} offen offset:{1024*d} sc1 ; @bl{sg}" for d in range(3)]
        S.fit(ld,E(bl[sg]),E(bl[sg])+8)
        g=S.fit(tagged(f"bl{sg}",ld,RV)+[madd(OA[sg]+8*d+4*f,RV[d],f,0) for d in range(3) for f in range(2)],E(bc[sg]),min(E(bc[sg])+26,CUT-4))[-1]+1
        if sg==0: ga=g
    assert bl[0]>=19 and bl[0]+0.4<bc[0] and ga+2<E(bl[1]) and bl[1]+0.4<bc[1]
    c=0.7978845608028654*2*1.4426950408889634
    GT=AF+24
    def gblock(A,H,K,n,lam):
        L=[f"v_mov_b32 v{K}, {f2h(-c)}"]+[f"v_pk_mul_f32 {P(H+2*j)}, {P(A+2*j)}, {P(A+2*j)}" for j in range(4*n)]
        L+=[f"v_pk_fma_f32 {P(H+2*j)}, {P(H+2*j)}, s[10:11], {P(K)} op_sel_hi:[1,0,0]" for j in range(4*n)]+[f"v_pk_mul_f32 {P(H+2*j)}, {P(H+2*j)}, {P(A+2*j)}" for j in range(4*n)]
        L+=[f"v_exp_f32 v{H+j}, v{H+j}" for j in range(8*n)]+[f"v_pk_add_f32 {P(H+2*j)}, {P(H+2*j)}, 1.0 op_sel_hi:[1,0]" for j in range(4*n)]; st=[]
        for d in range(n):
            L+=[f"v_rcp_f32 v{H+8*d+j}, v{H+8*d+j}" for j in range(8)]+[f"v_pk_mul_f32 {P(H+8*d+2*j)}, {P(A+8*d+2*j)}, {P(H+8*d+2*j)}" for j in range(4)]+[f"v_cvt_pk_bf16_f32 v{A+8*d+k}, v{H+8*d+2*k}, v{H+8*d+2*k+1}" for k in range(4)]
            x=[f"s_bfe_u32 s11, s{PKO}, {(3<<16)|(3*(lam+d)):#x}","s_lshl_b32 s11, s11, 8",f"s_add_u32 s11, s11, s{US}",f"buffer_store_dwordx4 {Q(A+8*d)}, v{UL}, {WS}, s11 offen sc1 ; @us{lam//3}"]
            if (lam and not OPT["ue"]) or (not lam and (not OPT["um"] or n==3)): L+=x
            else: st+=x
        return L,st
    gx=OPT["gx"]; g1,st_=gblock(AO1,GT,136,gx,0)
    gl=[gelu(AO1+8*d,GT,GT+8+4*d,d,[]) for d in range(gx,3)]
    if OPT["um"] and gl:
        for x in gl[:-1]:
            k=[i for i,y in enumerate(x) if y.startswith("s_bfe")][0]; st_+=x[k:k+3]+[x.pop()]; del x[k:k+3]
        gl[-1]+=st_
    g2x=OPT['g2x']; g2,st2=gblock(AF,HF,HF+24,g2x,3); g2h=[gelu(AF+8*d,GT,GT+8+4*d,3+d,[]) for d in range(g2x,3)]
    for i in range(8):
        lo=max(last.get(("r",2*i+1),0),last.get(2*i+1,0))+1; assert lo<issued[("r",16+i)]
        S.fit([f"s_cmp_lt_u32 s3, 2\ns_cselect_b32 s{KT+2*i}, s{KT+2*i}, s{KT+2*i+1}"],lo,issued[("r",16+i)])
    tbe=OPT["tb"]; assert last["tf"]<BAR(tbe) and lastw1<E(19)
    S.fit(tz,kq,BAR(tbe))
    BW[tbe][0]+=["tf","ti"]; BW[tbe][1].append("tz"); assert BAR(tbe+1)<=E(bl[0])
    S.fit(tb,24*tbe+12,BAR(tbe+1)); BW[tbe+1][1].append("tw")
    S.fit(tsetup()+absetup()+idsetup()+[f"s_mov_b32 s10, {f2h(-c*0.044715)}",f"v_mov_b32 v3, {f2h(-c)}"],max(lastw1,E(17),BAR(tbe+1)),E(bc[0])-2)
    fr=T.first(); S.fit(fr[:8],E(30)-12,E(30)+8); S.fit(fr[8:],E(30)+8,CUT-2)
    BW[34][1]+=["tA10","tB17"]
    tr,mw,mr,red,yf=T.reduce()
    S.fit(tr[:3],24*34+2,E(35)-3); S.fit(tr[3:],E(35)-3,E(35)+10)
    S.fit(mw,E(35)-2,BAR(35)); BW[35][1].append("mw")
    S.fit(mr,24*35+12,E(36)+6); BW[36][1].append("mr1")
    fu=ints("fu")
    g=max(um(144)+6,ga+4)
    if gx:
        nb=OPT["gn"]; job=S.job=S.job+1
        for k in range(nb): S.add(g+2*k,"\n".join(g1[k*len(g1)//nb:(k+1)*len(g1)//nb]),front=False,job=job)
        g+=2*nb; assert g<E(bl[1])
    S.fit(flat(gl),g,E(OPT["g1e"])); S.add(CUT-1,"\n".join(g2),front=False)
    if st2: assert 32<=OPT["ue"]<=34.2 and not g2h; S.fit(st2,E(OPT["ue"]),min(E(OPT["ue"])+14,BAR(fu[1])))
    if g2h:
        p=S.fit(flat(g2h),CUT+2,E(OPT["g2e"])); assert OPT["g2e"]<=min(fu[1],40) and (g2x==2 or p[len(g2h[0])-1]<E(35)-4) and g2x
    assert OPT["g1e"]<=min(fu[0],31.9) and fu[0]<fu[1] and 32<=fu[1]
    for s in range(2):
        BW[fu[s]][0].append(f"us{s}")
        S.fit([f"buffer_store_dword v{NV}, v{FW}, {WS}, s{FUS} offen sc1 ; @uf"]+([f"s_add_u32 s{FUS}, s{FUS}, 9216"] if s<1 else []),24*fu[s]+12,24*fu[s]+16)
    S.fit(red,E(36)+8,E(37.6))
    fy=OPT["fy"]; BW[fy][0].append("ys"); assert fy>=38
    S.fit([yf],24*fy+12,24*fy+16); assert 24*fy+16<E(OPT['yp'])-30
    g=last[("r",31)]+1; S.fit(tab1+tab2,g,CUT-2)
    for i in range(3):
        lo=max(last[("r",36+2*i)]+1,last[16+6*i+5]+1,CUT); hi=issued[("r",41+i)]; assert lo<hi,(lo,hi)
        S.fit([f"s_cmp_lt_u32 s3, 2\ns_cselect_b32 s{K2+2*k}, s{K2+2*k}, s{K2+2*k+1}" for k in range(3*i,3*i+3)],lo,hi)
    CO=128; CF=31; xs=flts("xs"); H0=AF+12
    def send(d,so,k,lo,pre): return timed(pre,f"buffer_store_dwordx4 {Q(d)}, v{L16}, {WS}, s{so} offen sc1 ; @xs",xs[k],lo)
    cs=send(AF,8,0,E(41)+5,[f"v_cndmask_b32 v{CO+k}, v{AF+k}, v{AF+4+k}, s[{CM}:{CM+1}]" for k in range(4)]+[f"s_add_u32 s8, s{IB}, 6144"]+pack(AF,AF))
    g=S.fit(pack(AF+8,AF+8),E(41)+5,E(42))[-1]+1; xs_=send(AF+8,MB,1,g,[])
    for p in range(3,8):
        e=41+3*(p-2); A=DACC[p]; d=H0 if p in (3,5) else A
        g=S.fit(pack(d,A),E(e)+5,min(E(e)+24,max(E(xs[p-1]),E(e)+10)))[-1]+1; g=send(d,MB+p-2,p-1,g,[])
        assert g<{3:E(50)+5,4:E(50),5:E(59),6:E(OPT["o1c"]),7:E(OPT["o2c"])}[p]
    S.fit([f"v_accvgpr_write_b32 a{128+k}, v{SB+k}" for k in range(6)],E(35)+2,E(37.9))
    XR=8; XRC=4; xl=flts("xl"); SA=[ST,ST+2,ST+4]
    assert E(min(xl[:2]))>=max(24*lastdr,lastw2) and xl[2]>=37.7 and 38<=xl[3] and xl[3]+1<min(xl[:2])
    S.fit([f"s_and_b32 s12, s{KQ}, 1","s_lshl_b32 s12, s12, 7",f"s_add_u32 s12, s12, {WS_STATS}",f"buffer_load_dwordx2 {P(ST+4)}, v{STA}, {WS}, s12 offen sc1 ; @es",f"s_mov_b32 s12, {WS_STATS}",
           f"buffer_load_dwordx2 {P(ST+2)}, v{STA}, {WS}, s12 offen offset:128 sc1 ; @es",f"buffer_load_dwordx2 {P(ST)}, v{STA}, {WS}, s12 offen sc1 ; @es","s_movk_i32 s12, 18432"],E(xl[3]),E(xl[3]+1))
    for t,x in zip(xl,(f"buffer_load_dwordx4 {Q(XR)}, v{XO}, {RA}, 0 offen ; @eo0",f"buffer_load_dwordx4 {Q(XR+4)}, v{XO}, {RA}, s12 offen ; @eo1",f"buffer_load_dwordx2 {P(XRC)}, v{XC}, {RA}, 0 offen ; @ex")): S.fit([x],E(t),E(t)+3)
    S.fit([f"s_and_b32 s6, s{KQ}, 1","s_lshl_b32 s7, s6, 5",f"v_add_u32 v{CF}, s7, v{YR}",f"s_sub_u32 s7, s{IB}, {WS_XD}"]
           +flat([[f"s_xor_b32 s{r}, s7, {(2*d)<<15}",f"s_add_u32 s{r}, s{r}, {WS_XD+6144}"] for d,r in ((1,4),(2,5),(3,7))]),E(OPT["yp"])+3,E(OPT["cl"])-1)
    yb=OPT["yb"]; BW[yb][0].append("ey2"); assert last["ey2"]<BAR(yb) and gate["py"]>=24*lastdr
    def silu(g,t,n,x,k):
        return ([f"v_mul_f32 v{t+j}, s10, v{g+j}" for j in range(k)]+[f"v_exp_f32 v{t+j}, v{t+j}" for j in range(k)]+[f"v_mul_f32 v{n+j}, v{n+j}, v{g+j}" for j in range(k)]
                +[f"v_add_f32 v{t+j}, 1.0, v{t+j}" for j in range(k)]+[f"v_rcp_f32 v{t+j}, v{t+j}" for j in range(k)]+[f"v_fma_f32 v{n+j}, v{n+j}, v{t+j}, v{x+j}" for j in range(k)])
    XF,NN,YW=AF+16,AF+32,AF
    op=["@W eb,es"]+[f"v_lshlrev_b32 v{B2+k}, 16, v{B2+k}" for k in range(3)]+[f"v_mul_f32 v{s}, v{s}, v{s+1}" for s in SA]+[f"s_mov_b32 s10, {f2h(-1.4426950408889634)}"]
    for nt in range(2):
        op+=[f"@W eo{nt}",f"v_permlane16_swap_b32 v{XR+4*nt}, v{XR+4*nt+2}",f"v_permlane16_swap_b32 v{XR+4*nt+1}, v{XR+4*nt+3}"]+flat([unpack(XF+8*o+4*nt+2*k,XR+4*nt+2*o+k) for o in range(2) for k in range(2)])
        op+=[f"v_fma_f32 v{NN+8*o+4*nt+j}, v{XF+8*o+4*nt+j}, v{SA[nt]+1}, -v{SA[nt]}" for o in range(2) for j in range(4)]
    oy=[f"ds_read_b64_tr_b16 {P(YW+4*o+2*nt)}, v{YR} offset:{4096*(1+o)+32*nt} ; @oy" for o in range(2) for nt in range(2)]+["@W - oy"]
    for q in range(4): oy+=unpack(XR,YW+2*q)+unpack(XR+2,YW+2*q+1)+[f"v_mul_f32 v{NN+4*q+j}, v{NN+4*q+j}, v{XR+j}" for j in range(4)]
    g0=max(24*yb+12,cs,E(OPT["op0"])+30); assert OPT["op0"]>=36 and xs_<E(OPT["o1l"])
    S.fit(op,E(OPT["op0"]),g0); S.fit(oy,g0,E(OPT["cc"]))
    RCV=CO+4; YC_=6; TC=XR; of=OPT["ostore"]
    ld=[f"buffer_load_dwordx4 {Q(RCV+4*d)}, v{L16}, {WS}, s{r} offen sc1 ; @cl" for d,r in enumerate((4,5,7))]
    S.fit(ld,E(OPT["cl"]),E(OPT["cl"])+8)
    ce=[f"ds_read_b64_tr_b16 {P(YC_)}, v{CF} ; @cy"]+[f"v_add_f32 v{CO+j}, v{CO+j}, v{B2+2}" for j in range(4)]+tagged("cl",ld,[RCV,RCV+4,RCV+8])
    ce+=[f"v_cndmask_b32 v{RCV+4*d+k}, v{RCV+4*d+k}, v{RCV+4*d+2+k}, s[{CM}:{CM+1}]" for d in range(3) for k in range(2)]+[madd(CO,RCV+4*d,0,1) for d in range(3)]+["@W ex"]+unpack(RCV,XRC)+unpack(RCV+2,XRC+1)
    ce+=[f"v_fma_f32 v{TC+4+j}, v{RCV+j}, v{ST+5}, -v{ST+4}" for j in range(4)]+["@W - cy"]+unpack(TC,YC_)+unpack(TC+2,YC_+1)+[f"v_mul_f32 v{TC+4+j}, v{TC+4+j}, v{TC+j}" for j in range(4)]
    ce+=silu(CO,TC,TC+4,RCV,4)+[f"v_cvt_pk_bf16_f32 v{CO}, v{TC+4}, v{TC+5}",f"v_cvt_pk_bf16_f32 v{CO+1}, v{TC+6}, v{TC+7}",f"buffer_store_dwordx2 {P(CO)}, v{XC}, {RC}, 0 offen {of} ; @os"]
    assert OPT["ce"]<=55.8; S.fit(ce,E(OPT["cc"]),E(OPT["ce"]))
    RO=AF; SM=(DB[1],DB[0]); n=len(mf); OP=[XF,XF+4]
    def orcv(o):
        ld=[f"buffer_load_dwordx4 {Q(RO+4*d)}, v{L16}, {WS}, s6 offen offset:{1024*d} sc1 ; @ol{o}" for d in range(3)]; sm=SM[o]
        L=tagged(f"ol{o}",ld,[RO,RO+4,RO+8])+[madd(DACC[8+o]+4*nt,RO+4*d,nt,1) for d in range(3) for nt in range(2)]
        return [f"s_add_u32 s6, s{IB}, {3072*o}"]+ld,L
    def ofin(o):
        A=DACC[8+o]; sm=SM[o]
        return ([f"v_add_f32 v{A+j}, v{A+j}, v{B2+j//4}" for j in range(8)]+silu(A,sm,NN+8*o,XF+8*o,8)
                +[f"v_cvt_pk_bf16_f32 v{OP[nt]+2*o+k}, v{NN+8*o+4*nt+2*k}, v{NN+8*o+4*nt+2*k+1}" for nt in range(2) for k in range(2)])
    l0,s0=orcv(0); l1,s1=orcv(1); assert OPT["o1l"]>=OPT["cc"] and OPT["o1c"]>=max(OPT["ce"],55.9) and OPT["o2l"]>=59
    S.fit(l0,E(OPT["o1l"]),E(OPT["o1l"])+8); S.fit(s0,E(OPT["o1c"]),min(E(OPT["o1c"])+30,E(59)-1)); S.fit(l1,E(OPT["o2l"]),E(OPT["o2l"])+8)
    S.fit(ofin(0),E(59)+6,E(OPT["o2c"]) if OPT["o2c"]<61.5 else n-4)
    tail=[]
    if OPT["o2c"]<61.5: S.fit(s1,E(OPT["o2c"]),n-1)
    else: tail=s1
    tail+=ofin(1)
    for nt in range(2): tail+=[f"v_permlane16_swap_b32 v{OP[nt]}, v{OP[nt]+2}",f"v_permlane16_swap_b32 v{OP[nt]+1}, v{OP[nt]+3}",f"buffer_store_dwordx4 {Q(OP[nt])}, v{XO}, {RC}, {('0','s12')[nt]} offen {of}"]
    tid=[f"s_mul_i32 s4, s{N1}, 6",f"s_add_u32 s4, s4, s{M1}"]
    early=tid+["s_lshl2_add_u32 s5, s4, s3","s_xor_b32 s6, s5, 4",f"s_mul_i32 s{XBR}, s5, 6144",f"s_add_u32 s{XBR}, s{XBR}, {WS_XB}",f"s_mul_i32 s{XBS}, s6, 6144",f"s_add_u32 s{XBS}, s{XBS}, {WS_XB}",
               f"s_lshl_b32 s4, s{N1}, 1","s_lshr_b32 s5, s3, 1","s_add_u32 s4, s4, s5","s_lshl_b32 s4, s4, 17","s_and_b32 s5, s3, 1",f"s_mul_i32 s5, s5, {4*GS}","s_add_u32 s4, s4, s5",f"s_lshl_b32 s5, s{M1}, 11","s_add_u32 s4, s4, s5",f"s_add_u32 s{US}, s4, {WS_U2}",
               f"s_cmp_ge_u32 s{M1}, 3\ns_cselect_b32 s5, 3, 0\ns_cselect_b32 s4, 1, 0",f"s_sub_u32 s5, s{M1}, s5",f"s_lshl1_add_u32 s4, s{N1}, s4","s_lshl_b32 s4, s4, 7","s_lshl2_add_u32 s4, s5, s4",f"s_add_u32 s{FUS}, s4, {FU}"]
    e1=w2setup()+kvpoll_addr(PK_)+tpre; e2=early+dsetup()+yfsetup()+tagsetup(); g1=min(E(OPT["kp"])-3,issued[16]-2,E(9))
    if OPT["clump"]:
        ne=OPT["jen"]*OPT["clump"]; early=e1+e2; nc=len(early)*OPT["cfrac"]//100
        for k in range(ne): S.add(int((k+0.5)*24/OPT["clump"])&~1,"\n".join(early[k*nc//ne:(k+1)*nc//ne]),front=False)
        e2=early[max(nc,len(e1)):]; e1=early[nc:len(e1)]; g0=24*OPT["jen"]; assert g0<=g1
    else: g0=0
    S.fit(e1,g0,g1); p=S.fit(e2,g1 if e1 else g0,E(16)+4)
    for u in range(1,len(units)):
        g=um(u)-1
        if g%24==11 and g//24<61: BW[g//24][1].append(f"u{u}")
        else: S.add(g,f"@W - u{u}",front=True)
    S.add(CUT-1,"@W - tB07,tA00",front=True)
    for e in range(61):
        vt,lt=BW[e]
        if not 32<=e+1<35: vt=vt+[f"h{e+1}"]
        S.add(BAR(e),f"@W {','.join(vt) or '-'} {','.join(lt) or '-'}\ns_barrier",front=True)
    LOG("; overload per epoch"," ".join(str(S.over(24*e,24*e+24)) for e in range(62)),"total",S.over(),file=sys.stderr)
    S.check()
    T_,st=simulate(S,cls,flat(pro),cap=OPT['cap'])
    LOG("; model cycles per epoch"," ".join(str(int(T_[24*e+24]-T_[24*e])) for e in range(62)),"total",int(T_[-1]),file=sys.stderr)
    if OPT.get("v"): LOG("; stalls"," ".join(f"{g/24:.1f}:{r}:{int(d)}" for g,r,d in st if d>40),file=sys.stderr)
    dr=[W for e,l in drains.items() if e<32 for W in l]
    state=dict(tabs=tab1+tab2,inregs=[W-16 for W in range(16,34) if W in dr],inslot={W-16:slot[W] for W in range(16,34) if issued[W]<CUT and W not in dr},first=T.first(),cold=cw)
    for W in range(16,34): assert not (issued[W]<CUT<=last[W])
    fx=[[] for _ in mf]
    for g,L in enumerate(S.g):
        for l in L:
            if l.startswith("buffer") and " lds " not in l: tg=l.split("@")[1]; fx[g].append(("v",tg)+cls(tg,l))
            elif l.startswith("@W") and g%24!=11: fx[g]+=[("w",tg,0,0) for tg in l.split()[1].split(",") if tg!="-"]
            elif l.startswith("@W"): fx[g]+=[("w",tg,0,0) for tg in l.split()[1].split(",") if not re.fullmatch(r"-|h\d+|w\d_\d+",tg)]
    state["prev"]=(fx,[1.07*S.cost(g) for g in range(len(mf))]); state["model"]=T_[-1]
    return S,pro,flat([urd(u) for u in range(3)]),tail,state

def emit_main(aB,aS,S,pro,rd0,tail):
    for g in pro: aB.extend(g)
    aB("@W h0\ns_barrier"); aB.extend(rd0); aB("@W - u0"); stamp(aB,13,"A")
    def hook(a,i):
        e,r=divmod(i,24)
        if r: return
        if e in (16,32,35,41,53): stamp(a,{16:7,32:8,35:9,41:10,53:11}[e])
        f=str(OPT.get("fine"))
        if f[0]=="E" and 0<=e-int(f[1:])<13: stamp(a,1+e-int(f[1:]),f)
        if e<32 and e%3==0: stamp(a,1+e//3,"B")
        if 20<=e<46 and e%2==0: stamp(a,1+(e-20)//2,"T")
        if e>=35 and e%2==1 and e<61: stamp(a,1+(e-35)//2,"D")
    S.emit(aB,0,CUT,hook)
    aS("L_D:"); S.emit(aS,CUT,None,hook)
    stamp(aS,12)
    aS.extend(tail)
    stamp(aS,13)
    if OPT["stamps"]:
        aS("s_waitcnt vmcnt(0)"); stamp(aS,14); stamps_out(aS)
    aS("s_endpgm\nL_segE:")

CV_IMG=36864; CV_COPY=4160; CV_W=2*CV_COPY; CV_BUF=4*CV_W; XS0=114688
def roleX(a,state):
    if OPT["iw"]: a(".p2align 12")
    a("L_aux:")
    LH,OC,C0=N1,M1,15
    ACC,T=32,128; BA,FX,DX,BB,YO,RBX,VK,BT=26,27,144,16,20,12,14,64
    SET=[("v",64),("a",192)]
    kx=KVX() if OPT["kvx"] else None
    if kx: a.extend(kx.setup())
    else: srd(a,48,S_SSM,576*4096)
    a(f"s_mul_i32 s7, s5, 72\ns_lshl3_add_u32 s7, s6, s7\ns_sub_u32 s{OC}, s7, {27*8-32}\ns_mul_i32 s{LH}, s3, {CV_W}\ns_add_u32 s{LH}, s{LH}, {CV_F0}\ns_add_u32 s{US}, s{OC}, s3")
    hd=[]
    for c in range(2):
        hd+=dma(f"s_add_u32 m0, s{LH}, {c*CV_BUF+32}",[f"s_add_u32 s14, s{US}, {4*c}\ns_lshl_b32 s14, s14, 12"]+[f"buffer_load_dwordx4 v{L16}, {RW1}, s14 offen offset:{1024*i} lds ; @hc{c}" for i in range(4)])
        hd+=[f"s_lshr_b32 s14, s14, 11\nv_mov_b32 v{DX+c}, 0\nbuffer_load_ushort v{DX+c}, v{DX+c}, {RB_}, s14 offen ; @hx{c}"]
    if kx:
        touch=srdl(60,S_SSM,576*4096)+["v_lshrrev_b32 v1, 5, v2","v_and_b32 v3, 31, v2","v_lshlrev_b32 v1, 14, v1","v_lshl_add_u32 v1, v3, 7, v1",f"s_lshl_b32 s4, s{US}, 12",f"buffer_load_dword v255, v1, {RB_}, s4 offen ; @ftx"]
        phaseA(a,"X",[],kx.first(),[]); a("L_segX:")
        a.extend(kx.rest(touch,srdl(48,S_SSM,576*4096)+srdl(52,XBS,4608*4096)+smalls()+hd,warm("X")+warm("S")+w2setup(True)+rbsetup(RBX,XS0)))
        a.extend(kvpoll_addr(PB))
    else:
        phaseA(a,"X",[],[],smalls()+hd+warm("X")); a("L_segX:")
        a.extend(w2setup(True)); a.extend(rbsetup(RBX,XS0)); a.extend(kvpoll_addr(PB))
        a("@W kst\ns_barrier"); a(kvflag())
        a.extend(warm("S"))
    xa=OPT["xa"]; assert xa<=OPT["xn"]
    for t in range(xa): a.extend(wdma(2,t,XS0+t*SLOT))
    a(f"v_add_u32 v{BA}, s{LH}, v{L16}\nv_cmp_eq_u32 vcc, 0, v2\nv_mov_b32 v1, 4140\nv_cndmask_b32 v1, v1, 32, vcc\nv_add_u32 v{FX}, s{LH}, v1")
    a(f"s_mov_b32 s4, {CV_BUF}")
    a(f"v_bfe_u32 v1, v2, 3, 1\nv_mul_u32_u24 v1, {CV_COPY}, v1\nv_bfe_u32 v3, v2, 4, 1\nv_mad_u32_u24 v1, v3, s4, v1\nv_and_b32 v3, 7, v2\nv_lshl_add_u32 v1, v3, 2, v1\nv_add_u32 v1, s{LH}, v1")
    a("v_mov_b32 v36, 0\nv_mov_b32 v37, 0\nv_mov_b32 v38, 0\nv_mov_b32 v39, 0\nds_write_b32 v1, v36\nv_lshlrev_b32 v1, 4, v0\nds_write_b128 v1, v[36:39]")
    stamp(a,10,"K")
    if OPT["xp"]==0: a(poll_issue("pkX",PB))
    for c in range(2):
        o=c*CV_BUF; B=BT+24*c
        a(f"@W hc{c}"); a.extend(flat([[f"ds_read_b128 {Q(B+6*i)}, v{BA} offset:{o+32+1024*i} ; @b{c}", f"ds_read_b32 v{B+6*i+4}, v{BA} offset:{o+32+1024*i+16} ; @b{c}"] for i in range(4)]))
    a(f"v_lshrrev_b32 v1, 3, v2\nv_and_b32 v3, 7, v2\nv_lshrrev_b32 v31, 1, v1\nv_xor_b32 v3, v3, v31\nv_mul_u32_u24 v1, {GS}, v1\nv_lshl_add_u32 v{VK}, v3, 4, v1\nv_xor_b32 v{VK+1}, 64, v{VK}")
    a(f"v_and_b32 v1, 15, v2\nv_add_u32 v1, 1, v1\nv_and_b32 v3, 1, v1\nv_mul_u32_u24 v3, {CV_COPY}, v3\nv_lshrrev_b32 v1, 1, v1\nv_lshl_add_u32 v3, v1, 2, v3")
    a(f"v_lshrrev_b32 v31, 4, v2\nv_lshl_add_u32 v3, v31, 4, v3\nv_add_u32 v{AB}, s{LH}, v3")
    for p in range(1,4): a(f"v_add_u32 v{AB+p}, 1024, v{AB+p-1}")
    for c in range(2):
        o=c*CV_BUF; B=BT+24*c
        if OPT["xp"]==1+c: a(poll_issue("pkX",PB))
        a(f"@W hx{c} b{c}\nv_lshlrev_b32 v1, 16, v{B}\nv_lshlrev_b32 v{DX+c}, 16, v{DX+c}\nv_add_f32 v1, v1, v{DX+c}\nv_cvt_pk_bf16_f32 v1, v1, v1\nds_write_b16 v{FX}, v1 offset:{o}\nds_write_b16 v{FX}, v1 offset:{o+CV_COPY-2}")
        for i in range(4):
            t=B+6*i
            a.extend([f"v_alignbit_b32 v{t+k}, v{t+k+1}, v{t+k}, 16" for k in range(4)]+[f"ds_write_b128 v{BA}, {Q(t)} offset:{o+CV_COPY+32+1024*i}"])
    for v in range(4):
        a(f"v_and_b32 v1, 15, v2\nv_lshlrev_b32 v1, 1, v1\nv_sub_u32 v1, v1, v31\nv_add_u32 v1, {17-4*v}, v1")
        a(f"v_bfe_u32 v3, v1, 1, 3\nv_xor_b32 v3, s3, v3\nv_lshlrev_b32 v3, 4, v3\nv_lshl_add_u32 v{BB+v}, v1, 7, v3")
    a(f"v_and_b32 v1, 15, v2\nv_lshlrev_b32 v1, 5, v1\nv_lshl_add_u32 v{YO}, v31, 3, v1")
    a(f"s_lshr_b32 s9, s{OC}, 4"); a.extend(s_dtoff(7,9,8))
    a(f"s_and_b32 s8, s{OC}, 8\ns_lshl4_add_u32 s7, s8, s7\ns_mul_i32 s8, s3, {64*GS}\ns_add_u32 s7, s7, s8\ns_add_u32 s7, s7, {WS_KVT}\ns_lshl_b32 s9, s3, 13\ns_add_u32 s9, s9, 4096")
    a(f"s_lshl_b32 s{C0}, s{US}, 12\ns_add_u32 s{C0}, s{C0}, {WS_YC}")
    def slot_rdx(t): return wreads(2,t,RBX,t*SLOT)
    def reg(G,i): k,b=SET[G&1]; return k,b+4*i
    def rdA(G,c):
        k,r=reg(G,c); o=(64*(G&7)+512*(c&1))//4
        return [f"ds_read2_b32 {P(r+2*h,k)}, v{AB+(c>>1)} offset0:{o+2*h} offset1:{o+2*h+1} ; @" for h in range(2)]
    def rdB(G,c):
        k,r=reg(G,8+c); return [f"ds_read_b128 {Q(r,k)}, v{BB+(G&3)} offset:{4096*c+(0 if (G&7)>>2 else 2048)} ; @"]
    def asc(G): return G&7!=7 and G!=8
    def reads(G):
        if asc(G): L=flat([rdB(G,c)+rdA(G,c) for c in range(8)]); return [x+(f"f{G}" if i<12 else f"g{G}") for i,x in enumerate(L)]
        return [x+f"g{G}" for x in flat([rdB(G,c) for c in range(8)])+flat([rdA(G,c) for c in range(8)])]
    PFV=253; pft=f"buffer_load_dword v255, v{PFV}, {RW2}, s{XBS} offen ; @pf"
    if OPT["pf"]:
        a(f"v_and_b32 v1, 7, v2\nv_cmp_eq_u32 vcc, 3, v1\nv_and_b32 v1, 15, v2\nv_subb_co_u32 v1, vcc, v1, 0, vcc\nv_lshrrev_b32 v3, 4, v2\nv_lshlrev_b32 v3, 12, v3\nv_lshl_add_u32 v{PFV}, v1, 7, v3")
        a(f"s_lshr_b32 s4, s2, 3\ns_sub_u32 s4, s4, 27\ns_lshl2_add_u32 s4, s4, s3\ns_lshl_b32 s4, s4, 2\ns_mul_i32 s5, s{KQ}, 1152\ns_add_u32 s4, s4, s5\ns_lshl_b32 s4, s4, 12\ns_and_b32 s5, s2, 1\ns_lshl_b32 s5, s5, 11\ns_add_u32 s{XBS}, s4, s5")
    a("@W - 0")
    a.extend([x+"g0" for x in flat([rdA(0,c) for c in range(8)])])
    stamp(a,5); stamp(a,11,"K")
    a.extend(poll_check("pkX",PB))
    stamp(a,6); stamp(a,12,"K")
    for i in range(8): a.extend(dma(f"s_add_u32 m0, s9, {i*1024}",[f"s_add_u32 s14, s7, {i*8*GS}",f"buffer_load_dwordx4 v{VK+(i&1)}, {WS}, s14 offen sc1 lds ; @kvi{i}"]))
    for k in range(OPT["pfa"]): a(pft+f"\ns_add_u32 s{XBS}, s{XBS}, {80*4096}")
    a("@W kvi7 0\ns_barrier")
    a.extend([x+"g0" for x in flat([rdB(0,c) for c in range(8)])])
    for t in range(xa): a.extend(slot_rdx(t))
    mf=[]
    for G in range(16):
        def M(c,q,z): return f"v_mfma_f32_16x16x32_bf16 {Q(ACC+4*q)}, {Q(reg(G,c)[1],reg(G,c)[0])}, {Q(reg(G,8+q-c)[1],reg(G,c)[0])}, "+("0" if z else Q(ACC+4*q))
        for q in (range(8) if asc(G) else range(7,-1,-1)):
            cs=list(range(q+1)); cs=cs if q&1==0 else cs[::-1]
            mf+=[M(c,q,G&7==0 and i==0) for i,c in enumerate(cs)]
    S=Strm(mf)
    def epi(ch,q):
        A=ACC+4*q; k=T+2*q
        return [f"v_cvt_pk_bf16_f32 v{k}, v{A}, v{A+1}", f"v_cvt_pk_bf16_f32 v{k+1}, v{A+2}, v{A+3}", f"buffer_store_dwordx2 {P(k)}, v{YO}, {WS}, s{C0} offen offset:{512*q} sc1 ; @y{ch}"]
    def yflag(ch): return [f"s_add_u32 s8, s{US}, {4*ch}","s_and_b32 s9, s8, 3","s_lshr_b32 s8, s8, 2","s_lshl_b32 s8, s8, 7","s_lshl2_add_u32 s8, s9, s8",f"s_add_u32 s8, s8, {FY}",f"@W y{ch}",f"buffer_store_dword v{NV}, v{FZ}, {WS}, s8 offen sc1 ; @yf"]
    for G in range(15):
        b=36*G; rr=reads(G+1)
        if G==6:
            S.fit(rr[:10],b,b+14); S.fit(rr[10:],b+14,b+29)
            S.fit([f"v_xor_b32 v{BB+v}, 64, v{BB+v}" for v in range(4)],b+18,b+35); S.fit([f"v_add_u32 v{AB+p}, {CV_BUF}, v{AB+p}" for p in range(4)],b+29,b+35)
        else: S.fit(rr,b,b+(29 if not asc(G+1) else 35))
    tl=list(state["inregs"]); BWX={G:[[],[]] for G in range(17)}; fr=[1 if k<xa else 0 for k in range(OPT["xn"])]; late=[]; Gi=OPT["xt0"]-1
    if xa: BWX[1][1].append(f"r2_{xa-1}")
    for i,t in enumerate(tl):
        if i<xa: continue
        s=i%OPT["xn"]; Gi=max(Gi+1,fr[s]); Gd=Gi+(OPT["xlat"] if t in state["cold"] else OPT["xlh"])
        if Gd>14: late.append(t); continue
        d=wdma(2,t,XS0+s*SLOT); g=36*Gi+1
        S.fit(d[:2],g,g+2); S.fit(d[2:],g+2,g+16,dev=1)
        S.fit(wreads(2,t,RBX,s*SLOT),36*Gd+1,36*Gd+34); BWX[Gd][0].append(f"w2_{t}"); BWX[Gd+1][1].append(f"r2_{t}"); fr[s]=Gd+1
    if OPT["pf"]:
        k=0
        while k<15-OPT["pfa"] and OPT["pf0"]+k*OPT["pfs"]<15.8:
            g=int(36*(OPT["pf0"]+k*OPT["pfs"])); S.fit([pft,f"s_add_u32 s{XBS}, s{XBS}, {80*4096}"],g,g+6); k+=1
        pfl=15-OPT["pfa"]-k
    b=36*7; S.fit(epi(0,7),b+16,b+22); S.fit(epi(0,6),b+22,b+29); S.fit(epi(0,5),b+29,b+36)
    b=36*8; S.fit(epi(0,4)+epi(0,3)+epi(0,2),b,b+17); S.fit(epi(0,1)+epi(0,0)+[f"s_add_u32 s{C0}, s{C0}, 16384"],b+17,b+28)
    S.fit(yflag(0),36*11,36*11+20)
    tpre,td1,td2,tz,tb=tprep(T,LH,XBR); Gt=OPT["xtd"]; assert 7<=Gt and Gt+OPT["xtl"]<=13 and not (8 in (Gt+OPT["xtl"],))
    S.fit(dsetup()+state["tabs"]+tpre,0,36*7)
    for k,d in enumerate((td2,td1)): S.fit(d[:1],36*Gt+19+4*k,36*Gt+20+4*k); S.fit(d[1:],36*Gt+21+4*k,36*Gt+22+4*k)
    S.fit(tz,36*Gt,36*(Gt+1)); Gt+=OPT["xtl"]; BWX[Gt][0]+=["tf","ti"]; BWX[Gt][1].append("tz")
    S.fit(tb,36*Gt+1,36*Gt+34); BWX[Gt+1][1].append("tw")
    S.fit(yfsetup(OC)+tagsetup()+idsetup()+tsetup(),max(36*(Gt+1),36*12),36*15-1)
    b=36*15; S.fit(epi(1,7),b+16,b+22); S.fit(epi(1,6),b+22,b+29); S.fit(epi(1,5),b+29,b+36)
    ins=[] if late else flat([wdma(2,t,s*SLOT) for t,s in sorted(state["inslot"].items())])
    S.fit(ins,b+1,b+36)
    S.fit(absetup()+[f"v_add_u32 v{RH}, {RING}, v{L16}",f"v_add_u32 v{RH+1}, {RING+3*RS}, v{L16}"]+[f"v_subrev_u32 v{RB+k}, {XS0}, v{RB+k}" for k in range(2)]+state["first"],b,b+36)
    S.check()
    for G in range(1,16):
        vt,lt=BWX[G]; lt=lt+[f"f{G}" if asc(G) else f"g{G}"]
        S.add(36*G-1,f"@W {','.join(vt) or '-'} {','.join(lt)}\ns_barrier",front=True)
        if asc(G): S.add(36*G+9,f"@W - g{G}",front=True)
    LOG("; conv overload"," ".join(str(S.over(36*G,36*G+36)) for G in range(16)),"late tiles",late,"state",state["inregs"],state["inslot"],file=sys.stderr)
    a("@W - g0"); stamp(a,13,"K")
    def hook(a,i):
        if i%72==0: stamp(a,1+i//72,"B")
    S.emit(a,0,None,hook)
    for q in range(4,-1,-1): a.extend(epi(1,q))
    stamp(a,7)
    if OPT["pf"]:
        for k in range(pfl): a(pft+f"\ns_add_u32 s{XBS}, s{XBS}, {80*4096}")
    if late:
        while late:
            bt,late=late[:NW],late[NW:]
            for s,t in enumerate(bt): a.extend(wdma(2,t,s*SLOT))
            a(f"@W w2_{bt[-1]}\ns_barrier")
            for s,t in enumerate(bt): a.extend(slot_rd(2,t,s))
            a("@W - 0\ns_barrier")
        for t,s in sorted(state["inslot"].items()): a.extend(wdma(2,t,s*SLOT))
    a(f"s_mov_b32 s{US}, {OOB}\ns_mov_b32 s{FUS}, {OOB}\ns_mov_b32 s{PKO}, 0")
    if OPT["u1p"]<32: a(poll_issue("p1",PA))
    a("@W - 0\ns_branch L_D")

def check_m0(segs):
    cur=None
    for seg in segs:
        for ins in seg.L:
            if "m0" in ins.w: cur=ins.text.strip()
            m=re.search(r" lds ; @(\S+)",ins.text)
            if m and m.group(1) in M0EXP and m.group(1) not in DUP: assert cur==M0EXP[m.group(1)].strip(),(ins.text,cur,M0EXP[m.group(1)])
DUP=set()
def build(**kw):
    OPT.update(kw); lds_layout()
    hdr=open("cdna_kernels/"+NAME+".s.ref").read().split("; Override launch")[0]
    segs=s0,sG,sB,sS,sX=[Asm() for _ in range(5)]
    p0(s0); ga=roleG_A(sG); nc=len(COLD); prev=None
    for it in range(3):
        del COLD[nc:]; S,pro,rd0,tail,state=mainstream(*ga,prev); prev=state["prev"]
    emit_main(sB,sS,S,pro,rd0,tail)
    check_m0([sG,sB,sS]); M0EXP.clear()
    roleX(sX,state); check_m0([sX])
    for seg in segs:
        for ins in seg.L:
            m=re.search(r";\s*@(\S+)",ins.text)
            if OPT.get("drop"):
                if ins.kind=="vmem" and m and re.fullmatch(OPT["drop"],m.group(1)): ins.__init__("")
                elif ins.text.startswith("@W"):
                    p=ins.text.split(); tg=[t for t in p[1].split(",") if not re.fullmatch(OPT["drop"],t)]
                    ins.__init__(" ".join(["@W",",".join(tg) or "-"]+p[2:]))
            if OPT.get("xcut") and seg is sX and ins.kind=="mfma" and (id(ins)>>6)%OPT["xcut"]==0: ins.__init__("s_nop 0")
            if OPT.get("xdrop") and seg is sX:
                if ins.kind=="vmem" and m and re.fullmatch(OPT["xdrop"],m.group(1)): ins.__init__("")
            if OPT.get("nomf") and ins.kind=="mfma" and (OPT["nomf"]==1 or (id(ins)>>6)%OPT["nomf"]): ins.__init__("s_nop 0")
            if OPT.get("nt") and ins.kind=="vmem" and m and re.fullmatch(OPT["nt"],m.group(1)):
                ins.__init__(ins.text.replace(" lds ;"," nt lds ;") if " lds ;" in ins.text else ins.text.replace(" ;"," nt ;"))
    LOG("; waits without producer on the X path:",resolve_vm([[s0,sG,sB,sS],[s0,sX,sS]],lenient=(1,)),file=sys.stderr)
    a=Asm(); a.L=flat([s.L for s in segs]); c=Asm(); c.extend(COLD)
    if OPT["iw"]:
        k=[i for i,x in enumerate(a.L) if x.text==".p2align 12"][0]; a.L=a.L[:k]+c.L+a.L[k:]
    else: a.L+=c.L
    a("L_end:"); n0=len(a.L); a.fix()
    LOG("; nops inserted",len(a.L)-n0,file=sys.stderr)
    if OPT["iw"]:
        def disp(cnt):
            d=Asm()
            for nm in "GXS":
                d(f"L_wc_{nm}:")
                for w in range(4):
                    tgt=f"L_pl_{nm}_{w}" if w<cnt[nm] else "L_wret"
                    d(f"s_cmp_eq_u32 s3, {w}\ns_cbranch_scc1 {tgt}" if w<3 else f"s_branch {tgt}")
            d("L_wret:\ns_setpc_b64 s[10:11]")
            return d.L
        k=[i for i,x in enumerate(a.L) if x.text==".p2align 12"][0]
        L,cnt=page_landings(a.L[:k]+disp(dict(G=0,X=0,S=0))+a.L[k:],"L_org",[("G","L_segG","L_D"),("S","L_D","L_segE"),("X","L_segX","L_end")])
        n=len(disp(cnt)); a.L=L[:k]+disp(cnt)+L[k+n:]
        LOG("; landings",cnt,file=sys.stderr)
    return (hdr+"; @launch grid=(256,1,1) block=(256,1,1) lds=163840\n"+'.amdgcn_target "amdgcn-amd-amdhsa--gfx950"\n.text\n'+a.text()
            +'.section .rodata,"a"\n'+kdesc(KN,256,256))
if __name__=="__main__":
    kw={}
    for x in sys.argv[2:]:
        k,v=x.split("=",1)
        kw[k]=int(v) if re.fullmatch(r"-?\d+",v) else float(v) if re.fullmatch(r"-?\d+\.\d+",v) else v
    try: open(sys.argv[1],"w").write(build(**kw))
    finally:
        for k,v in LOGS.items(): print(k,v,file=sys.stderr)
```

```python
import sys, struct, re
from lib8 import *
from layout8 import *
NAME="recurrent_scan__ssm_conv_h3__mixer_token_mlp__prompt"
KN=NAME+"_kernel"
OPT=dict(stamps=0, spinmax=100000, sl=8, slt=0, sl_pkX=16, sl_p1=16, cpl=6, hrot=0, w1w='3_3_3_7', w2w='4_4_4_4_2', w2p=1, Lp=600, ostore="sc1", iw=1, xbar=0, ft=0,
         c3=0, c3r=0, c3n=8, nw=4, xs_=3, nA0=2, nA1=1, aseq='iiiiGSdddpd', pseq='hhhhhh', fr=62, fw=50, hold=60, hw=60, hw1=110, hc=64, cap=290, rw=4, mr=32, dw=100, ncold=0, um=1, kvx=1, kvd=4, kva=4, kvl=3, kvf=6, gx=3, ue=0, g2x=3, g2e=34.4, gn=7, d2=34, cm=0,
         w20=11, w2e='13.0_15.0_20.0_20.0_21.0_23.0_23.2_23.2_24.0_25.0_26.0_27.4_28.4_29.4_30.0_31.0_32.5_33.5', jen=6, clump=0, cfrac=100,
         bs='16.5_16.7_16.9_19.6_20.5_21.5', bl='21.1_27.6', bc='23.4_29.7', g1e=25.0, fu='28_34', kp=13.5, kc=15.2, tb=18,
         u1p=32.7, u1c=33.3, u2p=38.8, u2c=41.1, fy=40, yp=44.8, yc=46.3, yb=48, xl='41.6_41.8_41.9_39.4',
         xs='41.6_42.2_47.7_44.5_50.3_53.5_56.2', op0=50.0, cl=49.9, cc=52.0, ce=55.3, o1l=52.8, o1c=56.2, o2l=59.0, o2c=62.4, ut=0, ote=0, xt0=0, xlat=3, xw='16_2', xn=3, xlh=2, xp=2, xa=1, xm=2, xtd=10, xtl=3, pf=0, pf0=0.3, pfs=1.25, pfa=0, Lh=350, Lu=310, Lm=850, Lc=1100, Ls=1000, Lw=300)
LOGS={}
def LOG(k,*a,file=None): LOGS[k]=' '.join(str(x) for x in a)
def f2h(x): return "0x%08x"%struct.unpack("<I",struct.pack("<f",x))[0]
S_SSM,S_D,S_W1,S_B1,S_W2,S_B2,S_OUT,S_DBG,S_WS=24,26,30,32,34,36,38,40,42
WS="s[44:47]"; RW1="s[48:51]"; RW2="s[52:55]"; RA="s[56:59]"; RB_="s[60:63]"; RC="s[64:67]"
NONCE,GAM,N1,M1,LW,LR,M2,KQ=16,17,18,19,20,21,22,23
US,PKO,PKW,CH,LA,LB,XBS,XBR,FUS,TM,YS,CM=30,31,35,34,40,41,42,43,32,33,36,26
KT,K2=68,84
OFF,MB,IB=68,77,83
NB_SD=2048*576*2
SLOT=16384; RS=12288
KL=131072; VL=KL+12672; LN_ST=VL+9216; LN_STR=1216
def lds_layout():
    global NW,NH,TE,RING,TI,TO,MBX,CV_F0
    NW=OPT["nw"]; NH=10-NW; TE=NW*SLOT; RING=TE+24576; TI=TE+4640; TO=TI+4096; MBX=TE
    CV_F0=max(CV_IMG,TO+4128-CV_BUF); assert RING+NH*RS<=163840 and CV_F0<=TE
OOB="0x40000000"
def P(r,k="v"): return f"{k}[{r}:{r+1}]"
def Q(r,k="v"): return f"{k}[{r}:{r+3}]"
def flat(x): return sum(x,[])
def sp(x): return flat([lines(i) for i in x])
def flts(k): return [float(x) for x in str(OPT[k]).split('_')]
def ints(k): return [int(x) for x in str(OPT[k]).split("_")]
VW1,VW2,RB,RH,VH,L16,UL,FZ,NV,FW,PA,PB,BBC=4,8,12,16,18,21,22,23,24,25,26,28,30
AB=4; TG=(253,255,FZ,0)
HF,AF,AO1,BU,TA=32,64,112,128,112
XO,XC,ST,B2,YA,YR,DR,BIAS=144,145,146,152,155,252,30,148; PK_=142
W2V=156; NV2=6
def w2reg(t): return ("v",W2V+16*t) if t<NV2 else ("a",16*(t-NV2)) if t<14 else ("a",192+16*(t-14))

def stamp(a,c,fine=None):
    if OPT.get("probe") is not None:
        if fine is None and c==OPT["probe"]: a("s_memrealtime s[28:29]\ns_waitcnt lgkmcnt(0)")
        return
    if OPT.get("fine") and fine!=OPT["fine"] and c!=14: return
    if fine and not OPT.get("fine"): return
    if OPT["stamps"]:
        a(f"s_memrealtime s[28:29]\ns_memtime s[0:1]\ns_waitcnt lgkmcnt(0)\nv_writelane_b32 v254, s28, {c}\nv_writelane_b32 v254, s0, {16+c}")
def stl(c,f):
    t=Asm(); stamp(t,c,f); return [i.text for i in t.L]
def stamps_out(a):
    a(f"s_lshl_b32 s4, s2, 2\ns_add_u32 s4, s4, s3\ns_lshl_b32 s4, s4, 7\ns_add_u32 s4, s4, {WS_STAMP}\nv_lshlrev_b32 v255, 2, v2\ns_mov_b64 exec, 0xffffffff")
    a(f"buffer_store_dword v254, v255, {WS}, s4 offen")

def unpack(dst,src):
    h,l=f"v_and_b32 v{dst+1}, 0xffff0000, v{src}", f"v_lshlrev_b32 v{dst}, 16, v{src}"
    return [l,h] if src==dst+1 else [h,l]
def reduce32(r,t):
    L=[f"v_add_f32_dpp v{r}, v{r}, v{r} row_ror:{sh} row_mask:0xf bank_mask:0xf" for sh in (8,4,2,1)]
    return L+[f"v_mov_b32 v{t}, v{r}", f"v_permlane16_swap_b32 v{r}, v{t}", f"v_add_f32 v{r}, v{r}, v{t}"]
def rbf(r): return [f"v_cvt_pk_bf16_f32 v{r}, v{r}, v{r}", f"v_lshlrev_b32 v{r}, 16, v{r}"]
NEG1="op_sel_hi:[1,0] neg_lo:[0,1] neg_hi:[0,1]"
def ln_fused(X,T,M,RS_,D,ST_):
    L=[f"v_pk_add_f32 {P(T+2*i)}, {P(X+4*i)}, {P(X+4*i+2)}" for i in range(4)]
    L+=[f"v_pk_add_f32 {P(T)}, {P(T)}, {P(T+2)}", f"v_pk_add_f32 {P(T+4)}, {P(T+4)}, {P(T+6)}", f"v_pk_add_f32 {P(T)}, {P(T)}, {P(X+16)}", f"v_pk_add_f32 {P(T)}, {P(T)}, {P(T+4)}"]
    L+=[f"v_add_f32 v{M}, v{T}, v{T+1}"]+reduce32(M,M+1)+[f"v_mul_f32 v{M}, 0x3ae38e39, v{M}"]
    L+=[f"v_pk_add_f32 {P(X+2*j)}, {P(X+2*j)}, {P(M)} {NEG1}" for j in range(9)]
    L+=[f"v_pk_mul_f32 {P(T)}, {P(X)}, {P(X)}", f"v_pk_mul_f32 {P(T+2)}, {P(X+2)}, {P(X+2)}"]
    L+=[f"v_pk_fma_f32 {P(T+2*(j&1))}, {P(X+2*j)}, {P(X+2*j)}, {P(T+2*(j&1))}" for j in range(2,9)]
    L+=[f"v_pk_add_f32 {P(T)}, {P(T)}, {P(T+2)}", f"v_add_f32 v{RS_}, v{T}, v{T+1}"]+reduce32(RS_,RS_+1)
    L+=[f"v_mul_f32 v{RS_}, 0x3ae38e39, v{RS_}"]
    L+=[f"v_cvt_pk_bf16_f32 v{T}, v{M}, v{RS_}", f"v_lshlrev_b32 v{ST_}, 16, v{T}", f"v_and_b32 v{T}, 0xffff0000, v{T}",
        f"v_add_f32 v{T}, 0x3727c5ac, v{T}", f"v_sub_f32 v{M}, v{M}, v{ST_}"]+rbf(T)+[f"v_sqrt_f32 v{T}, v{T}"]+rbf(T)+[f"v_rcp_f32 v{ST_+1}, v{T}"]
    L+=[f"v_mul_f32 v{M}, v{M}, v{ST_+1}", f"v_mul_f32 v{RS_}, v{RS_}, v{ST_+1}", f"v_mul_f32 v{RS_}, v{RS_}, v{ST_+1}",
        f"v_cvt_pk_bf16_f32 v{T}, v{M}, v{RS_}", f"v_lshlrev_b32 v{T+1}, 16, v{T}", f"v_and_b32 v{T}, 0xffff0000, v{T}",
        f"v_add_f32 v{T}, 0x3727c5ac, v{T}", f"v_sub_f32 v{M}, v{M}, v{T+1}"]+rbf(T)+[f"v_sqrt_f32 v{T}, v{T}"]+rbf(T)+[f"v_rcp_f32 v{T}, v{T}"]
    L+=[f"v_mul_f32 v{RS_}, v{ST_+1}, v{T}", f"v_mul_f32 v{M}, v{M}, v{T}"]
    L+=[f"v_pk_fma_f32 {P(X+2*j)}, {P(X+2*j)}, {P(RS_)}, {P(M)} op_sel_hi:[1,0,0]" for j in range(9)]
    L+=[f"v_cvt_pk_bf16_f32 v{D+j}, v{X+2*j}, v{X+2*j+1}" for j in range(9)]
    return L
def s_dtoff(d,g,t):
    return [f"s_mul_i32 s{t}, s{g}, 43", f"s_lshr_b32 s{t}, s{t}, 7", f"s_add_u32 s{d}, s{g}, s{t}", f"s_mul_i32 s{t}, s{t}, 3", f"s_sub_u32 s{t}, s{g}, s{t}", f"s_min_u32 s{t}, s{t}, 1",
            f"s_add_u32 s{d}, s{d}, s{t}", f"s_lshl_b32 s{d}, s{d}, 8"]
def srdl(s,lo,n):
    t=Asm(); srd(t,s,lo,n); return [i.text for i in t.L]

M0EXP={}
def dma(m0, ins):
    for x in ins:
        m=re.search(r" lds ; @(\S+)",x)
        if m: M0EXP[m.group(1)]=m0
    return [m0]+ins
def wdma(kind,t,base):
    so=f"s_mul_i32 s14, s{KT+t}, 6" if kind==1 else f"s_lshl_b32 s14, s{K2+t}, 1"
    v,r=(VW1,RW1) if kind==1 else (VW2,RW2)
    return dma(f"s_add_u32 m0, s{LW}, {base}",[so]+[f"buffer_load_dwordx4 v{v+i}, {r}, s14 offen offset:{1024*i} lds ; @w{kind}_{t}" for i in range(4)])
def wreads(kind,t,rb,off):
    k,r0=("a",16*t) if kind==1 else w2reg(t)
    return [f"ds_read_b64_tr_b16 {P(r0+8*ks+4*ft+2*hf,k)}, v{rb+ft} offset:{off+ks*8192+hf*1024} ; @r{kind}_{t}" for ks in range(2) for ft in range(2) for hf in range(2)]
def slot_rd(kind,t,s): return wreads(kind,t,RB+2*(s>>2),(s&3)*SLOT)
def rbsetup(dst,base):
    return ["v_bfe_u32 v1, v2, 2, 2","v_lshrrev_b32 v3, 4, v2","v_lshl_add_u32 v31, v3, 3, v1","v_lshlrev_b32 v31, 8, v31","v_and_b32 v3, 1, v3","v_lshl_add_u32 v1, v3, 2, v1",
            "v_and_b32 v3, 3, v2","v_lshl_add_u32 v31, v3, 3, v31","s_lshl_b32 s7, s3, 1","v_xor_b32 v1, s7, v1",f"v_lshl_add_u32 v{dst}, v1, 5, v31"]+([f"v_add_u32 v{dst}, {base}, v{dst}"] if base else [])+[f"v_xor_b32 v{dst+1}, 32, v{dst}"]
def w2order(w,k0):
    if not k0:
        od=[[] for m in range(4)]; b=0
        for W in [int(x) for x in str(w).split("_")]:
            for m in range(4): od[m]+=[b+(m*W//4+i)%W for i in range(W)]
            b+=W
        assert b==18; return od
    od=[[4*k+m for k in range(k0)] for m in range(4)]; new=4*k0
    for st in range(k0,18):
        old=new
        for m in range(4):
            if m==st%4 and new<18: od[m].append(new); new+=1
            else: od[m].append(min(t for t in range(old) if t not in od[m]))
    return od
def w2setup(X=False):
    L=["v_lshrrev_b32 v1, 4, v2","v_and_b32 v3, 15, v2","v_lshlrev_b32 v31, 1, v1","v_xor_b32 v3, v3, v31","v_lshlrev_b32 v1, 12, v1","v_and_b32 v31, 7, v3","v_lshl_add_u32 v1, v31, 4, v1",
       "s_lshr_b32 s4, s3, 1","s_lshl_b32 s4, s4, 2","s_and_b32 s5, s3, 1","s_add_u32 s4, s4, s5","s_lshl_b32 s4, s4, 15","v_add_u32 v1, s4, v1",
       f"v_mov_b32 v31, s{LA}",f"v_mov_b32 v{VW2+3}, s{LB}",
       f"v_cmp_lt_u32 vcc, 7, v3\nv_cndmask_b32 v{VW2}, v31, v{VW2+3}, vcc\nv_cndmask_b32 v{VW2+2}, v{VW2+3}, v31, vcc",
       f"v_add_u32 v{VW2}, v{VW2}, v1",f"v_add_u32 v{VW2+2}, v{VW2+2}, v1",f"v_add_u32 v{VW2+1}, {65536-1024}, v{VW2}",f"v_add_u32 v{VW2+2}, {16384-2048}, v{VW2+2}",f"v_add_u32 v{VW2+3}, {65536-1024}, v{VW2+2}"]
    od=w2order(OPT["w2w"],OPT["w2p"]); ox=w2order(OPT["xw"],0) if (X and OPT["xw"]) else od
    for k in range(3):
        c=[sum(o[6*k+i]<<(5*i) for i in range(6)) for o in ox+od[3:]]
        L+=[f"s_mov_b32 s4, {c[0]}"]+[f"s_cmp_eq_u32 s{M2}, {m}\ns_cselect_b32 s4, {c[m]}, s4" for m in (1,2,3)]
        if ox is not od: L+=[f"s_cmp_lt_u32 s2, {28*8}\ns_cselect_b32 s4, {c[4]}, s4"]
        L+=[f"s_bfe_u32 s{K2+6*k+i}, s4, {(5<<16)|(5*i):#x}" for i in range(6)]
    L+=[f"s_mul_i32 s4, s{KQ}, 18"]+flat([[f"s_add_u32 s{K2+i}, s{K2+i}, s4",f"s_lshl_b32 s{K2+i}, s{K2+i}, 17"] for i in range(18)])
    return L

COLD=[]
def poll_issue(tag,v,off=0): return f"buffer_load_dword v{v+1}, v{v}, {WS}, 0 offen offset:{off} sc1 ; @{tag}"
def poll_check(tag,v,off=0):
    sl=OPT.get("sl_"+tag,OPT["sl"]); sl=f"s_sleep {sl}\n" if sl else ""
    COLD.append(f"L_rs_{tag}:\ns_mov_b32 s13, 0\nL_rt_{tag}:\ns_mov_b64 exec, vcc\n{sl}"
            f"buffer_load_dword v{v+1}, v{v}, {WS}, 0 offen offset:{off} sc1\ns_waitcnt vmcnt(0)\nv_cmp_ne_u32 vcc, s{NONCE}, v{v+1}\ns_cbranch_vccz L_rx_{tag}\n"
            f"s_add_u32 s13, s13, 1\ns_cmp_lt_u32 s13, {OPT['spinmax']}\ns_cbranch_scc1 L_rt_{tag}\nL_rx_{tag}:\ns_mov_b64 exec, -1\ns_branch L_ok_{tag}")
    return [f"@W {tag}", f"v_cmp_ne_u32 vcc, s{NONCE}, v{v+1}\ns_cbranch_vccnz L_rs_{tag}\nL_ok_{tag}:"]
def tagsetup():
    L=[f"s_mul_i32 s4, s{NONCE}, 0x9e3779b1","s_lshr_b32 s5, s4, 15","s_xor_b32 s4, s4, s5","s_mul_i32 s4, s4, 0x85ebca77","s_lshr_b32 s5, s4, 13","s_xor_b32 s4, s4, s5",f"s_mov_b32 s{TM}, 0x10001",
       "v_and_b32 v1, 3, v2","v_lshlrev_b32 v1, 3, v1","v_lshrrev_b32 v1, v1, s4"]
    return L+flat([[f"v_bfe_u32 v31, v1, {2*k+1}, 1",f"v_bfe_u32 v{TG[k]}, v1, {2*k}, 1",f"v_lshl_or_b32 v{TG[k]}, v31, 16, v{TG[k]}"] for k in range(4)])
SB=146; STA=14
def idsetup():
    return ["v_and_b32 v1, 15, v2","v_lshrrev_b32 v31, 4, v2","v_lshlrev_b32 v31, 2, v31","v_sub_u32 v1, v1, v31","v_and_b32 v31, 1, v1","v_lshlrev_b32 v31, 4, v31","s_movk_i32 s4, 0x3f80","v_lshlrev_b32 v31, v31, s4","v_ashrrev_i32 v1, 1, v1",
            f"v_cmp_eq_u32 vcc, 0, v1\nv_cndmask_b32 v{SB+2}, 0, v31, vcc",f"v_cmp_eq_u32 vcc, 1, v1\nv_cndmask_b32 v{SB+3}, 0, v31, vcc"]+[f"v_mov_b32 v{SB+k}, 0" for k in (0,1,4,5)]
def madd(acc,m,h,inD): return f"v_mfma_f32_16x16x32_bf16 {Q(acc)}, {Q(130-2*h,'a') if inD else Q(SB+2-2*h)}, {Q(m)}, {Q(acc)}"
def pack(d,A): return [f"v_cvt_pk_bf16_f32 v{d+k}, v{A+2*k}, v{A+2*k+1}" for k in range(4)]+[f"v_bfi_b32 v{d+k}, s{TM}, v{TG[k]}, v{d+k}" for k in range(4)]
def tagged(tag,loads,msgs):
    R=[m+k for m in msgs for k in range(4)]; n=len(R)
    x=[f"v_xor_b32 v{r}, v{TG[k&3]}, v{r}" for k,r in enumerate(R)]
    ck=x[:4]+[f"v_or3_b32 v1, v{R[0]}, v{R[1]}, v{R[2]}"]+flat([x[k+1:k+3]+[f"v_or3_b32 v1, v{R[k]}, v{R[k+1]}, v1"] for k in range(3,n-1,2)])+[f"v_or_b32 v1, v{R[n-1]}, v1",f"v_and_b32 v1, s{TM}, v1"]
    assert sorted(l for l in ck if "xor" in l)==sorted(x)
    COLD.append(f"L_rs_{tag}:\ns_mov_b32 s13, 0\nL_rt_{tag}:\ns_add_u32 s13, s13, 1\ns_cmp_lt_u32 s13, {OPT['spinmax']}\ns_cbranch_scc0 L_ok_{tag}\n"+(f"s_sleep {OPT['slt']}\n" if OPT["slt"] else "")+"\n".join(x.split(";")[0] for x in loads)+"\ns_waitcnt vmcnt(0)\n"
                +"\n".join(ck)+f"\nv_cmp_ne_u32 vcc, 0, v1\ns_cbranch_vccnz L_rt_{tag}\ns_branch L_ok_{tag}")
    return [f"@W {tag}"]+ck+[f"v_cmp_ne_u32 vcc, 0, v1\ns_cbranch_vccnz L_rs_{tag}\nL_ok_{tag}:"]
def flag4(v,base):
    return [f"v_and_b32 v{v+1}, 3, v{v}", f"v_lshrrev_b32 v{v}, 2, v{v}", f"v_lshlrev_b32 v{v}, 7, v{v}", f"v_lshl_add_u32 v{v}, v{v+1}, 2, v{v}", f"v_add_u32 v{v}, {base}, v{v}"]
def kvpoll_addr(v): return ["s_lshl_b32 s6, s3, 6", f"v_add_u32 v{v}, s6, v2"]+flag4(v,F1K)
def warm(name):
    if not OPT["iw"]: return []
    return [f"s_mov_b64 exec, 0\ns_call_b64 s[10:11], L_wc_{name}\ns_mov_b64 exec, -1"]

def c3touch():
    r0,nr=OPT["c3r"],OPT["c3n"]
    return srdl(60,S_W1,2048*4608*2)+[f"s_mul_i32 s4, s{KQ}, 18","s_add_u32 s4, s4, 4","s_andn2_b32 s4, s4, 7","s_add_u32 s4, s4, 3","s_lshl_b32 s4, s4, 7",
        "s_and_b32 s7, s2, 1","s_lshl_b32 s7, s7, 10","s_lshr_b32 s8, s2, 3","s_lshl2_add_u32 s8, s8, s3","s_add_u32 s7, s7, s8",f"s_add_u32 s7, s7, {r0}","s_mul_i32 s7, s7, 9216","s_add_u32 s4, s4, s7",
        f"s_cmp_eq_u32 s{KQ}, 1","s_cselect_b32 s8, 2, 1","v_and_b32 v1, 3, v2","v_min_u32 v1, s8, v1","v_lshrrev_b32 v3, 2, v2",f"v_min_u32 v3, {nr-1}, v3",f"v_mul_u32_u24 v3, {128*9216}, v3","v_lshl_add_u32 v1, v1, 10, v3",
        f"buffer_load_dword v255, v1, {RB_}, s4 offen ; @c3"]
XA,KD,KD2,TAP,HSA,LNW,HRD,KRD,TR=215,217,218,219,212,220,221,222,138
def p0(a):
    a(f".globl {KN}\n.p2align 8\n.type {KN},@function\n{KN}:")
    a("s_cmp_lt_u32 s2, 256\ns_cbranch_scc0 L_exit")
    a("s_load_dwordx2 s[56:57], s[0:1], 0\ns_load_dwordx2 s[48:49], s[0:1], 8\ns_load_dwordx2 s[52:53], s[0:1], 16\ns_load_dwordx2 s[60:61], s[0:1], 24")
    a("s_load_dwordx4 s[24:27], s[0:1], 32\ns_load_dwordx2 s[30:31], s[0:1], 56\ns_load_dwordx8 s[32:39], s[0:1], 64\ns_load_dwordx4 s[40:43], s[0:1], 96\ns_memrealtime s[12:13]")
    a("v_lshrrev_b32 v1, 6, v0\nv_and_b32 v2, 63, v0")
    a(f"s_getpc_b64 s[6:7]\nL_pc:\ns_lshr_b32 s4, s2, 1\ns_and_b32 s4, s4, 124\nv_add_u32 v3, s4, v1\nv_lshl_add_u32 v3, v2, 7, v3\nv_lshlrev_b32 v3, 7, v3")
    a(f"v_min_u32 v3, L_end-L_pc-4, v3\ns_mov_b64 exec, {(1<<OPT['cpl'])-1}\nglobal_load_dword v255, v3, s[6:7] ; @code\ns_mov_b64 exec, -1\nv_readfirstlane_b32 s3, v1")
    a(f"s_and_b32 s4, s2, 7\ns_lshr_b32 s5, s2, 3\ns_lshl_b32 s4, s4, 5\ns_add_u32 s{GAM}, s4, s5")
    a(f"v_lshrrev_b32 v3, 5, v0\nv_and_b32 v31, 31, v0\nv_mul_u32_u24 v{XA}, 1152, v3\nv_mad_u32_u24 v{XA}, v31, 12, v{XA}\ns_mul_i32 s15, s{GAM}, 9216")
    kvx=OPT["kvx"]
    if kvx: a(f"v_lshlrev_b32 v{L16}, 4, v2")
    else: a(f"s_mul_i32 s4, s3, 3072\ns_add_u32 s5, s4, s15\ns_sub_u32 s5, s5, 3456\nv_lshlrev_b32 v{L16}, 4, v2\nv_add_u32 v{KD}, s5, v{L16}\nv_add_u32 v{KD2}, 1024, v{KD}")
    if not kvx: a(f"s_add_u32 s4, s4, {KL}\ns_lshl_b32 s5, s3, 11\ns_add_u32 s11, s5, s15\ns_add_u32 s5, s5, {VL}\ns_mov_b32 m0, s4")
    for r,nb in ((56,NB_SD),(48,NB_SD),(52,NB_SD),(60,576*8)): a(f"s_mov_b32 s{r+2}, {nb}\ns_mov_b32 s{r+3}, 0x20000")
    a(f"v_lshlrev_b32 v{TAP}, 3, v0\ns_movk_i32 s10, 4096")
    a("s_waitcnt lgkmcnt(0)")
    stamp(a,1,"P")
    for j in range(3): a(f"buffer_load_dwordx3 v[{64+4*j}:{66+4*j}], v{XA}, {RA}, s15 offen offset:{384*j} ; @x")
    if not kvx:
        if OPT["xbar"]: a("s_barrier")
        a(f"buffer_load_dwordx4 v{KD}, s[48:51], 0 offen lds ; @kv\ns_add_u32 m0, s4, 1024\ns_cmp_eq_u32 s3, 3")
        a(f"buffer_load_dwordx4 v{KD2}, s[48:51], 0 offen lds ; @kv\nbuffer_load_dwordx4 v{KD2}, s[48:51], 0 offen offset:1024 lds ; @kv\ns_cbranch_scc1 L_xld\nL_nox:\ns_mov_b32 m0, s5")
        COLD.insert(0,f"L_xld:\ns_mov_b64 exec, 0xffffff\nbuffer_load_dwordx4 v{KD2}, s[48:51], 0 offen offset:2048 lds\ns_mov_b64 exec, -1\ns_mov_b32 m0, s5\nbuffer_load_dwordx4 v{L16}, s[52:55], s11 offen offset:2048 lds\ns_branch L_nox")
        a(f"buffer_load_dwordx2 {P(TR)}, v{TAP}, {RB_}, 0 offen ; @kv")
        a(f"buffer_load_dwordx4 v{L16}, s[52:55], s11 offen lds ; @kv\nbuffer_load_dwordx4 v{L16}, s[52:55], s11 offen offset:1024 lds ; @kv")
        a(f"buffer_load_dwordx2 {P(TR+2)}, v{TAP}, {RB_}, 0 offen offset:2048 ; @kv\nbuffer_load_dwordx2 {P(TR+4)}, v{TAP}, {RB_}, s10 offen ; @kv")
    srd(a,64,S_DBG,256)
    if OPT["stamps"]: a("v_writelane_b32 v254, s12, 0")
    a(f"s_or_b32 s12, s12, 1\nv_or_b32 v1, s2, v0\nv_lshlrev_b32 v1, 8, v1\nv_mov_b32 v3, s12\nbuffer_store_dword v3, v1, {RC}, 0 offen sc1 ; @pub")
    stamp(a,2,"P")
    srd(a,44,S_WS,WS_END)
    if kvx: a(f"s_mov_b64 s[{XBS}:{XBS+1}], s[{S_W2}:{S_W2+1}]")
    else: srd(a,52,S_W2,4608*4096)
    if OPT["ft"]:
        a(f"s_lshr_b32 s4, s{GAM}, 2\ns_lshl_b32 s4, s4, 7\ns_add_u32 s4, s4, {F1H}\nv_and_b32 v1, 1, v2\nv_mul_u32_u24 v1, {F1K-F1H}, v1\nbuffer_load_dword v255, v1, {WS}, s4 offen {'sc1' if OPT['ft']==2 else ''} ; @ft")
    a(f"s_and_b32 s5, s2, 7\ns_lshr_b32 s6, s2, 3\ns_and_b32 s{M2}, s6, 3\ns_lshr_b32 s{KQ}, s5, 1\ns_lshl_b32 s{LW}, s3, 12\ns_mul_i32 s{LR}, s3, 3072\ns_add_u32 s{LR}, s{LR}, {RING}")
    a(f"s_mul_i32 s{CH}, s5, 72\ns_add_u32 s{CH}, s{CH}, s6")
    a(f"s_lshr_b32 s7, s6, 2\ns_lshl_b32 s8, s7, 1\ns_and_b32 s4, s5, 1\ns_lshl_b32 s4, s4, 4")
    for r,c,k in ((LA,3,0),(LB,11,1)):
        a(f"s_add_u32 s9, s8, {k}\ns_cmp_ge_u32 s9, 3\ns_addc_u32 s{r}, s9, 0\ns_cmp_ge_u32 s9, 10\ns_addc_u32 s{r}, s{r}, 0\ns_cmp_eq_u32 s7, 7\ns_cselect_b32 s{r}, {c}, s{r}\ns_add_u32 s{r}, s{r}, s4\ns_lshl_b32 s{r}, s{r}, 7")
    a(f"v_min_u32 v{FW}, 1, v0\nv_lshlrev_b32 v{FW}, 30, v{FW}\nv_min_u32 v{FZ}, 1, v2\nv_lshlrev_b32 v{FZ}, 30, v{FZ}")
    a(f"v_and_b32 v1, 15, v2\nv_lshrrev_b32 v3, 4, v2\nv_mul_u32_u24 v3, {GS}, v3\nv_lshl_add_u32 v{UL}, v1, 4, v3")
    if OPT["c3"]==1: a.extend(c3touch())
    a("s_cmp_lt_u32 s6, 27\ns_cbranch_scc0 L_aux")
    if OPT["iw"]: a("s_branch L_org\nL_exit:\ns_endpgm\n.p2align 12\nL_org:")
    else: COLD.append("L_exit:\ns_endpgm")

KR,J,TT,RE,VU,O=108,156,162,164,180,188
def kvrd(b,vk,ok,vv,ov,tg=""):
    return [f"ds_read_b64_tr_b16 {P(KR+10*b+2*q)}, v{vk if q<3 else vv} offset:{ok+4608*q if q<3 else ov+4608*(q-3)} ; @kr{b}{tg}" for q in range(5)]
def kvc(b,i,va,so,tg="",o=None):
    K=KR+10*b; V_=K+6; R=RE+8*(b&1); o=O+4*b if o is None else o
    L=[f"v_alignbit_b32 v{TT}, v{TR+2*i+1}, v{TR+2*i+1}, 16", f"v_alignbit_b32 v{TT+1}, v{TR+2*i}, v{TR+2*i}, 16", f"@W - kr{b}{tg}"]
    L+=[f"v_alignbit_b32 v{J+m}, v{K+m+1}, v{K+m}, 16" for m in range(5)]
    L+=[f"v_dot2_f32_bf16 v{R+r}, v{(J if r&1 else K)+(r>>1)}, v{TT}, 0" for r in range(8)]
    L+=[f"v_dot2_f32_bf16 v{R+r}, v{(J if r&1 else K)+(r>>1)+1}, v{TT+1}, v{R+r}" for r in range(8)]
    L+=flat([unpack(VU+2*m,V_+m) for m in range(4)])
    L+=[f"v_pk_mul_f32 {P(R+2*m)}, {P(R+2*m)}, {P(VU+2*m)}" for m in range(4)]
    L+=[f"v_cvt_pk_bf16_f32 v{o+p}, v{R+7-2*p}, v{R+6-2*p}" for p in range(4)]
    return L+[f"buffer_store_dwordx4 {Q(o)}, v{va}, {WS}, {so} offen sc1 ; @kst"]
class KVX:
    VX=69632; G0,SO=KT+4,KT; KA,VA,VRD,K2R,V2R,HS2=227,228,229,230,231,232
    def __init__(s): s.n=[0,0]; s.st=[]
    def kvc(s,*a):
        L=kvc(*a,o=32+4*len([x for x in s.st if 'store' in x]))
        if OPT['kvd']: s.st.append(L.pop())
        return L
    def setup(s):
        L=["s_mul_i32 s7, s5, 5","s_add_u32 s7, s7, s6","s_sub_u32 s7, s7, 27","s_mul_i32 s7, s7, 52429",f"s_lshr_b32 s{s.G0}, s7, 13",f"s_mul_i32 s7, s{s.G0}, 9216","s_lshl_b32 s8, s3, 10","s_add_u32 s7, s7, s8",f"v_add_u32 v{s.VA}, s7, v{L16}",f"v_subrev_u32 v{s.KA}, 3456, v{s.VA}",
           f"buffer_load_dwordx2 {P(TR)}, v{TAP}, {RB_}, 0 offen ; @tap",f"buffer_load_dwordx2 {P(TR+2)}, v{TAP}, {RB_}, 0 offen offset:2048 ; @tap","v_lshlrev_b32 v1, 3, v2",f"buffer_load_dwordx2 {P(TR+4)}, v1, {RB_}, s10 offen ; @tap"]
        return L+[f"s_lshr_b32 s{s.SO+1}, s{LW}, 2"]+s.upto(0)
    def one(s,w):
        n=s.n[w]; s.n[w]+=1; v=(s.KA,s.VA)[w]
        return [f"s_add_u32 m0, s{s.SO+1}, {4096*n+w*s.VX}\n"+(f"v_add_u32 v{v}, 4096, v{v}\n" if n else "s_nop 0\n")+f"buffer_load_dwordx4 v{v}, {('s[48:51]','s[52:55]')[w]}, 0 offen lds ; @{'kv'[w]}x{n}"]
    def need(s,r): return [min(17,-(-(8*r+11)*1152//4096)),min(16,-(-(8*r+8)*1152//4096))]
    def upto(s,r,m=99):
        L=[]; nd=s.need(min(r,6))
        while len(L)<m and (s.n[0]<nd[0] or s.n[1]<nd[1]): L+=s.one(0 if (s.n[0]-nd[0]<=s.n[1]-nd[1]) else 1)
        return L
    def rnd(s,r):
        nd=s.need(r); L=[f"@W kx{nd[0]-1},vx{nd[1]-1}"+(",tap" if r==0 else "")+"\ns_barrier"]+flat([kvrd(i,KRD,512*i+9216*(r%4),s.VRD,512*i+9216*(r%4),f"_{r}") for i in range(2)])
        if r==3: L+=[f"v_add_u32 v{x}, {4*9216}, v{x}" for x in (KRD,s.VRD)]
        c=flat([s.kvc(i,i,HSA+i,f"s{s.SO}",f"_{r}") for i in range(2)]); (s.st if OPT["kvd"] else c).append(f"s_add_u32 s{s.SO}, s{s.SO}, {GS}")
        d=s.upto(r+OPT["kvl"]) if r else []
        return L+(interleave(c,d,2,len(c)-10) if d else c)
    def flush(s):
        L=[x for x in s.st if not x.startswith('done')]; s.st=['done store' if 'store' in x else 'done' for x in s.st]; return L
    def first(s):
        L=[f"v_add_u32 v{s.VRD}, {s.VX}, v{KRD}",f"s_mul_i32 s{s.SO}, s{s.G0}, {GS}",f"s_add_u32 s{s.SO}, s{s.SO}, {WS_KVT}"]
        return s.upto(1,OPT["kva"])+L+s.rnd(0)
    def rest(s,touch,mid,post):
        L=stl(1,"K")+s.upto(OPT["kvl"])
        L+=["v_bfe_u32 v1, v2, 2, 2","v_mul_u32_u24 v1, 1152, v1","v_lshrrev_b32 v3, 4, v2","v_lshl_add_u32 v1, v3, 5, v1","v_and_b32 v31, 3, v2","v_lshl_add_u32 v1, v31, 3, v1","s_mul_i32 s4, s3, 9216","s_add_u32 s4, s4, 1024",f"v_add_u32 v{s.K2R}, s4, v1",f"v_add_u32 v{s.V2R}, {s.VX}, v{s.K2R}",
            f"s_mov_b32 s4, {sum((dtoff(32+k)>>8)<<(8*k) for k in range(4))}","v_lshlrev_b32 v3, 3, v3","v_lshrrev_b32 v3, v3, s4","v_and_b32 v3, 255, v3","v_lshlrev_b32 v3, 8, v3","v_and_b32 v1, 15, v2",f"v_lshl_add_u32 v{s.HS2}, v1, 4, v3",
            f"s_add_u32 s4, s{s.G0}, s3",f"s_mul_i32 s4, s4, {GS}",f"s_add_u32 s{s.SO+2}, s4, {WS_KVT}",f"s_add_u32 s{s.SO+3}, s{s.SO+2}, {4*GS}",f"s_cmp_eq_u32 s3, 3\ns_cselect_b32 s{s.SO+3}, {OOB}, s{s.SO+3}"]
        for r in range(1,7):
            if r==OPT["kvf"]: L+=touch
            L+=s.rnd(r)+stl(1+r,"K")
            if r in (3,6): q=r//4; L+=kvrd(2,s.K2R,36864*q,s.V2R,36864*q,f"_{r}")+s.kvc(2,2,s.HS2,f"s{s.SO+2+q}",f"_{r}")
            if r==6 and OPT["xm"]==0: L+=["@W - 0\ns_barrier"]+mid
            if r>=OPT["kvd"]: L+=s.flush()
            if r==6 and OPT["xm"]==1: L+=["@W - 0\ns_barrier"]+mid
        L+=["v_min_u32 v1, 6, v0",f"v_add_u32 v{PB}, s{s.G0}, v1"]+flag4(PB,F1K)+[f"v_mov_b32 v1, {OOB}",f"v_cmp_gt_u32 vcc, 7, v0\nv_cndmask_b32 v{PB}, v1, v{PB}, vcc"]
        return L+stl(8,"K")+post+["@W kst 0\ns_barrier",f"buffer_store_dword v{NV}, v{PB}, {WS}, 0 offen sc1 ; @fl"]+(mid if OPT["xm"]==2 else [])+stl(9,"K")
def phaseA(a, tag, fill_pre, fill_kv, fill_post, kvr=None):
    X,T,M,RS_,D,STA=76,94,102,104,64,106
    L=flat([unpack(X+2*j,64+4*(j//3)+j%3) for j in range(9)])+ln_fused(X,T,M,RS_,D,STA)
    a(f"v_lshrrev_b32 v3, 5, v0\nv_and_b32 v1, 31, v0\nv_mul_u32_u24 v{LNW}, {LN_STR}, v3\nv_mad_u32_u24 v{LNW}, v1, 12, v{LNW}\nv_add_u32 v{LNW}, {LN_ST}, v{LNW}")
    a(f"v_lshlrev_b32 v3, 3, v3\nv_cmp_eq_u32 vcc, 0, v1\nv_mov_b32 v31, {OOB}\nv_cndmask_b32 v216, v31, v3, vcc")
    a(f"v_lshrrev_b32 v31, 4, v0\nv_and_b32 v1, 3, v2\nv_lshlrev_b32 v1, 3, v1\nv_lshl_add_u32 v1, v31, 5, v1\nv_bfe_u32 v3, v2, 2, 2")
    a(f"v_mul_u32_u24 v{HRD}, {LN_STR}, v3\nv_mul_u32_u24 v{KRD}, 1152, v3\ns_mov_b32 s9, {LN_ST}\ns_mov_b32 s8, {0 if OPT['kvx'] else KL}\nv_add3_u32 v{HRD}, v{HRD}, v1, s9\nv_add3_u32 v{KRD}, v{KRD}, v1, s8")
    a("v_and_b32 v223, 15, v0\nv_lshlrev_b32 v223, 4, v223")
    for i in range(3):
        a(f"v_add_u32 v1, {16*i}, v31\nv_mul_u32_u24 v3, 43, v1\nv_lshrrev_b32 v3, 7, v3\nv_mad_i32_i24 v224, v3, -3, v1\nv_min_u32 v224, 1, v224\nv_add3_u32 v1, v1, v3, v224\nv_lshl_add_u32 v{HSA+i}, v1, 8, v223")
    a(f"s_mul_i32 s4, s{GAM}, {GS}\ns_add_u32 s6, s4, {WS_HT}\ns_add_u32 s7, s4, {WS_KVT}\ns_cmp_eq_u32 s3, 0\ns_cselect_b32 s8, s6, {OOB}\ns_cselect_b32 s9, s7, {OOB}")
    a(f"s_lshl_b32 s5, s{GAM}, 6\ns_add_u32 s5, s5, {WS_STATS}\nv_mov_b32 v225, 0")
    a(f"s_lshr_b32 s12, s{GAM}, 2\ns_lshl_b32 s12, s12, 7\ns_and_b32 s4, s{GAM}, 3\ns_lshl2_add_u32 s12, s4, s12\ns_add_u32 s12, s12, {F1H}")
    a.extend(fill_pre)
    stamp(a,3,"P")
    a("@W x"); stamp(a,1)
    a.extend(L)
    for j in range(9): a(f"ds_write_b32 v{LNW}, v{D+j} offset:{384*(j//3)+4*(j%3)}")
    a(f"buffer_store_dwordx2 {P(STA)}, v216, {WS}, s5 offen sc1 ; @st")
    a("@W - 0\ns_barrier")
    HD=200
    for i in range(3): a(f"ds_read_b64_tr_b16 {P(HD+4*i)}, v{HRD} offset:{512*i} ; @ht{i}\nds_read_b64_tr_b16 {P(HD+2+4*i)}, v{HRD} offset:{512*i+4*LN_STR} ; @ht{i}")
    for i in range(3): a(f"@W - ht{i}\nbuffer_store_dwordx4 {Q(HD+4*i)}, v{HSA+i}, {WS}, {('s6','s6','s8')[i]} offen sc1 ; @hst")
    a(f"buffer_load_dword v226, v225, {RC}, 0 offen sc1 ; @nonce")
    stamp(a,2)
    if not OPT["kvx"]:
        a("@W kv\ns_barrier")
        a.extend(flat([kvrd(i,KRD,512*i,KRD,512*i+1152*11) for i in range(3)]))
        L=flat([kvc(i,i,HSA+i,('s7','s7','s9')[i]) for i in range(3)])
        a.extend(interleave(L,fill_kv,4,len(L)-10) if fill_kv else L)
    else: a.extend(fill_kv)
    stamp(a,3)
    a(f"@W nonce\nv_readfirstlane_b32 s{NONCE}, v226\ns_cmp_eq_u32 s{NONCE}, 0\ns_cbranch_scc1 L_nw_{tag}\nL_ng_{tag}:\nv_mov_b32 v{NV}, s{NONCE}\ns_barrier")
    COLD.append(f"L_nw_{tag}:\ns_mov_b32 s13, 0\nL_nl_{tag}:\nbuffer_load_dword v226, v225, {RC}, 0 offen sc1\ns_waitcnt vmcnt(0)\nv_readfirstlane_b32 s{NONCE}, v226\n"
                f"s_cmp_lg_u32 s{NONCE}, 0\ns_cbranch_scc1 L_ng_{tag}\ns_add_u32 s13, s13, 1\ns_cmp_lt_u32 s13, {OPT['spinmax']}\ns_cbranch_scc1 L_nl_{tag}\ns_branch L_ng_{tag}")
    a(f"buffer_store_dword v{NV}, v{FW}, {WS}, s12 offen sc1 ; @fl\ns_add_u32 s12, s12, {F1K-F1H}")
    stamp(a,4); stamp(a,1,"A")
    a.extend(fill_post)
    stamp(a,2,"A")
def kvflag(): return f"buffer_store_dword v{NV}, v{FW}, {WS}, s12 offen sc1 ; @fl"

def smalls():
    return srdl(60,S_B2,4096)+[f"s_cmp_lt_u32 s3, 2\ns_cselect_b32 s4, s{LA}, s{LB}","s_and_b32 s14, s3, 1","s_lshl_b32 s14, s14, 6","s_add_u32 s4, s4, s14","v_and_b32 v1, 15, v2","v_lshl_add_u32 v3, v1, 1, s4",
        f"s_and_b32 s14, s{KQ}, 1","s_lshl_b32 s14, s14, 5",f"buffer_load_ushort v{B2}, v3, {RB_}, 0 offen ; @eb",f"buffer_load_ushort v{B2+1}, v3, {RB_}, 0 offen offset:32 ; @eb",f"buffer_load_ushort v{B2+2}, v3, {RB_}, s14 offen ; @eb"
        ]+srdl(60,S_D,576*2)+[f"s_lshl_b32 s4, s{CH}, 1",f"v_mov_b32 v{DR}, 0",f"buffer_load_ushort v{DR}, v{DR}, {RB_}, s4 offen ; @hd"]
def dsetup():
    L=srdl(64,S_OUT,NB_SD)
    L+=[f"s_cmp_lt_u32 s3, 2\ns_cselect_b32 s4, s{LA}, s{LB}","s_lshr_b32 s4, s4, 1","s_and_b32 s5, s3, 1","s_lshl_b32 s5, s5, 5","s_add_u32 s4, s4, s5",
        "v_and_b32 v1, 15, v2","v_add_u32 v1, s4, v1",f"v_lshlrev_b32 v{STA}, 3, v1",f"s_and_b32 s9, s{KQ}, 1",
        f"s_sub_u32 s{CM}, 0, s9",f"s_sub_u32 s{CM+1}, 0, s9",
        "v_mul_u32_u24 v1, 1152, v1",
        f"s_and_b32 s6, s{M2}, 1",f"s_movk_i32 s7, {0x1753}",f"s_cmp_eq_u32 s6, 0\ns_cselect_b32 s7, {0x6420}, s7",f"s_lshl_b32 s8, s{KQ}, 2","s_lshr_b32 s7, s7, s8","s_and_b32 s7, s7, 15",f"s_mul_i32 s8, s{M2}, 9","s_add_u32 s7, s7, s8",
        "s_xor_b32 s6, s6, 1","s_lshl3_add_u32 s6, s6, s8",
        "s_lshl_b32 s8, s7, 5","v_bfe_u32 v3, v2, 4, 1","v_lshl_add_u32 v3, v3, 5, v1","v_lshrrev_b32 v31, 5, v2","v_lshl_add_u32 v3, v31, 4, v3",f"v_add_u32 v{XO}, s8, v3",
        "s_mul_i32 s8, s9, 18432","s_lshl_b32 s5, s6, 5","s_add_u32 s8, s8, s5","v_lshrrev_b32 v3, 4, v2","v_lshl_add_u32 v3, v3, 3, v1","v_add_u32 v3, s8, v3",f"s_lshr_b32 s8, s{KQ}, 1",f"v_mov_b32 v1, {OOB}",
        f"v_cmp_eq_u32 vcc, s8, v31\nv_cndmask_b32 v{XC}, v1, v3, vcc",
        f"s_lshl_b32 s{YS}, s7, 16",f"s_add_u32 s{YS}, s{YS}, {WS_YC}",f"s_lshl_b32 s{YS+1}, s6, 16",f"s_add_u32 s{YS+1}, s{YS+1}, {WS_YC}",
        f"v_mov_b32 v3, s{LA}",f"v_mov_b32 v31, s{LB}","v_and_b32 v1, 8, v2","v_cmp_lt_u32 vcc, 0, v1\nv_cndmask_b32 v3, v3, v31, vcc","v_and_b32 v1, 7, v2","v_lshl_add_u32 v3, v1, 4, v3",
        "v_lshrrev_b32 v1, 4, v2","v_lshl_add_u32 v3, v1, 12, v3","s_lshl_b32 s8, s3, 14",f"v_add_u32 v{YA}, s8, v3",
        "v_lshrrev_b32 v1, 2, v2","v_lshlrev_b32 v1, 8, v1","v_and_b32 v3, 3, v2","v_lshl_add_u32 v1, v3, 3, v1","s_lshl_b32 s8, s3, 6",f"v_add_u32 v{YR}, s8, v1",
        "v_min_u32 v1, 17, v2","v_lshrrev_b32 v3, 1, v1","v_and_b32 v1, 1, v1","v_lshlrev_b32 v3, 8, v3","v_lshl_add_u32 v3, v1, 2, v3",
        f"s_mul_i32 s8, s{KQ}, 18",f"s_lshr_b32 s5, s{M2}, 1","s_add_u32 s8, s8, s5","s_lshl_b32 s8, s8, 5",f"s_and_b32 s5, s{M2}, 1","s_add_u32 s8, s8, s5","s_lshl_b32 s8, s8, 2",f"s_add_u32 s8, s8, {FU}",f"v_add_u32 v{PA}, s8, v3"]
    return L
def tsetup():
    L=["v_and_b32 v1, 15, v2","v_lshrrev_b32 v31, 4, v2","v_lshlrev_b32 v3, 1, v1","v_sub_u32 v3, v3, v31","s_lshl_b32 s4, s3, 7",f"s_sub_u32 s4, {TI-512-64+33*16}, s4",f"v_lshl_add_u32 v{BBC}, v3, 4, s4"]
    return L
def absetup():
    return ["v_and_b32 v1, 15, v2","v_add_u32 v1, 1, v1","v_and_b32 v3, 1, v1",f"v_mul_u32_u24 v3, {TO-TE}, v3","v_lshrrev_b32 v1, 1, v1","v_lshl_add_u32 v3, v1, 2, v3","v_lshrrev_b32 v1, 4, v2","v_lshl_add_u32 v3, v1, 4, v3",
            "s_lshl_b32 s4, s3, 7",f"s_add_u32 s4, s4, {TE}",f"v_add_u32 v{AB}, s4, v3"]+[f"v_add_u32 v{AB+p}, 1024, v{AB+p-1}" for p in range(1,4)]
def tprep(t1=136,sa=12,sb=15):
    t0=147; B=t1+2
    pre=srdl(60,S_SSM,576*4096)+[f"s_lshl_b32 s{sa}, s{CH}, 12","s_lshl_b32 s8, s3, 10",f"s_add_u32 s{sa}, s{sa}, s8",f"s_lshr_b32 s9, s{CH}, 4"]+s_dtoff(sb,9,8)
    pre+=[f"s_and_b32 s8, s{CH}, 15",f"s_lshl4_add_u32 s{sb}, s8, s{sb}",f"s_mul_i32 s8, s3, {64*GS}",f"s_add_u32 s{sb}, s{sb}, s8",f"s_add_u32 s{sb}, s{sb}, {WS_KVT}",f"v_mul_u32_u24 v{t0}, {GS}, v2",f"s_lshr_b32 s10, s{LW}, 2"]
    d1=dma(f"s_add_u32 m0, s10, {TE+32}",[f"buffer_load_dwordx4 v{L16}, {RB_}, s{sa} offen lds ; @tf"])
    d2=dma(f"s_add_u32 m0, s10, {TI}",[f"buffer_load_dwordx4 v{t0}, {WS}, s{sb} offen sc1 lds ; @ti"])
    z=[f"v_mov_b32 v{t0+1}, 0",f"v_mov_b32 v{t0+2}, 0",f"v_lshlrev_b32 v{t0+3}, 3, v2",f"v_add_u32 v{t0+3}, {TI-512}, v{t0+3}",f"ds_write_b64 v{t0+3}, {P(t0+1)} ; @tz",
       f"v_bfe_u32 v{t0+3}, v2, 3, 1",f"v_mul_u32_u24 v{t0+3}, {TO-TE}, v{t0+3}",f"v_and_b32 v{t0+4}, 7, v2",f"v_lshl_add_u32 v{t0+3}, v{t0+4}, 2, v{t0+3}",f"v_add_u32 v{t0+3}, {TE}, v{t0+3}",f"ds_write_b32 v{t0+3}, v{t0+1} ; @tz"]
    b=[f"s_add_u32 s{sa}, s10, {TE+32}",f"v_add_u32 v{t1}, s{sa}, v{L16}",f"ds_read_b128 {Q(B)}, v{t1} ; @tb",f"ds_read_b32 v{B+4}, v{t1} offset:16 ; @tb",
       f"v_lshrrev_b32 v{t1+1}, 30, v{FW}",f"v_mul_u32_u24 v{t1+1}, 28, v{t1+1}",f"v_sub_u32 v{t1+1}, {TE+32}, v{t1+1}","@W hd",f"v_lshlrev_b32 v{DR}, 16, v{DR}","@W - tb",
       f"v_lshlrev_b32 v{B+5}, 16, v{B}",f"v_add_f32 v{B+5}, v{B+5}, v{DR}"]+[f"v_alignbit_b32 v{B+k}, v{B+k+1}, v{B+k}, 16" for k in range(4)]
    b+=[f"v_cvt_pk_bf16_f32 v{B+5}, v{B+5}, v{B+5}",f"ds_write_b128 v{t1}, {Q(B)} offset:{TO-TE} ; @tw",f"v_cmp_eq_u32 vcc, 0, v{FW}\nv_cndmask_b32 v{B+5}, 0, v{B+5}, vcc",
        f"ds_write_b16 v{t1+1}, v{B+5} ; @tw",f"ds_write_b16 v{t1+1}, v{B+5} offset:{TO-TE-2} ; @tw"]
    return pre,d1,d2,z,b
YF=PB+1
def yfsetup(oc=None):
    L=[f"v_mov_b32 v1, s{CH}"]+([f"s_add_u32 s4, s{oc}, 3","v_add_u32 v31, s4, v0","v_cmp_eq_u32 vcc, 0, v0\nv_cndmask_b32 v1, v31, v1, vcc"] if oc else [])
    L+=["v_and_b32 v31, 3, v1","v_lshrrev_b32 v1, 2, v1","v_lshlrev_b32 v1, 7, v1","v_lshl_add_u32 v1, v31, 2, v1",f"v_add_u32 v1, {FY}, v1",f"v_mov_b32 v31, {OOB}"]
    return L+[f"v_cmp_gt_u32 vcc, {5 if oc else 1}, v0\nv_cndmask_b32 v{YF}, v31, v1, vcc"]
class TConv:
    def __init__(self,op=128,acc=TA):
        self.op,self.acc=op,acc
        self.tm=[(0,c,q) for c in range(8) for q in range(c,8)]+[(1,c,q) for c in range(7,-1,-1) for q in range(c,8)]
        self.mf=[f"v_mfma_f32_16x16x32_bf16 {Q(acc+4*q)}, {Q(self.A(r,c),'a')}, {Q(self.B(r,q-c),'a')}, "+("0" if (r,c)==(0,0) else Q(acc+4*q)) for r,c,q in self.tm]
    def A(self,r,c): return self.op+32+4*(c if r==0 else 7-c)
    def B(self,r,c): return self.op+4*(c if r==0 else 7-c)
    def rdA(self,r,c):
        o=(64*r+512*(c&1))//4
        return [f"ds_read2_b32 {P(self.A(r,c)+2*h,'a')}, v{AB+(c>>1)} offset0:{o+2*h} offset1:{o+2*h+1} ; @tA{r}{c}" for h in range(2)]
    def rdB(self,r,c): return [f"ds_read_b128 {Q(self.B(r,c),'a')}, v{BBC} offset:{512*c+64*(1-r)} ; @tB{r}{c}"]
    def first(self): return flat([self.rdB(0,c) for c in range(8)])+flat([self.rdA(0,c) for c in range(8)])
    def second(self,S,t0):
        g=t0
        for j in range(8):
            g+=8-j; S.fit(self.rdA(1,7-j)+self.rdB(1,j),g,g+(6 if j<6 else 9))
        seen=set()
        for i,(r,c,q) in enumerate(self.tm):
            tg=[t for t in (f"tA{r}{c}",f"tB{r}{q-c}") if t not in seen]; seen.update(tg)
            if tg and (r,c)!=(0,0): S.add(t0+i-1,"@W - "+",".join(tg),front=True)
    def reduce(self):
        MW,MR,YO=BBC,AB,AB+1; TA=self.acc
        tr=["s_lshl_b32 s8, s3, 13",f"s_add_u32 s8, s8, {MBX}",f"v_add_u32 v{MW}, s8, v{L16}","s_lshl_b32 s8, s3, 11",f"s_add_u32 s8, s8, {MBX}",f"v_add_u32 v{MR}, s8, v{L16}",
            "v_and_b32 v1, 15, v2","v_lshlrev_b32 v1, 5, v1","v_lshrrev_b32 v31, 4, v2","v_lshl_add_u32 v1, v31, 3, v1","s_lshl_b32 s8, s3, 10",f"v_add_u32 v{YO}, s8, v1",f"s_lshl_b32 s15, s{CH}, 12",f"s_add_u32 s15, s15, {WS_YC}"]
        mw=[f"ds_write_b128 v{MW}, {Q(TA+4*q)} offset:{1024*q} ; @mw" for q in range(8)]
        mo=[0,8192,16384,24576]
        mr=[f"ds_read_b128 {Q(TA+16*h+4*k)}, v{MR} offset:{mo[k]+1024*h} ; @mr{h}" for h in range(2) for k in range(4)]
        red=[]
        for h in range(2):
            b=TA+16*h
            red+=[f"@W - mr{h}"]+[f"v_add_f32 v{b+8*k+r}, v{b+8*k+r}, v{b+8*k+4+r}" for k in range(2) for r in range(4)]+[f"v_add_f32 v{b+r}, v{b+r}, v{b+8+r}" for r in range(4)]
            red+=[f"v_cvt_pk_bf16_f32 v{b}, v{b}, v{b+1}",f"v_cvt_pk_bf16_f32 v{b+1}, v{b+2}, v{b+3}",f"buffer_store_dwordx2 {P(b)}, v{YO}, {WS}, s15 offen offset:{512*h} sc1 ; @ys"]
        return tr,mw,mr,red,f"buffer_store_dword v{NV}, v{YF}, {WS}, 0 offen sc1 ; @yf"

PATA,PATB=(0,3,6,2,4,7),(0,3,4,2,6,7)
def pk3(p): return sum(x<<(3*i) for i,x in enumerate(p))
def roleG_A(a):
    a(f"s_mul_i32 s7, s6, 21846\ns_lshr_b32 s7, s7, 16\ns_mul_i32 s8, s7, 3\ns_sub_u32 s9, s6, s8\ns_mul_i32 s8, s{KQ}, 9\ns_add_u32 s{N1}, s8, s7\ns_and_b32 s4, s5, 1\ns_lshl1_add_u32 s{M1}, s9, s4")
    srd(a,48,S_W1,2048*4608*2)
    if OPT["kvx"]: srd(a,52,XBS,4608*4096)
    if OPT["hrot"]: a("s_add_u32 s9, s9, s7\ns_mul_i32 s8, s9, 21846\ns_lshr_b32 s8, s8, 16\ns_mul_i32 s8, s8, 3\ns_sub_u32 s9, s9, s8")
    b=0; TS=8*GS
    a(f"s_mul_i32 s4, s4, {16*TS}")
    for W in ints("w1w"):
        a(f"s_mul_i32 s7, s9, {W*21846}\ns_lshr_b32 s7, s7, 16\ns_mul_i32 s7, s7, {TS}\ns_add_u32 s5, s4, {b*TS}\ns_add_u32 s{KT+b}, s7, s5\ns_add_u32 s8, s5, {W*TS}")
        for i in range(b+1,b+W): a(f"s_add_u32 s{KT+i}, s{KT+i-1}, {TS}\ns_cmp_eq_u32 s{KT+i}, s8\ns_cselect_b32 s{KT+i}, s5, s{KT+i}")
        b+=W
    assert b==16
    a("v_lshrrev_b32 v1, 4, v2\nv_and_b32 v3, 15, v2\nv_lshlrev_b32 v31, 1, v1\nv_xor_b32 v3, v3, v31\nv_mul_u32_u24 v1, 9216, v1\nv_lshl_add_u32 v1, v3, 4, v1")
    a(f"s_mul_i32 s7, s3, {16*9216}\ns_lshl_b32 s8, s{N1}, 8\ns_add_u32 s7, s7, s8\nv_add_u32 v{VW1}, s7, v1\nv_add_u32 v{VW1+1}, {36864-1024}, v{VW1}")
    a(f"v_xor_b32 v1, 128, v{VW1}\nv_add_u32 v{VW1+2}, {2*(36864-1024)}, v1\nv_add_u32 v{VW1+3}, {36864-1024}, v{VW1+2}")
    srd(a,60,S_B1,4608*2)
    bias=[f"v_lshrrev_b32 v1, 4, v2\nv_lshlrev_b32 v1, 3, v1\ns_lshl_b32 s4, s{N1}, 8\ns_lshl_b32 s14, s3, 6\ns_add_u32 s4, s4, s14\n"
          f"buffer_load_dwordx2 {P(BIAS)}, v1, {RB_}, s4 offen ; @bias\nbuffer_load_dwordx2 {P(BIAS+2)}, v1, {RB_}, s4 offen offset:32 ; @bias"]
    SA=list(range(NW+OPT['xs_']-1,NW-1,-1))+list(range(NW))
    def grp(t): d=wdma(1,t,SA[t]*SLOT); return ["\n".join(d[:3])]+d[3:]
    n0,n1=OPT["nA0"],OPT["nA1"]
    phaseA(a,"G",flat([grp(t) for t in range(n0)]),bias+["\n".join(smalls())]+flat([grp(t) for t in range(n0,n0+n1)]),[])
    a("L_segG:")
    need=rbsetup(RB,0)+[f"v_add_u32 v{RB+2}, 0x10000, v{RB}",f"v_add_u32 v{RB+3}, 0x10000, v{RB+1}",f"v_add_u32 v{RH}, {RING}, v{L16}",f"v_add_u32 v{RH+1}, {RING+3*RS}, v{L16}"]
    hp=[f"s_and_b32 s4, s{M1}, 1","s_lshl2_add_u32 s4, s4, s3","s_lshl_b32 s4, s4, 5",f"v_min_u32 v{PB}, 31, v2",f"v_add_u32 v{PB}, s4, v{PB}"]+flag4(PB,F1H)
    def pat(d,m): return [f"s_mov_b32 s{d}, {pk3(PATA)}",f"s_cmp_eq_u32 s{m}, 1\ns_cselect_b32 s{d}, {pk3(PATB)}, s{d}",f"s_cmp_eq_u32 s{m}, 4\ns_cselect_b32 s{d}, {pk3(PATB)}, s{d}"]
    vh=[f"s_xor_b32 s4, s{M1}, 1"]+pat(5,4)+["s_lshr_b32 s6, s3, 1","s_mul_i32 s6, s6, 3","s_lshr_b32 s5, s5, s6","s_and_b32 s7, s3, 1",f"s_mul_i32 s7, s7, {4*GS}",f"s_add_u32 s7, s7, {WS_HT}",
        "s_lshl_b32 s4, s4, 11","s_add_u32 s4, s4, s7"]
    for r in range(3): vh+=[f"s_bfe_u32 s8, s5, {(3<<16)|(6*r):#x}","s_lshl_b32 s8, s8, 8","s_add_u32 s8, s8, s4",f"s_sub_u32 s8, s8, {1024*r}",f"v_add_u32 v{VH+r}, s8, v{UL}"]
    vh+=pat(PKO,M1)+[f"s_lshl_b32 s4, s{M1}, 11",f"s_add_u32 s{GAM}, s4, s7"]
    bu=["@W bias"]+flat([unpack(BU+2*q,BIAS+q) for q in range(4)])
    slot={t:SA[t] for t in range(n0+n1)}; free=SA[n0+n1:]; nd=0; rest=vh+bu; seq=OPT["aseq"]; per=0 if "r" in seq else -(-len(rest)//seq.count("d")); kv=0; did=False; pend=[]; ns=0
    for q,c in enumerate(seq):
        if c in "dpkn234" and not did: a.extend(need+hp); did=True
        if c=="i": t=len(slot); slot[t]=free.pop(0); a.extend(wdma(1,t,slot[t]*SLOT))
        elif c in "GS": a.extend(warm(c))
        elif c=="p": a(poll_issue("ph",PB))
        elif c=="k": kv=1-OPT["kvx"]
        elif c=="r": a.extend(rest)
        elif c!="n":
            k=1 if c=="d" else int(c)
            if nd==0: stamp(a,3,"A")
            a(f"@W w1_{nd+k-1}"+(",kst" if kv else "")+" 0\ns_barrier")
            stamp(a,4+ns,"A")
            if kv: a(kvflag()); kv=0
            free+=pend; pend=[slot[t] for t in range(nd,nd+k) if slot[t]<NW]
            for t in range(nd,nd+k): a.extend(slot_rd(1,t,slot[t]))
            a.extend(rest[ns*per:(ns+1)*per]); nd+=k; ns+=1
    free+=pend
    assert nd>=OPT['xs_'] and all(x<NW for x in free)
    stamp(a,5); stamp(a,11,"A")
    a.extend(poll_check("ph",PB)); a("@W - 0\ns_barrier")
    stamp(a,6); stamp(a,12,"A")
    return slot,nd,free

def w1touch():
    b=ints("w1w")[0]
    L=["v_bfe_u32 v1, v2, 1, 4","v_mul_u32_u24 v1, 9216, v1","v_and_b32 v3, 1, v2","v_lshl_add_u32 v1, v3, 7, v1",f"s_mul_i32 s4, s3, {16*9216}",f"s_lshl_b32 s5, s{N1}, 8","s_add_u32 s4, s4, s5",
       f"s_mul_i32 s5, s{KT+b}, 6",f"s_mul_i32 s6, s{KT+b+1}, 6","v_mov_b32 v3, s5","v_mov_b32 v31, s6","v_cmp_lt_u32 vcc, 31, v2","v_cndmask_b32 v3, v3, v31, vcc","v_add_u32 v3, v3, v1",
       f"buffer_load_dword v255, v3, {RW1}, s4 offen ; @tw0",f"s_mul_i32 s5, s{KT+b+2}, 6","s_add_u32 s4, s4, s5",f"buffer_load_dword v255, v1, {RW1}, s4 offen ; @tw1"]
    return L+srdl(60,S_SSM,576*4096)+[f"s_lshl_b32 s4, s{CH}, 12","s_lshl_b32 s5, s3, 10","s_add_u32 s4, s4, s5",f"buffer_load_dword v255, v{L16}, {RB_}, s4 offen ; @tw2"]

HTV=14
def htsetup():
    return [f"s_mul_i32 s4, s{KQ}, 9",f"s_sub_u32 s4, s{N1}, s4","s_lshl2_add_u32 s4, s4, s3","s_mul_i32 s4, s4, 43","v_min_u32 v1, 42, v2","v_add_u32 v1, s4, v1","v_min_u32 v1, 1535, v1","v_mul_u32_u24 v3, 5462, v1","v_lshrrev_b32 v3, 16, v3",
            "v_mad_i32_i24 v1, v3, -12, v1","v_cmp_lt_u32 vcc, 1, v1\nv_cndmask_b32 v31, 0, 2, vcc","v_cmp_lt_u32 vcc, 7, v1\nv_cndmask_b32 v31, v31, 4, vcc","v_add_u32 v1, v1, v31",f"v_mul_u32_u24 v3, {GS}, v3",f"v_lshl_add_u32 v{HTV}, v1, 7, v3",
            f"s_and_b32 s4, s{M1}, 1",f"s_mul_i32 s4, s4, {128*GS}",f"s_lshl_b32 s5, s{M1}, 11","s_add_u32 s4, s4, s5",f"s_add_u32 s{TM}, s4, {WS_HT}"]
def htouch(own): return ([] if own else [f"s_xor_b32 s4, s{TM}, 2048"])+[f"buffer_load_dword v255, v{HTV}, {WS}, s{TM if own else 4} offen sc1 ; @ht"]
UT,USEL=14,15
def utsetup():
    return ["s_lshr_b32 s4, s2, 5","s_lshl2_add_u32 s4, s4, s3","s_mul_i32 s4, s4, 27","v_min_u32 v1, 26, v2","v_add_u32 v1, s4, v1","v_mul_u32_u24 v3, 10923, v1","v_lshrrev_b32 v3, 16, v3","v_mad_i32_i24 v1, v3, -6, v1",
            f"v_lshrrev_b32 v{USEL}, 1, v1",f"v_mul_u32_u24 v{USEL}, 5, v{USEL}","v_and_b32 v1, 1, v1","v_and_b32 v31, 7, v3","v_lshrrev_b32 v3, 3, v3",f"v_mul_u32_u24 v31, {GS}, v31","v_lshl_add_u32 v3, v3, 17, v31","v_lshl_add_u32 v3, v1, 7, v3",
            f"s_mul_i32 s4, s{KQ}, {18<<17}",f"s_lshr_b32 s5, s{M2}, 1","s_mul_i32 s5, s5, 6144","s_add_u32 s4, s4, s5",f"s_add_u32 s4, s4, {WS_U2}",f"v_add_u32 v{UT}, s4, v3"]

CUT=768
def rslot(e): return (e-34)%NH
def E(e): return int(round(24*e))
def BAR(e): return 24*e+11
def gelu(acc,T,O,lam,pre):
    L=list(pre)
    L+=[f"v_mul_f32 v{T+j}, v{acc+j}, v{acc+j}" for j in range(8)]
    L+=[f"v_fma_f32 v{T+j}, v{T+j}, s10, v3" for j in range(8)]
    L+=[f"v_mul_f32 v{T+j}, v{T+j}, v{acc+j}" for j in range(8)]
    L+=[f"v_exp_f32 v{T+j}, v{T+j}" for j in range(8)]
    L+=[f"v_add_f32 v{T+j}, 1.0, v{T+j}" for j in range(8)]
    L+=[f"v_rcp_f32 v{T+j}, v{T+j}" for j in range(8)]
    L+=[f"s_bfe_u32 s11, s{PKO}, {(3<<16)|(3*lam):#x}","s_lshl_b32 s11, s11, 8",f"s_add_u32 s11, s11, s{US}"]
    L+=[f"v_mul_f32 v{T+j}, v{acc+j}, v{T+j}" for j in range(8)]
    L+=[f"v_cvt_pk_bf16_f32 v{O+k}, v{T+2*k}, v{T+2*k+1}" for k in range(4)]
    return L+[f"buffer_store_dwordx4 {Q(O)}, v{UL}, {WS}, s11 offen sc1 ; @us{lam//3}"]
def mainstream(slot0,nd,free0,prev=None):
    units=[]
    def unit(e,pos,w,acc,init,par,wa): units.append((e,pos,w,acc,init,par,wa))
    OA=(AO1,AF); FA=(AF,AF+24)
    for p in range(16):
        for dt in range(6): unit(p,[3*(2*(dt&1)+ks)+(dt>>1) for ks in range(2)],("a",16*p),AF+8*dt,"bu" if p==0 else None,dt&1,True)
    for s in range(32):
        sg,p=divmod(s,16)
        for dl in range(3): unit(16+s//2,[3*(2*(s&1)+ks)+dl for ks in range(2)],("a",16*p),OA[sg]+8*dl,"0" if p==0 else None,(s+dl)&1,True)
    nB=len(units)
    DB=(112,120); DACC={3:DB[0],4:DB[1],5:DB[0],6:DB[1],7:DB[0],8:128,9:136}
    for t in range(18):
        for d in range(2): unit(35+t//3,[3*(2*d+ks)+t%3 for ks in range(2)],w2reg(t),AF+8*d,"0" if t==0 else None,d,False)
    for p in range(3,10):
        for t in range(18): unit(41+3*(p-3)+t//6,[3*(2*(t&1)+ks)+(t%6>>1) for ks in range(2)],w2reg(t),DACC[p],"0" if t==0 else None,t&1,False)
    def umf(u):
        e,pos,(k,w),acc,init,par,wa=units[u]; h=HF+8*(u%4); L=[]
        for f in range(2):
            ft=f^par; A=Q(acc+4*ft)
            for n,ks in enumerate((1,0) if f else (0,1)):
                x,y=Q(w+8*ks+4*ft,k),Q(h+4*ks)
                c=A if (n or init is None) else Q(BU+4*ft) if init=="bu" else "0"
                L.append(f"v_mfma_f32_16x16x32_bf16 {A}, "+(f"{x}, {y}" if wa else f"{y}, {x}")+f", {c}")
        return L
    T=TConv()
    mf=flat([umf(u) for u in range(nB)])+T.mf+flat([umf(u) for u in range(nB,len(units))])
    S=Strm(mf)
    def um(u): return 4*u+(72 if u>=nB else 0)
    def urd(u):
        e,pos=units[u][:2]; s=rslot(e)
        return [f"ds_read_b128 {Q(HF+8*(u%4)+4*ks)}, v{RH+(s>2)} offset:{(s-3*(s>2))*RS+pos[ks]*1024} ; @u{u}" for ks in range(2)]
    BW={e:[[],[]] for e in range(62)}
    ORD=[[(i,0) for i in o]+[((m+k)&3,1) for k in (1,2,3)] for m,o in enumerate(((1,2,3),(2,0,3),(0,1,3),(0,1,2)))]
    loc=[[b+o for b in bs for o in (0,1)]+[c] for bs,c in (((0,2,4,6),8),((3,5,7,1),0))]
    LOC=[sum((dtoff(9*e+g)>>8)<<(5*i) for i,g in enumerate(loc[e])) for e in range(2)]
    oc=[sum((2*i+o)<<(3*k) for k,(i,o) in enumerate(ORD[m]))|(2*m)<<18|(2*m+1)<<21 for m in range(4)]
    dc=[sum((((i^m)<<3)|(3*o+(i^m)-1))<<(5*k) for k,(i,o) in enumerate(ORD[m])) for m in range(4)]
    def sel4(d,c): return [f"s_mov_b32 s{d}, {c[0]}"]+[f"s_cmp_eq_u32 s{KQ}, {k}\ns_cselect_b32 s{d}, {c[k]}, s{d}" for k in (1,2,3)]
    tab1=[f"s_mov_b32 s6, {LOC[0]&0xffffffff}",f"s_mov_b32 s7, {LOC[0]>>32}",f"s_bitcmp1_b32 s{M2}, 0\ns_cselect_b32 s6, {LOC[1]&0xffffffff}, s6\ns_cselect_b32 s7, {LOC[1]>>32}, s7"]+sel4(IB,oc)
    tab1+=["s_and_b32 s12, s3, 1",f"s_mul_i32 s12, s12, {4*GS}",f"s_lshr_b32 s4, s{M2}, 1","s_mul_i32 s4, s4, 6144","s_add_u32 s12, s12, s4",f"s_add_u32 s12, s12, {WS_U2}"]
    def offp(p):
        if p==1: L=["s_lshr_b32 s4, s7, 8"]
        else: L=[f"s_bfe_u32 s4, s{IB}, {(3<<16)|(3*(p-2)):#x}","s_mul_i32 s4, s4, 5","s_lshr_b64 s[4:5], s[6:7], s4"]
        return L+["s_and_b32 s4, s4, 31","s_lshl_b32 s4, s4, 8",f"s_add_u32 s{OFF+p-1}, s4, s12"]
    tab1+=offp(1)+offp(2)+[f"s_cmp_lt_u32 s3, 2\ns_cselect_b32 s{OFF}, s{OFF}, s{OFF+1}"]
    tab2=flat([offp(p) for p in range(3,10)])+sel4(6,dc)
    for k in range(6): tab2+=[f"s_bfe_u32 s4, s6, {(2<<16)|(5*k+3):#x}","s_lshl_b32 s4, s4, 1","s_xor_b32 s4, s4, s2","s_lshl2_add_u32 s4, s4, s3",f"s_bfe_u32 s5, s6, {(3<<16)|(5*k):#x}","s_lshl3_add_u32 s4, s4, s5",f"s_lshl_b32 s4, s4, 10",f"s_add_u32 s{MB+k}, s4, {WS_XD}"]
    tab2+=["s_lshl2_add_u32 s4, s2, s3","s_lshl_b32 s4, s4, 13",f"s_add_u32 s{IB}, s4, {WS_XD}"]
    cur={0:"F",1:"F",2:"F"}
    def refill(x):
        L=[f"s_add_u32 m0, s{LR}, {rslot(x)*RS}"]; ins=[]
        for r in range(3):
            if x<16: key,so="F",KT+x
            elif x<32: key,so=f"O{(x-16)//8}",KT+2*(x%8)
            elif x<41: key,so="S",K2+3*(x-35)+r
            else: key,so=f"P{3+(x-41)//3}",K2+2*(3*((x-41)%3)+r)
            if cur[r]!=key:
                o=[q for q in range(3) if cur[q]==key]
                if o and key[0]!="O": ins.append(f"v_add_u32 v{VH+r}, {1024*(o[0]-r)}, v{VH+o[0]}")
                elif key[0]=="O": ins+=[f"s_bfe_u32 s14, s{PKO}, {(3<<16)|(9*int(key[1])+3*r):#x}","s_lshl_b32 s14, s14, 8",f"s_add_u32 s14, s14, s{GAM}"]+([f"s_sub_u32 s14, s14, {1024*r}"] if r else [])+[f"v_add_u32 v{VH+r}, s14, v{UL}"]
                else: assert r==0; ins.append(f"v_add_u32 v{VH}, s{OFF if key=='S' else OFF+int(key[1])-1}, v{UL}")
                cur[r]=key
            ins.append(f"buffer_load_dwordx4 v{VH+r}, {WS}, s{so} offen offset:{1024*r} sc1 lds ; @h{x}")
        return dma(L[0],ins)
    slot=dict(slot0); issued={t:-99 for t in slot}; free=[(x,0) for x in free0]; pro=[]; h0=0
    for c in OPT["pseq"]:
        if c=="h": pro.append(refill(h0)); h0+=1
        elif c=="t": pro.append(w1touch())
        elif c=="u": pro.append(htouch(0))
        else: t=len(slot); slot[t]=free.pop(0)[0]; issued[t]=-24; pro.append(wdma(1,t,slot[t]*SLOT))
    gate={}
    def poll(tag,v,pe,ce,off=0,pre=[],post=[]):
        S.fit(pre+[poll_issue(tag,v,off)],max(E(pe)-2*len(pre)-2,CUT if pe>=32 else 0),E(pe)+2)
        p=S.fit(poll_check(tag,v,off)+post,E(ce),E(ce)+3+2*len(post)); gate[tag]=p[1]+1; return p[-1]+1
    for u in range(3,len(units)):
        g=um(u)-12
        for ks,x in enumerate(urd(u)): S.add(g+2*ks,x,front=False)
    T.second(S,CUT)
    kq=poll("pk",PK_,OPT["kp"],OPT["kc"])
    assert OPT["u1c"]>=32 and OPT["u2p"]>=32
    poll("p1",PA,OPT["u1p"],OPT["u1c"],post=[f"v_add_u32 v{PA}, 9216, v{PA}"])
    poll("p2",PA,OPT["u2p"],OPT["u2c"])
    ypre=[f"s_sub_u32 s4, s{YS}, {WS_YC}","s_lshr_b32 s4, s4, 12",f"s_sub_u32 s5, s{YS+1}, {WS_YC+32*4096}","s_ashr_i32 s5, s5, 12",f"v_min_u32 v{PB}, 47, v2",f"v_add_u32 v{PB+1}, s5, v{PB}",f"v_add_u32 v{PB}, s4, v{PB}",
          f"v_cmp_lt_u32 vcc, 31, v2\nv_cndmask_b32 v{PB}, v{PB}, v{PB+1}, vcc"]+flag4(PB,FY)
    poll("py",PB,OPT["yp"],OPT["yc"],pre=ypre)
    tpre,td1,td2,tz,tb=tprep()
    ydma=[dma(f"s_lshr_b32 m0, s{LW}, 2",[f"buffer_load_dwordx4 v{YA}, {WS}, s{YS+1} offen sc1 lds ; @ey0"]),
          dma(f"s_add_u32 m0, m0, 4096",[f"buffer_load_dwordx4 v{YA}, {WS}, s{YS} offen sc1 lds ; @ey1"]),
          dma(f"s_add_u32 m0, m0, 4096 ",[f"s_add_u32 s14, s{YS}, 65536",f"buffer_load_dwordx4 v{YA}, {WS}, s14 offen sc1 lds ; @ey2"])]
    fixed=[(kq,td2,256,48),(kq,td1,32,48),(gate["py"],flat(ydma),96,36)]
    def rgate(x):
        g=24*(x-NH+1)+12 if x>=NH else 0
        if 35<=x: g=max(g,gate["p1"])
        if x==34+NH: g=max(g,24*36+12)
        if x>=44: g=max(g,gate["p2"])
        return g
    def regfree(W):
        return 0 if W<16+NV2 else um(96+48+3*(W-16-NV2 if W<30 else W-18)+2)+4
    w2e=flts("w2e"); c1=set(); b=0
    for W in ints("w1w")[:1 if "t" in OPT["pseq"] else 9]: c1.update(range(b,b+(W+2)//3)); b+=W
    b=0; cw=set()
    for W in ints("xw" if OPT["xw"] else "w2w"): cw.update(range(b,b+(W+3)//4)); b+=W
    b=16
    for W in ints("w2w"):
        if OPT["cm"]: c1.update(range(b,b+(W+3)//4))
        b+=W
    def iscold(W): return W in c1 or 16<=W<16+OPT["ncold"]
    LH,LU,LM,LC,LS,LW_=[OPT[k] for k in ("Lh","Lu","Lm","Lc","Ls","Lw")]
    def cls(tg,l):
        m=re.fullmatch(r"w(\d)_(\d+)",tg)
        if m and m.group(1)=="2" and OPT["w2p"] and OPT["ncold"]<=int(m.group(2))<=18-3*OPT["w2p"]: return 32,OPT["Lp"]
        if m: return 32,(LC if iscold(int(m.group(2))+16*(m.group(1)=="2")) else LW_)
        if re.fullmatch(r"h\d+",tg): return 32,(LH if int(tg[1:])<32 else LU)
        if "store" in l: return (32 if "x4" in l else 16 if "x2" in l else 2),-LS
        return {"ti":(256,LM),"tf":(32,LW_ if "t" in OPT["pseq"] else LC),"ht":(172,LM),"ut0":(108,LM),"ut1":(108,LM),"ut2":(108,LM),"tw0":(256,LC),"tw1":(128,LC),"tw2":(32,LC),"eo0":(64,LC),"eo1":(64,LC),"ex":(32,LC),"es":(8,LM),"eb":(4,LC),"hd":(1,LC),"pk":(64,LM),"py":(48,LM),"p1":(36,LM),"p2":(36,LM),"p3":(36,LM)}.get(tg,(32,LM))
    def dl(W): return W-2 if W<16 else (um(nB+2*(W-16))-35)//24
    def wish(W): return 9999 if W<16 else E(w2e[W-16])
    nI=len(slot); nD=nd; rx=[x for x in range(h0,62) if not 32<=x<35]
    comp={}; drains={}; last={}; pipe=Pipe(OPT["cap"],2.2); now=0; grp=[]; cur_=None; done={}
    fx,cost=prev if prev else ([[] for _ in mf],[18]*len(mf))
    for l in flat(pro):
        if l.startswith("buffer"): tg=l.split("@")[1]; now,done[tg]=pipe.put(now,*cls(tg,l)); now+=20
    now=max(now,done["h0"])
    for W in slot: comp[W]=done.get(f"w1_{W}",0)
    def ahead(a,b): return sum(cost[max(a,0):max(b,0)])
    for t in range(len(mf)):
        e=t//24
        if t%24==11:
            k=0
            while nD<34 and nD in comp and k<(2 if OPT['d2']<=e!=31 else 1) and (comp[nD]<=now+OPT["dw"] or e>=dl(nD)) and regfree(nD)<=24*e+(14 if e==31 else 24):
                assert e<=dl(nD), (nD,e)
                drains.setdefault(e,[]).append(nD); free.append((slot[nD],24*(e+1)+12)); now=max(now,comp[nD]); nD+=1; k+=1
            now=max(now,done.get(f"h{e+1}",0))
        for kind,tg,n,lat in fx[t]:
            if kind=="w": now=max(now,done.get(tg,0))
            else: now,done[tg]=pipe.put(now,n,lat)
        if t&1 and t%24!=11:
            res=sum(n for g in range(t,min(t+OPT["rw"],len(mf))) for kind,tg,n,lat in fx[g] if kind=="v")
            room=OPT["cap"]-pipe.out(now)-res
            c=[]
            if rx and rgate(rx[0])<=t: c.append(("r",BAR(rx[0]-1)-OPT["fr"],BAR(rx[0]-1)-OPT["hold"]))
            for f in fixed:
                if f[0]<=t: c.append(("f",f[0]+f[3],f[0],f)); break
            if nI<34 and free and free[0][1]<=t and (nI<16 or t>=24*OPT["w20"]): c.append(("w",BAR(dl(nI))-OPT["fw"],min(BAR(dl(nI))-OPT["hw" if nI>=16 else "hw1"]-(OPT["hc"] if iscold(nI) else 0),wish(nI))))
            must=min([y[1] for y in c]+[99999])<=t+(2*len(grp) if grp else 0)
            if not grp and c and not t<CUT<=t+10 and (room>=OPT["mr"] or must):
                x=min(c,key=lambda y:y[1] if must else y[2])
                if x[0]=="r": cur_=("r",rx.pop(0)); grp=list(refill(cur_[1]))
                elif x[0]=="f": grp=list(x[3][1]); fixed.remove(x[3]); cur_=grp[-1].split("@")[1]
                else: cur_=nI; slot[nI]=free.pop(0)[0]; grp=list(wdma(1,nI,slot[nI]*SLOT) if nI<16 else wdma(2,nI-16,slot[nI]*SLOT)); nI+=1
                issued[cur_]=t; lim=x[1]
            if grp and (room>=32 or must or t>=lim or t<CUT<=t+10):
                k=[i for i,l in enumerate(grp) if l.startswith("buffer")][0]; l=grp[k]; tg=l.split("@")[1]
                if k: S.fit(grp[:k],t-1,t)
                S.add(t,l,front=False); grp=grp[k+1:]; now,done[tg]=pipe.put(now,*cls(tg,l)); last[cur_]=t
                if not grp and isinstance(cur_,int): comp[cur_]=done[tg]
        now+=cost[t]
    assert not rx and not fixed and nD==34
    for x in list(range(1,32))+list(range(35,62)):
        if ("r",x) in issued: assert last[("r",x)]<BAR(x-1), ("refill too late",x)
    LOG("; w issue",[round(issued[W]/24,1) for W in range(len(slot0),34)],"drain",{W:e for e,l in drains.items() for W in l},file=sys.stderr)
    LOG("; refill lead",[round(x-0.5-issued[("r",x)]/24,1) for x in list(range(h0,32))+list(range(35,62))],file=sys.stderr)
    for e,l in drains.items():
        for W in l:
            k,tt=(1,W) if W<16 else (2,W-16)
            S.fit(slot_rd(k,tt,slot[W]),max(24*e+12,regfree(W)),CUT-1 if e==31 else 24*e+35); BW[e][0].append(f"w{k}_{tt}"); BW[e+1][1].append(f"r{k}_{tt}")
            if k==2: assert 24*e+35<=um(nB+2*tt)
    lastw1=max(last.get(W,0) for W in range(16))+1; lastw2=last[33]+1; lastdr=max(drains)+2
    def timed(pre,x,t,lo):
        t=max(E(t),lo+(len(pre)+1)//2)
        if pre: S.fit(pre,max(lo,t-3*len(pre)),t)
        return S.fit([x],t,t+3)[0]+1
    bs=flts("bs"); bl=flts("bl"); g=gp=E(16)+5
    for l in range(6):
        A=AF+8*l; t=max(min(E(bs[l]),E(bl[0])-5*(5-l)-1),gp+4); gp=S.fit(pack(A,A),max(gp,t-24),t)[-1]+1
        g=timed([f"s_add_u32 s{XBS}, s{XBS}, 3072"] if l==3 else [],f"buffer_store_dwordx4 {Q(A)}, v{L16}, {WS}, s{XBS} offen offset:{1024*(l%3)} sc1 ; @bs",bs[l],max(g,gp))
    assert gp<=E(bl[0]) and g<E(24)-2
    RV=[136,140,AF+44]; bc=flts("bc")
    S.fit([f"s_add_u32 s9, s{XBR}, 3072"],E(17),E(19))
    for sg in range(2):
        ld=[f"buffer_load_dwordx4 {Q(RV[d])}, v{L16}, {WS}, s{(XBR,9)[sg]} offen offset:{1024*d} sc1 ; @bl{sg}" for d in range(3)]
        S.fit(ld,E(bl[sg]),E(bl[sg])+8)
        g=S.fit(tagged(f"bl{sg}",ld,RV)+[madd(OA[sg]+8*d+4*f,RV[d],f,0) for d in range(3) for f in range(2)],E(bc[sg]),min(E(bc[sg])+26,CUT-4))[-1]+1
        if sg==0: ga=g
    assert bl[0]>=19 and bl[0]+0.4<bc[0] and ga+2<E(bl[1]) and bl[1]+0.4<bc[1]
    c=0.7978845608028654*2*1.4426950408889634
    GT=AF+24
    def gblock(A,H,K,n,lam):
        L=[f"v_mov_b32 v{K}, {f2h(-c)}"]+[f"v_pk_mul_f32 {P(H+2*j)}, {P(A+2*j)}, {P(A+2*j)}" for j in range(4*n)]
        L+=[f"v_pk_fma_f32 {P(H+2*j)}, {P(H+2*j)}, s[10:11], {P(K)} op_sel_hi:[1,0,0]" for j in range(4*n)]+[f"v_pk_mul_f32 {P(H+2*j)}, {P(H+2*j)}, {P(A+2*j)}" for j in range(4*n)]
        L+=[f"v_exp_f32 v{H+j}, v{H+j}" for j in range(8*n)]+[f"v_pk_add_f32 {P(H+2*j)}, {P(H+2*j)}, 1.0 op_sel_hi:[1,0]" for j in range(4*n)]; st=[]
        for d in range(n):
            L+=[f"v_rcp_f32 v{H+8*d+j}, v{H+8*d+j}" for j in range(8)]+[f"v_pk_mul_f32 {P(H+8*d+2*j)}, {P(A+8*d+2*j)}, {P(H+8*d+2*j)}" for j in range(4)]+[f"v_cvt_pk_bf16_f32 v{A+8*d+k}, v{H+8*d+2*k}, v{H+8*d+2*k+1}" for k in range(4)]
            x=[f"s_bfe_u32 s11, s{PKO}, {(3<<16)|(3*(lam+d)):#x}","s_lshl_b32 s11, s11, 8",f"s_add_u32 s11, s11, s{US}",f"buffer_store_dwordx4 {Q(A+8*d)}, v{UL}, {WS}, s11 offen sc1 ; @us{lam//3}"]
            if (lam and not OPT["ue"]) or (not lam and (not OPT["um"] or n==3)): L+=x
            else: st+=x
        return L,st
    gx=OPT["gx"]; g1,st_=gblock(AO1,GT,136,gx,0)
    gl=[gelu(AO1+8*d,GT,GT+8+4*d,d,[]) for d in range(gx,3)]
    if OPT["um"] and gl:
        for x in gl[:-1]:
            k=[i for i,y in enumerate(x) if y.startswith("s_bfe")][0]; st_+=x[k:k+3]+[x.pop()]; del x[k:k+3]
        gl[-1]+=st_
    g2x=OPT['g2x']; g2,st2=gblock(AF,HF,HF+24,g2x,3); g2h=[gelu(AF+8*d,GT,GT+8+4*d,3+d,[]) for d in range(g2x,3)]
    for i in range(8):
        lo=max(last.get(("r",2*i+1),0),last.get(2*i+1,0))+1; assert lo<issued[("r",16+i)]
        S.fit([f"s_cmp_lt_u32 s3, 2\ns_cselect_b32 s{KT+2*i}, s{KT+2*i}, s{KT+2*i+1}"],lo,issued[("r",16+i)])
    tbe=OPT["tb"]; assert last["tf"]<BAR(tbe) and lastw1<E(19)
    S.fit(tz,kq,BAR(tbe))
    BW[tbe][0]+=["tf","ti"]; BW[tbe][1].append("tz"); assert BAR(tbe+1)<=E(bl[0])
    S.fit(tb,24*tbe+12,BAR(tbe+1)); BW[tbe+1][1].append("tw")
    S.fit(tsetup()+absetup()+idsetup()+[f"s_mov_b32 s10, {f2h(-c*0.044715)}",f"v_mov_b32 v3, {f2h(-c)}"],max(lastw1,E(17),BAR(tbe+1)),E(bc[0])-2)
    fr=T.first(); S.fit(fr[:8],E(30)-12,E(30)+8); S.fit(fr[8:],E(30)+8,CUT-2)
    BW[34][1]+=["tA10","tB17"]
    tr,mw,mr,red,yf=T.reduce()
    S.fit(tr[:3],24*34+2,E(35)-3); S.fit(tr[3:],E(35)-3,E(35)+10)
    S.fit(mw,E(35)-2,BAR(35)); BW[35][1].append("mw")
    S.fit(mr,24*35+12,E(36)+6); BW[36][1].append("mr1")
    fu=ints("fu")
    g=max(um(144)+6,ga+4)
    if gx:
        nb=OPT["gn"]; job=S.job=S.job+1
        for k in range(nb): S.add(g+2*k,"\n".join(g1[k*len(g1)//nb:(k+1)*len(g1)//nb]),front=False,job=job)
        g+=2*nb; assert g<E(bl[1])
    S.fit(flat(gl),g,E(OPT["g1e"])); S.add(CUT-1,"\n".join(g2),front=False)
    if st2: assert 32<=OPT["ue"]<=34.2 and not g2h; S.fit(st2,E(OPT["ue"]),min(E(OPT["ue"])+14,BAR(fu[1])))
    if g2h:
        p=S.fit(flat(g2h),CUT+2,E(OPT["g2e"])); assert OPT["g2e"]<=min(fu[1],40) and (g2x==2 or p[len(g2h[0])-1]<E(35)-4) and g2x
    assert OPT["g1e"]<=min(fu[0],31.9) and fu[0]<fu[1] and 32<=fu[1]
    for s in range(2):
        BW[fu[s]][0].append(f"us{s}")
        S.fit([f"buffer_store_dword v{NV}, v{FW}, {WS}, s{FUS} offen sc1 ; @uf"]+([f"s_add_u32 s{FUS}, s{FUS}, 9216"] if s<1 else []),24*fu[s]+12,24*fu[s]+16)
    S.fit(red,E(36)+8,E(37.6))
    fy=OPT["fy"]; BW[fy][0].append("ys"); assert fy>=38
    S.fit([yf],24*fy+12,24*fy+16); assert 24*fy+16<E(OPT['yp'])-30
    g=last[("r",31)]+1; S.fit(tab1+tab2,g,CUT-2)
    for i in range(3):
        lo=max(last[("r",36+2*i)]+1,last[16+6*i+5]+1,CUT); hi=issued[("r",41+i)]; assert lo<hi,(lo,hi)
        S.fit([f"s_cmp_lt_u32 s3, 2\ns_cselect_b32 s{K2+2*k}, s{K2+2*k}, s{K2+2*k+1}" for k in range(3*i,3*i+3)],lo,hi)
    CO=128; CF=31; xs=flts("xs"); H0=AF+12
    def send(d,so,k,lo,pre): return timed(pre,f"buffer_store_dwordx4 {Q(d)}, v{L16}, {WS}, s{so} offen sc1 ; @xs",xs[k],lo)
    cs=send(AF,8,0,E(41)+5,[f"v_cndmask_b32 v{CO+k}, v{AF+k}, v{AF+4+k}, s[{CM}:{CM+1}]" for k in range(4)]+[f"s_add_u32 s8, s{IB}, 6144"]+pack(AF,AF))
    g=S.fit(pack(AF+8,AF+8),E(41)+5,E(42))[-1]+1; xs_=send(AF+8,MB,1,g,[])
    for p in range(3,8):
        e=41+3*(p-2); A=DACC[p]; d=H0 if p in (3,5) else A
        g=S.fit(pack(d,A),E(e)+5,min(E(e)+24,max(E(xs[p-1]),E(e)+10)))[-1]+1; g=send(d,MB+p-2,p-1,g,[])
        assert g<{3:E(50)+5,4:E(50),5:E(59),6:E(OPT["o1c"]),7:E(OPT["o2c"])}[p]
    S.fit([f"v_accvgpr_write_b32 a{128+k}, v{SB+k}" for k in range(6)],E(35)+2,E(37.9))
    XR=8; XRC=4; xl=flts("xl"); SA=[ST,ST+2,ST+4]
    assert E(min(xl[:2]))>=max(24*lastdr,lastw2) and xl[2]>=37.7 and 38<=xl[3] and xl[3]+1<min(xl[:2])
    S.fit([f"s_and_b32 s12, s{KQ}, 1","s_lshl_b32 s12, s12, 7",f"s_add_u32 s12, s12, {WS_STATS}",f"buffer_load_dwordx2 {P(ST+4)}, v{STA}, {WS}, s12 offen sc1 ; @es",f"s_mov_b32 s12, {WS_STATS}",
           f"buffer_load_dwordx2 {P(ST+2)}, v{STA}, {WS}, s12 offen offset:128 sc1 ; @es",f"buffer_load_dwordx2 {P(ST)}, v{STA}, {WS}, s12 offen sc1 ; @es","s_movk_i32 s12, 18432"],E(xl[3]),E(xl[3]+1))
    for t,x in zip(xl,(f"buffer_load_dwordx4 {Q(XR)}, v{XO}, {RA}, 0 offen ; @eo0",f"buffer_load_dwordx4 {Q(XR+4)}, v{XO}, {RA}, s12 offen ; @eo1",f"buffer_load_dwordx2 {P(XRC)}, v{XC}, {RA}, 0 offen ; @ex")): S.fit([x],E(t),E(t)+3)
    S.fit([f"s_and_b32 s6, s{KQ}, 1","s_lshl_b32 s7, s6, 5",f"v_add_u32 v{CF}, s7, v{YR}",f"s_sub_u32 s7, s{IB}, {WS_XD}"]
           +flat([[f"s_xor_b32 s{r}, s7, {(2*d)<<15}",f"s_add_u32 s{r}, s{r}, {WS_XD+6144}"] for d,r in ((1,4),(2,5),(3,7))]),E(OPT["yp"])+3,E(OPT["cl"])-1)
    yb=OPT["yb"]; BW[yb][0].append("ey2"); assert last["ey2"]<BAR(yb) and gate["py"]>=24*lastdr
    def silu(g,t,n,x,k):
        return ([f"v_mul_f32 v{t+j}, s10, v{g+j}" for j in range(k)]+[f"v_exp_f32 v{t+j}, v{t+j}" for j in range(k)]+[f"v_mul_f32 v{n+j}, v{n+j}, v{g+j}" for j in range(k)]
                +[f"v_add_f32 v{t+j}, 1.0, v{t+j}" for j in range(k)]+[f"v_rcp_f32 v{t+j}, v{t+j}" for j in range(k)]+[f"v_fma_f32 v{n+j}, v{n+j}, v{t+j}, v{x+j}" for j in range(k)])
    XF,NN,YW=AF+16,AF+32,AF
    op=["@W eb,es"]+[f"v_lshlrev_b32 v{B2+k}, 16, v{B2+k}" for k in range(3)]+[f"v_mul_f32 v{s}, v{s}, v{s+1}" for s in SA]+[f"s_mov_b32 s10, {f2h(-1.4426950408889634)}"]
    for nt in range(2):
        op+=[f"@W eo{nt}",f"v_permlane16_swap_b32 v{XR+4*nt}, v{XR+4*nt+2}",f"v_permlane16_swap_b32 v{XR+4*nt+1}, v{XR+4*nt+3}"]+flat([unpack(XF+8*o+4*nt+2*k,XR+4*nt+2*o+k) for o in range(2) for k in range(2)])
        op+=[f"v_fma_f32 v{NN+8*o+4*nt+j}, v{XF+8*o+4*nt+j}, v{SA[nt]+1}, -v{SA[nt]}" for o in range(2) for j in range(4)]
    oy=[f"ds_read_b64_tr_b16 {P(YW+4*o+2*nt)}, v{YR} offset:{4096*(1+o)+32*nt} ; @oy" for o in range(2) for nt in range(2)]+["@W - oy"]
    for q in range(4): oy+=unpack(XR,YW+2*q)+unpack(XR+2,YW+2*q+1)+[f"v_mul_f32 v{NN+4*q+j}, v{NN+4*q+j}, v{XR+j}" for j in range(4)]
    g0=max(24*yb+12,cs,E(OPT["op0"])+30); assert OPT["op0"]>=36 and xs_<E(OPT["o1l"])
    S.fit(op,E(OPT["op0"]),g0); S.fit(oy,g0,E(OPT["cc"]))
    RCV=CO+4; YC_=6; TC=XR; of=OPT["ostore"]
    ld=[f"buffer_load_dwordx4 {Q(RCV+4*d)}, v{L16}, {WS}, s{r} offen sc1 ; @cl" for d,r in enumerate((4,5,7))]
    S.fit(ld,E(OPT["cl"]),E(OPT["cl"])+8)
    ce=[f"ds_read_b64_tr_b16 {P(YC_)}, v{CF} ; @cy"]+[f"v_add_f32 v{CO+j}, v{CO+j}, v{B2+2}" for j in range(4)]+tagged("cl",ld,[RCV,RCV+4,RCV+8])
    ce+=[f"v_cndmask_b32 v{RCV+4*d+k}, v{RCV+4*d+k}, v{RCV+4*d+2+k}, s[{CM}:{CM+1}]" for d in range(3) for k in range(2)]+[madd(CO,RCV+4*d,0,1) for d in range(3)]+["@W ex"]+unpack(RCV,XRC)+unpack(RCV+2,XRC+1)
    ce+=[f"v_fma_f32 v{TC+4+j}, v{RCV+j}, v{ST+5}, -v{ST+4}" for j in range(4)]+["@W - cy"]+unpack(TC,YC_)+unpack(TC+2,YC_+1)+[f"v_mul_f32 v{TC+4+j}, v{TC+4+j}, v{TC+j}" for j in range(4)]
    ce+=silu(CO,TC,TC+4,RCV,4)+[f"v_cvt_pk_bf16_f32 v{CO}, v{TC+4}, v{TC+5}",f"v_cvt_pk_bf16_f32 v{CO+1}, v{TC+6}, v{TC+7}",f"buffer_store_dwordx2 {P(CO)}, v{XC}, {RC}, 0 offen {of} ; @os"]
    assert OPT["ce"]<=55.8; S.fit(ce,E(OPT["cc"]),E(OPT["ce"]))
    RO=AF; SM=(DB[1],DB[0]); n=len(mf); OP=[XF,XF+4]
    def orcv(o):
        ld=[f"buffer_load_dwordx4 {Q(RO+4*d)}, v{L16}, {WS}, s6 offen offset:{1024*d} sc1 ; @ol{o}" for d in range(3)]; sm=SM[o]
        L=tagged(f"ol{o}",ld,[RO,RO+4,RO+8])+[madd(DACC[8+o]+4*nt,RO+4*d,nt,1) for d in range(3) for nt in range(2)]
        return [f"s_add_u32 s6, s{IB}, {3072*o}"]+ld,L
    def ofin(o):
        A=DACC[8+o]; sm=SM[o]
        return ([f"v_add_f32 v{A+j}, v{A+j}, v{B2+j//4}" for j in range(8)]+silu(A,sm,NN+8*o,XF+8*o,8)
                +[f"v_cvt_pk_bf16_f32 v{OP[nt]+2*o+k}, v{NN+8*o+4*nt+2*k}, v{NN+8*o+4*nt+2*k+1}" for nt in range(2) for k in range(2)])
    l0,s0=orcv(0); l1,s1=orcv(1); assert OPT["o1l"]>=OPT["cc"] and OPT["o1c"]>=max(OPT["ce"],55.9) and OPT["o2l"]>=59
    S.fit(l0,E(OPT["o1l"]),E(OPT["o1l"])+8); S.fit(s0,E(OPT["o1c"]),min(E(OPT["o1c"])+30,E(59)-1)); S.fit(l1,E(OPT["o2l"]),E(OPT["o2l"])+8)
    S.fit(ofin(0),E(59)+6,E(OPT["o2c"]) if OPT["o2c"]<61.5 else n-4)
    tail=[]
    if OPT["o2c"]<61.5: S.fit(s1,E(OPT["o2c"]),n-1)
    else: tail=s1
    tail+=ofin(1)
    for nt in range(2): tail+=[f"v_permlane16_swap_b32 v{OP[nt]}, v{OP[nt]+2}",f"v_permlane16_swap_b32 v{OP[nt]+1}, v{OP[nt]+3}",f"buffer_store_dwordx4 {Q(OP[nt])}, v{XO}, {RC}, {('0','s12')[nt]} offen {of}"]
    tid=[f"s_mul_i32 s4, s{N1}, 6",f"s_add_u32 s4, s4, s{M1}"]
    early=tid+["s_lshl2_add_u32 s5, s4, s3","s_xor_b32 s6, s5, 4",f"s_mul_i32 s{XBR}, s5, 6144",f"s_add_u32 s{XBR}, s{XBR}, {WS_XB}",f"s_mul_i32 s{XBS}, s6, 6144",f"s_add_u32 s{XBS}, s{XBS}, {WS_XB}",
               f"s_lshl_b32 s4, s{N1}, 1","s_lshr_b32 s5, s3, 1","s_add_u32 s4, s4, s5","s_lshl_b32 s4, s4, 17","s_and_b32 s5, s3, 1",f"s_mul_i32 s5, s5, {4*GS}","s_add_u32 s4, s4, s5",f"s_lshl_b32 s5, s{M1}, 11","s_add_u32 s4, s4, s5",f"s_add_u32 s{US}, s4, {WS_U2}",
               f"s_cmp_ge_u32 s{M1}, 3\ns_cselect_b32 s5, 3, 0\ns_cselect_b32 s4, 1, 0",f"s_sub_u32 s5, s{M1}, s5",f"s_lshl1_add_u32 s4, s{N1}, s4","s_lshl_b32 s4, s4, 7","s_lshl2_add_u32 s4, s5, s4",f"s_add_u32 s{FUS}, s4, {FU}"]
    e1=w2setup()+kvpoll_addr(PK_)+tpre; e2=early+dsetup()+yfsetup()+tagsetup(); g1=min(E(OPT["kp"])-3,issued[16]-2,E(9))
    if OPT["clump"]:
        ne=OPT["jen"]*OPT["clump"]; early=e1+e2; nc=len(early)*OPT["cfrac"]//100
        for k in range(ne): S.add(int((k+0.5)*24/OPT["clump"])&~1,"\n".join(early[k*nc//ne:(k+1)*nc//ne]),front=False)
        e2=early[max(nc,len(e1)):]; e1=early[nc:len(e1)]; g0=24*OPT["jen"]; assert g0<=g1
    else: g0=0
    S.fit(e1,g0,g1); p=S.fit(e2,g1 if e1 else g0,E(16)+4)
    for u in range(1,len(units)):
        g=um(u)-1
        if g%24==11 and g//24<61: BW[g//24][1].append(f"u{u}")
        else: S.add(g,f"@W - u{u}",front=True)
    S.add(CUT-1,"@W - tB07,tA00",front=True)
    for e in range(61):
        vt,lt=BW[e]
        if not 32<=e+1<35: vt=vt+[f"h{e+1}"]
        S.add(BAR(e),f"@W {','.join(vt) or '-'} {','.join(lt) or '-'}\ns_barrier",front=True)
    LOG("; overload per epoch"," ".join(str(S.over(24*e,24*e+24)) for e in range(62)),"total",S.over(),file=sys.stderr)
    S.check()
    T_,st=simulate(S,cls,flat(pro),cap=OPT['cap'])
    LOG("; model cycles per epoch"," ".join(str(int(T_[24*e+24]-T_[24*e])) for e in range(62)),"total",int(T_[-1]),file=sys.stderr)
    if OPT.get("v"): LOG("; stalls"," ".join(f"{g/24:.1f}:{r}:{int(d)}" for g,r,d in st if d>40),file=sys.stderr)
    dr=[W for e,l in drains.items() if e<32 for W in l]
    state=dict(tabs=tab1+tab2,inregs=[W-16 for W in range(16,34) if W in dr],inslot={W-16:slot[W] for W in range(16,34) if issued[W]<CUT and W not in dr},first=T.first(),cold=cw)
    for W in range(16,34): assert not (issued[W]<CUT<=last[W])
    fx=[[] for _ in mf]
    for g,L in enumerate(S.g):
        for l in L:
            if l.startswith("buffer") and " lds " not in l: tg=l.split("@")[1]; fx[g].append(("v",tg)+cls(tg,l))
            elif l.startswith("@W") and g%24!=11: fx[g]+=[("w",tg,0,0) for tg in l.split()[1].split(",") if tg!="-"]
            elif l.startswith("@W"): fx[g]+=[("w",tg,0,0) for tg in l.split()[1].split(",") if not re.fullmatch(r"-|h\d+|w\d_\d+",tg)]
    state["prev"]=(fx,[1.07*S.cost(g) for g in range(len(mf))]); state["model"]=T_[-1]
    return S,pro,flat([urd(u) for u in range(3)]),tail,state

def emit_main(aB,aS,S,pro,rd0,tail):
    for g in pro: aB.extend(g)
    aB("@W h0\ns_barrier"); aB.extend(rd0); aB("@W - u0"); stamp(aB,13,"A")
    def hook(a,i):
        e,r=divmod(i,24)
        if r: return
        if e in (16,32,35,41,53): stamp(a,{16:7,32:8,35:9,41:10,53:11}[e])
        f=str(OPT.get("fine"))
        if f[0]=="E" and 0<=e-int(f[1:])<13: stamp(a,1+e-int(f[1:]),f)
        if e<32 and e%3==0: stamp(a,1+e//3,"B")
        if 20<=e<46 and e%2==0: stamp(a,1+(e-20)//2,"T")
        if e>=35 and e%2==1 and e<61: stamp(a,1+(e-35)//2,"D")
    S.emit(aB,0,CUT,hook)
    aS("L_D:"); S.emit(aS,CUT,None,hook)
    stamp(aS,12)
    aS.extend(tail)
    stamp(aS,13)
    if OPT["stamps"]:
        aS("s_waitcnt vmcnt(0)"); stamp(aS,14); stamps_out(aS)
    if OPT.get("probe") is not None:
        aS("s_waitcnt vmcnt(0)"); stamp(aS,14)
        if OPT["probe"]==0: aS(f"s_mov_b32 s28, s{NONCE}")
        if OPT.get("prole"): aS(f"s_cmp_lt_u32 s2, 216\ns_cselect_b32 s28, "+(f"s28, s{NONCE}" if OPT["prole"]=="G" else f"s{NONCE}, s28"))
        aS("s_add_u32 s28, s28, 6000\ns_mov_b32 s5, 0\nL_spin:\ns_memrealtime s[0:1]\ns_waitcnt lgkmcnt(0)\ns_sub_u32 s4, s0, s28\ns_add_u32 s5, s5, 1\ns_cmp_gt_u32 s5, 20000\ns_cbranch_scc1 L_spe\ns_cmp_lt_i32 s4, 0\ns_cbranch_scc1 L_spin\nL_spe:")
    aS("s_endpgm\nL_segE:")

CV_IMG=36864; CV_COPY=4160; CV_W=2*CV_COPY; CV_BUF=4*CV_W; XS0=114688
def roleX(a,state):
    if OPT["iw"]: a(".p2align 12")
    a("L_aux:")
    LH,OC,C0=N1,M1,15
    ACC,T=32,128; BA,FX,DX,BB,YO,RBX,VK,BT=26,27,144,16,20,12,14,64
    SET=[("v",64),("a",192)]
    kx=KVX() if OPT["kvx"] else None
    if kx: a.extend(kx.setup())
    else: srd(a,48,S_SSM,576*4096)
    a(f"s_mul_i32 s7, s5, 72\ns_lshl3_add_u32 s7, s6, s7\ns_sub_u32 s{OC}, s7, {27*8-32}\ns_mul_i32 s{LH}, s3, {CV_W}\ns_add_u32 s{LH}, s{LH}, {CV_F0}\ns_add_u32 s{US}, s{OC}, s3")
    hd=[]
    for c in range(2):
        hd+=dma(f"s_add_u32 m0, s{LH}, {c*CV_BUF+32}",[f"s_add_u32 s14, s{US}, {4*c}\ns_lshl_b32 s14, s14, 12"]+[f"buffer_load_dwordx4 v{L16}, {RW1}, s14 offen offset:{1024*i} lds ; @hc{c}" for i in range(4)])
        hd+=[f"s_lshr_b32 s14, s14, 11\nv_mov_b32 v{DX+c}, 0\nbuffer_load_ushort v{DX+c}, v{DX+c}, {RB_}, s14 offen ; @hx{c}"]
    if kx:
        touch=srdl(60,S_SSM,576*4096)+["v_lshrrev_b32 v1, 5, v2","v_and_b32 v3, 31, v2","v_lshlrev_b32 v1, 14, v1","v_lshl_add_u32 v1, v3, 7, v1",f"s_lshl_b32 s4, s{US}, 12",f"buffer_load_dword v255, v1, {RB_}, s4 offen ; @ftx"]
        phaseA(a,"X",[],kx.first(),[]); a("L_segX:")
        a.extend(kx.rest(touch,srdl(48,S_SSM,576*4096)+srdl(52,XBS,4608*4096)+smalls()+hd,warm("X")+warm("S")+w2setup(True)+rbsetup(RBX,XS0)))
        a.extend(kvpoll_addr(PB))
    else:
        phaseA(a,"X",[],[],smalls()+hd+warm("X")); a("L_segX:")
        a.extend(w2setup(True)); a.extend(rbsetup(RBX,XS0)); a.extend(kvpoll_addr(PB))
        a("@W kst\ns_barrier"); a(kvflag())
        a.extend(warm("S"))
    xa=OPT["xa"]; assert xa<=OPT["xn"]
    for t in range(xa): a.extend(wdma(2,t,XS0+t*SLOT))
    a(f"v_add_u32 v{BA}, s{LH}, v{L16}\nv_cmp_eq_u32 vcc, 0, v2\nv_mov_b32 v1, 4140\nv_cndmask_b32 v1, v1, 32, vcc\nv_add_u32 v{FX}, s{LH}, v1")
    a(f"s_mov_b32 s4, {CV_BUF}")
    a(f"v_bfe_u32 v1, v2, 3, 1\nv_mul_u32_u24 v1, {CV_COPY}, v1\nv_bfe_u32 v3, v2, 4, 1\nv_mad_u32_u24 v1, v3, s4, v1\nv_and_b32 v3, 7, v2\nv_lshl_add_u32 v1, v3, 2, v1\nv_add_u32 v1, s{LH}, v1")
    a("v_mov_b32 v36, 0\nv_mov_b32 v37, 0\nv_mov_b32 v38, 0\nv_mov_b32 v39, 0\nds_write_b32 v1, v36\nv_lshlrev_b32 v1, 4, v0\nds_write_b128 v1, v[36:39]")
    stamp(a,10,"K")
    if OPT["xp"]==0: a(poll_issue("pkX",PB))
    for c in range(2):
        o=c*CV_BUF; B=BT+24*c
        a(f"@W hc{c}"); a.extend(flat([[f"ds_read_b128 {Q(B+6*i)}, v{BA} offset:{o+32+1024*i} ; @b{c}", f"ds_read_b32 v{B+6*i+4}, v{BA} offset:{o+32+1024*i+16} ; @b{c}"] for i in range(4)]))
    a(f"v_lshrrev_b32 v1, 3, v2\nv_and_b32 v3, 7, v2\nv_lshrrev_b32 v31, 1, v1\nv_xor_b32 v3, v3, v31\nv_mul_u32_u24 v1, {GS}, v1\nv_lshl_add_u32 v{VK}, v3, 4, v1\nv_xor_b32 v{VK+1}, 64, v{VK}")
    a(f"v_and_b32 v1, 15, v2\nv_add_u32 v1, 1, v1\nv_and_b32 v3, 1, v1\nv_mul_u32_u24 v3, {CV_COPY}, v3\nv_lshrrev_b32 v1, 1, v1\nv_lshl_add_u32 v3, v1, 2, v3")
    a(f"v_lshrrev_b32 v31, 4, v2\nv_lshl_add_u32 v3, v31, 4, v3\nv_add_u32 v{AB}, s{LH}, v3")
    for p in range(1,4): a(f"v_add_u32 v{AB+p}, 1024, v{AB+p-1}")
    for c in range(2):
        o=c*CV_BUF; B=BT+24*c
        if OPT["xp"]==1+c: a(poll_issue("pkX",PB))
        a(f"@W hx{c} b{c}\nv_lshlrev_b32 v1, 16, v{B}\nv_lshlrev_b32 v{DX+c}, 16, v{DX+c}\nv_add_f32 v1, v1, v{DX+c}\nv_cvt_pk_bf16_f32 v1, v1, v1\nds_write_b16 v{FX}, v1 offset:{o}\nds_write_b16 v{FX}, v1 offset:{o+CV_COPY-2}")
        for i in range(4):
            t=B+6*i
            a.extend([f"v_alignbit_b32 v{t+k}, v{t+k+1}, v{t+k}, 16" for k in range(4)]+[f"ds_write_b128 v{BA}, {Q(t)} offset:{o+CV_COPY+32+1024*i}"])
    for v in range(4):
        a(f"v_and_b32 v1, 15, v2\nv_lshlrev_b32 v1, 1, v1\nv_sub_u32 v1, v1, v31\nv_add_u32 v1, {17-4*v}, v1")
        a(f"v_bfe_u32 v3, v1, 1, 3\nv_xor_b32 v3, s3, v3\nv_lshlrev_b32 v3, 4, v3\nv_lshl_add_u32 v{BB+v}, v1, 7, v3")
    a(f"v_and_b32 v1, 15, v2\nv_lshlrev_b32 v1, 5, v1\nv_lshl_add_u32 v{YO}, v31, 3, v1")
    a(f"s_lshr_b32 s9, s{OC}, 4"); a.extend(s_dtoff(7,9,8))
    a(f"s_and_b32 s8, s{OC}, 8\ns_lshl4_add_u32 s7, s8, s7\ns_mul_i32 s8, s3, {64*GS}\ns_add_u32 s7, s7, s8\ns_add_u32 s7, s7, {WS_KVT}\ns_lshl_b32 s9, s3, 13\ns_add_u32 s9, s9, 4096")
    a(f"s_lshl_b32 s{C0}, s{US}, 12\ns_add_u32 s{C0}, s{C0}, {WS_YC}")
    def slot_rdx(t): return wreads(2,t,RBX,t*SLOT)
    def reg(G,i): k,b=SET[G&1]; return k,b+4*i
    def rdA(G,c):
        k,r=reg(G,c); o=(64*(G&7)+512*(c&1))//4
        return [f"ds_read2_b32 {P(r+2*h,k)}, v{AB+(c>>1)} offset0:{o+2*h} offset1:{o+2*h+1} ; @" for h in range(2)]
    def rdB(G,c):
        k,r=reg(G,8+c); return [f"ds_read_b128 {Q(r,k)}, v{BB+(G&3)} offset:{4096*c+(0 if (G&7)>>2 else 2048)} ; @"]
    def asc(G): return G&7!=7 and G!=8
    def reads(G):
        if asc(G): L=flat([rdB(G,c)+rdA(G,c) for c in range(8)]); return [x+(f"f{G}" if i<12 else f"g{G}") for i,x in enumerate(L)]
        return [x+f"g{G}" for x in flat([rdB(G,c) for c in range(8)])+flat([rdA(G,c) for c in range(8)])]
    PFV=253; pft=f"buffer_load_dword v255, v{PFV}, {RW2}, s{XBS} offen ; @pf"
    if OPT["pf"]:
        a(f"v_and_b32 v1, 7, v2\nv_cmp_eq_u32 vcc, 3, v1\nv_and_b32 v1, 15, v2\nv_subb_co_u32 v1, vcc, v1, 0, vcc\nv_lshrrev_b32 v3, 4, v2\nv_lshlrev_b32 v3, 12, v3\nv_lshl_add_u32 v{PFV}, v1, 7, v3")
        a(f"s_lshr_b32 s4, s2, 3\ns_sub_u32 s4, s4, 27\ns_lshl2_add_u32 s4, s4, s3\ns_lshl_b32 s4, s4, 2\ns_mul_i32 s5, s{KQ}, 1152\ns_add_u32 s4, s4, s5\ns_lshl_b32 s4, s4, 12\ns_and_b32 s5, s2, 1\ns_lshl_b32 s5, s5, 11\ns_add_u32 s{XBS}, s4, s5")
    a("@W - 0")
    a.extend([x+"g0" for x in flat([rdA(0,c) for c in range(8)])])
    stamp(a,5); stamp(a,11,"K")
    a.extend(poll_check("pkX",PB))
    stamp(a,6); stamp(a,12,"K")
    for i in range(8): a.extend(dma(f"s_add_u32 m0, s9, {i*1024}",[f"s_add_u32 s14, s7, {i*8*GS}",f"buffer_load_dwordx4 v{VK+(i&1)}, {WS}, s14 offen sc1 lds ; @kvi{i}"]))
    for k in range(OPT["pfa"]): a(pft+f"\ns_add_u32 s{XBS}, s{XBS}, {80*4096}")
    a("@W kvi7 0\ns_barrier")
    a.extend([x+"g0" for x in flat([rdB(0,c) for c in range(8)])])
    for t in range(xa): a.extend(slot_rdx(t))
    mf=[]
    for G in range(16):
        def M(c,q,z): return f"v_mfma_f32_16x16x32_bf16 {Q(ACC+4*q)}, {Q(reg(G,c)[1],reg(G,c)[0])}, {Q(reg(G,8+q-c)[1],reg(G,c)[0])}, "+("0" if z else Q(ACC+4*q))
        for q in (range(8) if asc(G) else range(7,-1,-1)):
            cs=list(range(q+1)); cs=cs if q&1==0 else cs[::-1]
            mf+=[M(c,q,G&7==0 and i==0) for i,c in enumerate(cs)]
    S=Strm(mf)
    def epi(ch,q):
        A=ACC+4*q; k=T+2*q
        return [f"v_cvt_pk_bf16_f32 v{k}, v{A}, v{A+1}", f"v_cvt_pk_bf16_f32 v{k+1}, v{A+2}, v{A+3}", f"buffer_store_dwordx2 {P(k)}, v{YO}, {WS}, s{C0} offen offset:{512*q} sc1 ; @y{ch}"]
    def yflag(ch): return [f"s_add_u32 s8, s{US}, {4*ch}","s_and_b32 s9, s8, 3","s_lshr_b32 s8, s8, 2","s_lshl_b32 s8, s8, 7","s_lshl2_add_u32 s8, s9, s8",f"s_add_u32 s8, s8, {FY}",f"@W y{ch}",f"buffer_store_dword v{NV}, v{FZ}, {WS}, s8 offen sc1 ; @yf"]
    for G in range(15):
        b=36*G; rr=reads(G+1)
        if G==6:
            S.fit(rr[:10],b,b+14); S.fit(rr[10:],b+14,b+29)
            S.fit([f"v_xor_b32 v{BB+v}, 64, v{BB+v}" for v in range(4)],b+18,b+35); S.fit([f"v_add_u32 v{AB+p}, {CV_BUF}, v{AB+p}" for p in range(4)],b+29,b+35)
        else: S.fit(rr,b,b+(29 if not asc(G+1) else 35))
    tl=list(state["inregs"]); BWX={G:[[],[]] for G in range(17)}; fr=[1 if k<xa else 0 for k in range(OPT["xn"])]; late=[]; Gi=OPT["xt0"]-1
    if xa: BWX[1][1].append(f"r2_{xa-1}")
    for i,t in enumerate(tl):
        if i<xa: continue
        s=i%OPT["xn"]; Gi=max(Gi+1,fr[s]); Gd=Gi+(OPT["xlat"] if t in state["cold"] else OPT["xlh"])
        if Gd>14: late.append(t); continue
        d=wdma(2,t,XS0+s*SLOT); g=36*Gi+1
        S.fit(d[:2],g,g+2); S.fit(d[2:],g+2,g+16,dev=1)
        S.fit(wreads(2,t,RBX,s*SLOT),36*Gd+1,36*Gd+34); BWX[Gd][0].append(f"w2_{t}"); BWX[Gd+1][1].append(f"r2_{t}"); fr[s]=Gd+1
    if OPT["pf"]:
        k=0
        while k<15-OPT["pfa"] and OPT["pf0"]+k*OPT["pfs"]<15.8:
            g=int(36*(OPT["pf0"]+k*OPT["pfs"])); S.fit([pft,f"s_add_u32 s{XBS}, s{XBS}, {80*4096}"],g,g+6); k+=1
        pfl=15-OPT["pfa"]-k
    b=36*7; S.fit(epi(0,7),b+16,b+22); S.fit(epi(0,6),b+22,b+29); S.fit(epi(0,5),b+29,b+36)
    b=36*8; S.fit(epi(0,4)+epi(0,3)+epi(0,2),b,b+17); S.fit(epi(0,1)+epi(0,0)+[f"s_add_u32 s{C0}, s{C0}, 16384"],b+17,b+28)
    S.fit(yflag(0),36*11,36*11+20)
    tpre,td1,td2,tz,tb=tprep(T,LH,XBR); Gt=OPT["xtd"]; assert 7<=Gt and Gt+OPT["xtl"]<=13 and not (8 in (Gt+OPT["xtl"],))
    S.fit(dsetup()+state["tabs"]+tpre,0,36*7)
    for k,d in enumerate((td2,td1)): S.fit(d[:1],36*Gt+19+4*k,36*Gt+20+4*k); S.fit(d[1:],36*Gt+21+4*k,36*Gt+22+4*k)
    S.fit(tz,36*Gt,36*(Gt+1)); Gt+=OPT["xtl"]; BWX[Gt][0]+=["tf","ti"]; BWX[Gt][1].append("tz")
    S.fit(tb,36*Gt+1,36*Gt+34); BWX[Gt+1][1].append("tw")
    S.fit(yfsetup(OC)+tagsetup()+idsetup()+tsetup(),max(36*(Gt+1),36*12),36*15-1)
    b=36*15; S.fit(epi(1,7),b+16,b+22); S.fit(epi(1,6),b+22,b+29); S.fit(epi(1,5),b+29,b+36)
    ins=[] if late else flat([wdma(2,t,s*SLOT) for t,s in sorted(state["inslot"].items())])
    S.fit(ins,b+1,b+36)
    S.fit(absetup()+[f"v_add_u32 v{RH}, {RING}, v{L16}",f"v_add_u32 v{RH+1}, {RING+3*RS}, v{L16}"]+[f"v_subrev_u32 v{RB+k}, {XS0}, v{RB+k}" for k in range(2)]+state["first"],b,b+36)
    S.check()
    for G in range(1,16):
        vt,lt=BWX[G]; lt=lt+[f"f{G}" if asc(G) else f"g{G}"]
        S.add(36*G-1,f"@W {','.join(vt) or '-'} {','.join(lt)}\ns_barrier",front=True)
        if asc(G): S.add(36*G+9,f"@W - g{G}",front=True)
    LOG("; conv overload"," ".join(str(S.over(36*G,36*G+36)) for G in range(16)),"late tiles",late,"state",state["inregs"],state["inslot"],file=sys.stderr)
    a("@W - g0"); stamp(a,13,"K")
    def hook(a,i):
        if i%72==0: stamp(a,1+i//72,"B")
    S.emit(a,0,None,hook)
    for q in range(4,-1,-1): a.extend(epi(1,q))
    stamp(a,7)
    if OPT["pf"]:
        for k in range(pfl): a(pft+f"\ns_add_u32 s{XBS}, s{XBS}, {80*4096}")
    if late:
        while late:
            bt,late=late[:NW],late[NW:]
            for s,t in enumerate(bt): a.extend(wdma(2,t,s*SLOT))
            a(f"@W w2_{bt[-1]}\ns_barrier")
            for s,t in enumerate(bt): a.extend(slot_rd(2,t,s))
            a("@W - 0\ns_barrier")
        for t,s in sorted(state["inslot"].items()): a.extend(wdma(2,t,s*SLOT))
    a(f"s_mov_b32 s{US}, {OOB}\ns_mov_b32 s{FUS}, {OOB}\ns_mov_b32 s{PKO}, 0")
    if OPT["u1p"]<32: a(poll_issue("p1",PA))
    a("@W - 0\ns_branch L_D")

def check_m0(segs):
    cur=None
    for seg in segs:
        for ins in seg.L:
            if "m0" in ins.w: cur=ins.text.strip()
            m=re.search(r" lds ; @(\S+)",ins.text)
            if m and m.group(1) in M0EXP and m.group(1) not in DUP: assert cur==M0EXP[m.group(1)].strip(),(ins.text,cur,M0EXP[m.group(1)])
DUP=set()
def build(**kw):
    OPT.update(kw); lds_layout()
    hdr=open("cdna_kernels/"+NAME+".s.ref").read().split("; Override launch")[0]
    segs=s0,sG,sB,sS,sX=[Asm() for _ in range(5)]
    p0(s0); ga=roleG_A(sG); nc=len(COLD); prev=None
    for it in range(3):
        del COLD[nc:]; S,pro,rd0,tail,state=mainstream(*ga,prev); prev=state["prev"]
    emit_main(sB,sS,S,pro,rd0,tail)
    check_m0([sG,sB,sS]); M0EXP.clear()
    roleX(sX,state); check_m0([sX])
    for seg in segs:
        for ins in seg.L:
            m=re.search(r";\s*@(\S+)",ins.text)
            if OPT.get("drop"):
                if ins.kind=="vmem" and m and re.fullmatch(OPT["drop"],m.group(1)): ins.__init__("")
                elif ins.text.startswith("@W"):
                    p=ins.text.split(); tg=[t for t in p[1].split(",") if not re.fullmatch(OPT["drop"],t)]
                    ins.__init__(" ".join(["@W",",".join(tg) or "-"]+p[2:]))
            if OPT.get("xcut") and seg is sX and ins.kind=="mfma" and (id(ins)>>6)%OPT["xcut"]==0: ins.__init__("s_nop 0")
            if OPT.get("xdrop") and seg is sX:
                if ins.kind=="vmem" and m and re.fullmatch(OPT["xdrop"],m.group(1)): ins.__init__("")
            if OPT.get("nomf") and ins.kind=="mfma" and (OPT["nomf"]==1 or (id(ins)>>6)%OPT["nomf"]): ins.__init__("s_nop 0")
            if OPT.get("nt") and ins.kind=="vmem" and m and re.fullmatch(OPT["nt"],m.group(1)):
                ins.__init__(ins.text.replace(" lds ;"," nt lds ;") if " lds ;" in ins.text else ins.text.replace(" ;"," nt ;"))
    LOG("; waits without producer on the X path:",resolve_vm([[s0,sG,sB,sS],[s0,sX,sS]],lenient=(1,)),file=sys.stderr)
    a=Asm(); a.L=flat([s.L for s in segs]); c=Asm(); c.extend(COLD)
    if OPT["iw"]:
        k=[i for i,x in enumerate(a.L) if x.text==".p2align 12"][0]; a.L=a.L[:k]+c.L+a.L[k:]
    else: a.L+=c.L
    a("L_end:"); n0=len(a.L); a.fix()
    LOG("; nops inserted",len(a.L)-n0,file=sys.stderr)
    if OPT["iw"]:
        def disp(cnt):
            d=Asm()
            for nm in "GXS":
                d(f"L_wc_{nm}:")
                for w in range(4):
                    tgt=f"L_pl_{nm}_{w}" if w<cnt[nm] else "L_wret"
                    d(f"s_cmp_eq_u32 s3, {w}\ns_cbranch_scc1 {tgt}" if w<3 else f"s_branch {tgt}")
            d("L_wret:\ns_setpc_b64 s[10:11]")
            return d.L
        k=[i for i,x in enumerate(a.L) if x.text==".p2align 12"][0]
        L,cnt=page_landings(a.L[:k]+disp(dict(G=0,X=0,S=0))+a.L[k:],"L_org",[("G","L_segG","L_D"),("S","L_D","L_segE"),("X","L_segX","L_end")])
        n=len(disp(cnt)); a.L=L[:k]+disp(cnt)+L[k+n:]
        LOG("; landings",cnt,file=sys.stderr)
    return (hdr+"; @launch grid=(256,1,1) block=(256,1,1) lds=163840\n"+'.amdgcn_target "amdgcn-amd-amdhsa--gfx950"\n.text\n'+a.text()
            +'.section .rodata,"a"\n'+kdesc(KN,256,256))
if __name__=="__main__":
    kw={}
    for x in sys.argv[2:]:
        k,v=x.split("=",1)
        kw[k]=int(v) if re.fullmatch(r"-?\d+",v) else float(v) if re.fullmatch(r"-?\d+\.\d+",v) else v
    try: open(sys.argv[1],"w").write(build(**kw))
    finally:
        for k,v in LOGS.items(): print(k,v,file=sys.stderr)
```

```python
import sys, struct, re
from lib8 import *
from layout8 import *
NAME="recurrent_scan__ssm_conv_h3__mixer_token_mlp__prompt"
KN=NAME+"_kernel"
OPT=dict(stamps=0, spinmax=100000, sl=12, slt=0, sl_pkX=16, sl_p1=24, cpl=6, hrot=0, w1w='3_3_3_7', w2w='4_4_4_4_2', w2p=1, Lp=600, ostore="sc1", iw=1, xbar=0, ft=0,
         c3=0, c3r=0, c3n=8, nw=4, xs_=3, nA0=2, nA1=1, aseq='iiiiGSdddpd', pseq='hhhhhh', fr=74, fw=50, hold=60, hw=60, hw1=110, hc=64, cap=290, rw=4, mr=32, dw=100, ncold=0, um=1, kvx=1, kvd=4, kva=6, kvl=3, kvf=6, gx=3, ue=0, g2x=3, g2e=34.4, gn=7, d2=34, cm=0,
         w20=11, w2e='13.0_15.0_20.0_20.0_21.0_23.0_23.2_23.2_24.0_25.0_26.0_27.4_28.4_29.4_30.0_31.0_32.5_33.5', jen=6, clump=0, cfrac=100,
         bs='16.5_16.7_16.9_19.6_20.5_21.5', bl='21.1_27.6', bc='23.4_29.7', g1e=25.0, fu='27_34', kp=13.5, kc=15.2, tb=18,
         u1p=32.1, u1c=33.0, u2p=38.2, u2c=40.5, fy=39, yp=44.2, yc=45.7, yb=48, xl='41.6_41.8_41.9_39.4',
         xs='41.6_42.2_47.7_44.5_51.8_55.0_56.2', op0=50.0, cl=49.9, cc=51.4, ce=55.3, o1l=52.8, o1c=56.2, o2l=59.0, o2c=62.4, ut=0, ote=0, xt0=0, xlat=3, xw=18, xn=3, xlh=3, xp=2, xa=2, xm=2, xtd=10, xtl=3, pf=0, pf0=0.3, pfs=1.25, pfa=0, Lh=350, Lu=310, Lm=850, Lc=1100, Ls=1000, Lw=300)
LOGS={}
def LOG(k,*a,file=None): LOGS[k]=' '.join(str(x) for x in a)
def f2h(x): return "0x%08x"%struct.unpack("<I",struct.pack("<f",x))[0]
S_SSM,S_D,S_W1,S_B1,S_W2,S_B2,S_OUT,S_DBG,S_WS=24,26,30,32,34,36,38,40,42
WS="s[44:47]"; RW1="s[48:51]"; RW2="s[52:55]"; RA="s[56:59]"; RB_="s[60:63]"; RC="s[64:67]"
NONCE,GAM,N1,M1,LW,LR,M2,KQ=16,17,18,19,20,21,22,23
US,PKO,PKW,CH,LA,LB,XBS,XBR,FUS,TM,YS,CM=30,31,35,34,40,41,42,43,32,33,36,26
KT,K2=68,84
OFF,MB,IB=68,77,83
NB_SD=2048*576*2
SLOT=16384; RS=12288
KL=131072; VL=KL+12672; LN_ST=VL+9216; LN_STR=1216
def lds_layout():
    global NW,NH,TE,RING,TI,TO,MBX,CV_F0
    NW=OPT["nw"]; NH=10-NW; TE=NW*SLOT; RING=TE+24576; TI=TE+4640; TO=TI+4096; MBX=TE
    CV_F0=max(CV_IMG,TO+4128-CV_BUF); assert RING+NH*RS<=163840 and CV_F0<=TE
OOB="0x40000000"
def P(r,k="v"): return f"{k}[{r}:{r+1}]"
def Q(r,k="v"): return f"{k}[{r}:{r+3}]"
def flat(x): return sum(x,[])
def sp(x): return flat([lines(i) for i in x])
def flts(k): return [float(x) for x in str(OPT[k]).split('_')]
def ints(k): return [int(x) for x in str(OPT[k]).split("_")]
VW1,VW2,RB,RH,VH,L16,UL,FZ,NV,FW,PA,PB,BBC=4,8,12,16,18,21,22,23,24,25,26,28,30
AB=4; TG=(253,255,FZ,0)
HF,AF,AO1,BU,TA=32,64,112,128,112
XO,XC,ST,B2,YA,YR,DR,BIAS=144,145,146,152,155,252,30,148; PK_=142
W2V=156; NV2=6
def w2reg(t): return ("v",W2V+16*t) if t<NV2 else ("a",16*(t-NV2)) if t<14 else ("a",192+16*(t-14))

def stamp(a,c,fine=None):
    if OPT.get("probe") is not None:
        if fine is None and c==OPT["probe"]: a("s_memrealtime s[28:29]\ns_waitcnt lgkmcnt(0)")
        return
    if OPT.get("fine") and fine!=OPT["fine"] and c!=14: return
    if fine and not OPT.get("fine"): return
    if OPT["stamps"]:
        a(f"s_memrealtime s[28:29]\ns_memtime s[0:1]\ns_waitcnt lgkmcnt(0)\nv_writelane_b32 v254, s28, {c}\nv_writelane_b32 v254, s0, {16+c}")
def stl(c,f):
    t=Asm(); stamp(t,c,f); return [i.text for i in t.L]
def stamps_out(a):
    a(f"s_lshl_b32 s4, s2, 2\ns_add_u32 s4, s4, s3\ns_lshl_b32 s4, s4, 7\ns_add_u32 s4, s4, {WS_STAMP}\nv_lshlrev_b32 v255, 2, v2\ns_mov_b64 exec, 0xffffffff")
    a(f"buffer_store_dword v254, v255, {WS}, s4 offen")

def unpack(dst,src):
    h,l=f"v_and_b32 v{dst+1}, 0xffff0000, v{src}", f"v_lshlrev_b32 v{dst}, 16, v{src}"
    return [l,h] if src==dst+1 else [h,l]
def reduce32(r,t):
    L=[f"v_add_f32_dpp v{r}, v{r}, v{r} row_ror:{sh} row_mask:0xf bank_mask:0xf" for sh in (8,4,2,1)]
    return L+[f"v_mov_b32 v{t}, v{r}", f"v_permlane16_swap_b32 v{r}, v{t}", f"v_add_f32 v{r}, v{r}, v{t}"]
def rbf(r): return [f"v_cvt_pk_bf16_f32 v{r}, v{r}, v{r}", f"v_lshlrev_b32 v{r}, 16, v{r}"]
NEG1="op_sel_hi:[1,0] neg_lo:[0,1] neg_hi:[0,1]"
def ln_fused(X,T,M,RS_,D,ST_):
    L=[f"v_pk_add_f32 {P(T+2*i)}, {P(X+4*i)}, {P(X+4*i+2)}" for i in range(4)]
    L+=[f"v_pk_add_f32 {P(T)}, {P(T)}, {P(T+2)}", f"v_pk_add_f32 {P(T+4)}, {P(T+4)}, {P(T+6)}", f"v_pk_add_f32 {P(T)}, {P(T)}, {P(X+16)}", f"v_pk_add_f32 {P(T)}, {P(T)}, {P(T+4)}"]
    L+=[f"v_add_f32 v{M}, v{T}, v{T+1}"]+reduce32(M,M+1)+[f"v_mul_f32 v{M}, 0x3ae38e39, v{M}"]
    L+=[f"v_pk_add_f32 {P(X+2*j)}, {P(X+2*j)}, {P(M)} {NEG1}" for j in range(9)]
    L+=[f"v_pk_mul_f32 {P(T)}, {P(X)}, {P(X)}", f"v_pk_mul_f32 {P(T+2)}, {P(X+2)}, {P(X+2)}"]
    L+=[f"v_pk_fma_f32 {P(T+2*(j&1))}, {P(X+2*j)}, {P(X+2*j)}, {P(T+2*(j&1))}" for j in range(2,9)]
    L+=[f"v_pk_add_f32 {P(T)}, {P(T)}, {P(T+2)}", f"v_add_f32 v{RS_}, v{T}, v{T+1}"]+reduce32(RS_,RS_+1)
    L+=[f"v_mul_f32 v{RS_}, 0x3ae38e39, v{RS_}"]
    L+=[f"v_cvt_pk_bf16_f32 v{T}, v{M}, v{RS_}", f"v_lshlrev_b32 v{ST_}, 16, v{T}", f"v_and_b32 v{T}, 0xffff0000, v{T}",
        f"v_add_f32 v{T}, 0x3727c5ac, v{T}", f"v_sub_f32 v{M}, v{M}, v{ST_}"]+rbf(T)+[f"v_sqrt_f32 v{T}, v{T}"]+rbf(T)+[f"v_rcp_f32 v{ST_+1}, v{T}"]
    L+=[f"v_mul_f32 v{M}, v{M}, v{ST_+1}", f"v_mul_f32 v{RS_}, v{RS_}, v{ST_+1}", f"v_mul_f32 v{RS_}, v{RS_}, v{ST_+1}",
        f"v_cvt_pk_bf16_f32 v{T}, v{M}, v{RS_}", f"v_lshlrev_b32 v{T+1}, 16, v{T}", f"v_and_b32 v{T}, 0xffff0000, v{T}",
        f"v_add_f32 v{T}, 0x3727c5ac, v{T}", f"v_sub_f32 v{M}, v{M}, v{T+1}"]+rbf(T)+[f"v_sqrt_f32 v{T}, v{T}"]+rbf(T)+[f"v_rcp_f32 v{T}, v{T}"]
    L+=[f"v_mul_f32 v{RS_}, v{ST_+1}, v{T}", f"v_mul_f32 v{M}, v{M}, v{T}"]
    L+=[f"v_pk_fma_f32 {P(X+2*j)}, {P(X+2*j)}, {P(RS_)}, {P(M)} op_sel_hi:[1,0,0]" for j in range(9)]
    L+=[f"v_cvt_pk_bf16_f32 v{D+j}, v{X+2*j}, v{X+2*j+1}" for j in range(9)]
    return L
def s_dtoff(d,g,t):
    return [f"s_mul_i32 s{t}, s{g}, 43", f"s_lshr_b32 s{t}, s{t}, 7", f"s_add_u32 s{d}, s{g}, s{t}", f"s_mul_i32 s{t}, s{t}, 3", f"s_sub_u32 s{t}, s{g}, s{t}", f"s_min_u32 s{t}, s{t}, 1",
            f"s_add_u32 s{d}, s{d}, s{t}", f"s_lshl_b32 s{d}, s{d}, 8"]
def srdl(s,lo,n):
    t=Asm(); srd(t,s,lo,n); return [i.text for i in t.L]

M0EXP={}
def dma(m0, ins):
    for x in ins:
        m=re.search(r" lds ; @(\S+)",x)
        if m: M0EXP[m.group(1)]=m0
    return [m0]+ins
def wdma(kind,t,base):
    so=f"s_mul_i32 s14, s{KT+t}, 6" if kind==1 else f"s_lshl_b32 s14, s{K2+t}, 1"
    v,r=(VW1,RW1) if kind==1 else (VW2,RW2)
    return dma(f"s_add_u32 m0, s{LW}, {base}",[so]+[f"buffer_load_dwordx4 v{v+i}, {r}, s14 offen offset:{1024*i} lds ; @w{kind}_{t}" for i in range(4)])
def wreads(kind,t,rb,off):
    k,r0=("a",16*t) if kind==1 else w2reg(t)
    return [f"ds_read_b64_tr_b16 {P(r0+8*ks+4*ft+2*hf,k)}, v{rb+ft} offset:{off+ks*8192+hf*1024} ; @r{kind}_{t}" for ks in range(2) for ft in range(2) for hf in range(2)]
def slot_rd(kind,t,s): return wreads(kind,t,RB+2*(s>>2),(s&3)*SLOT)
def rbsetup(dst,base):
    return ["v_bfe_u32 v1, v2, 2, 2","v_lshrrev_b32 v3, 4, v2","v_lshl_add_u32 v31, v3, 3, v1","v_lshlrev_b32 v31, 8, v31","v_and_b32 v3, 1, v3","v_lshl_add_u32 v1, v3, 2, v1",
            "v_and_b32 v3, 3, v2","v_lshl_add_u32 v31, v3, 3, v31","s_lshl_b32 s7, s3, 1","v_xor_b32 v1, s7, v1",f"v_lshl_add_u32 v{dst}, v1, 5, v31"]+([f"v_add_u32 v{dst}, {base}, v{dst}"] if base else [])+[f"v_xor_b32 v{dst+1}, 32, v{dst}"]
def w2order(w,k0):
    if not k0:
        od=[[] for m in range(4)]; b=0
        for W in [int(x) for x in str(w).split("_")]:
            for m in range(4): od[m]+=[b+(m*W//4+i)%W for i in range(W)]
            b+=W
        assert b==18; return od
    od=[[4*k+m for k in range(k0)] for m in range(4)]; new=4*k0
    for st in range(k0,18):
        old=new
        for m in range(4):
            if m==st%4 and new<18: od[m].append(new); new+=1
            else: od[m].append(min(t for t in range(old) if t not in od[m]))
    return od
def w2setup(X=False):
    L=["v_lshrrev_b32 v1, 4, v2","v_and_b32 v3, 15, v2","v_lshlrev_b32 v31, 1, v1","v_xor_b32 v3, v3, v31","v_lshlrev_b32 v1, 12, v1","v_and_b32 v31, 7, v3","v_lshl_add_u32 v1, v31, 4, v1",
       "s_lshr_b32 s4, s3, 1","s_lshl_b32 s4, s4, 2","s_and_b32 s5, s3, 1","s_add_u32 s4, s4, s5","s_lshl_b32 s4, s4, 15","v_add_u32 v1, s4, v1",
       f"v_mov_b32 v31, s{LA}",f"v_mov_b32 v{VW2+3}, s{LB}",
       f"v_cmp_lt_u32 vcc, 7, v3\nv_cndmask_b32 v{VW2}, v31, v{VW2+3}, vcc\nv_cndmask_b32 v{VW2+2}, v{VW2+3}, v31, vcc",
       f"v_add_u32 v{VW2}, v{VW2}, v1",f"v_add_u32 v{VW2+2}, v{VW2+2}, v1",f"v_add_u32 v{VW2+1}, {65536-1024}, v{VW2}",f"v_add_u32 v{VW2+2}, {16384-2048}, v{VW2+2}",f"v_add_u32 v{VW2+3}, {65536-1024}, v{VW2+2}"]
    od=w2order(OPT["w2w"],OPT["w2p"]); ox=w2order(OPT["xw"],0) if (X and OPT["xw"]) else od
    for k in range(3):
        c=[sum(o[6*k+i]<<(5*i) for i in range(6)) for o in ox+od[3:]]
        L+=[f"s_mov_b32 s4, {c[0]}"]+[f"s_cmp_eq_u32 s{M2}, {m}\ns_cselect_b32 s4, {c[m]}, s4" for m in (1,2,3)]
        if ox is not od: L+=[f"s_cmp_lt_u32 s2, {28*8}\ns_cselect_b32 s4, {c[4]}, s4"]
        L+=[f"s_bfe_u32 s{K2+6*k+i}, s4, {(5<<16)|(5*i):#x}" for i in range(6)]
    L+=[f"s_mul_i32 s4, s{KQ}, 18"]+flat([[f"s_add_u32 s{K2+i}, s{K2+i}, s4",f"s_lshl_b32 s{K2+i}, s{K2+i}, 17"] for i in range(18)])
    return L

COLD=[]
def poll_issue(tag,v,off=0): return f"buffer_load_dword v{v+1}, v{v}, {WS}, 0 offen offset:{off} sc1 ; @{tag}"
def poll_check(tag,v,off=0):
    sl=OPT.get("sl_"+tag,OPT["sl"]); sl=f"s_sleep {sl}\n" if sl else ""
    COLD.append(f"L_rs_{tag}:\ns_mov_b32 s13, 0\nL_rt_{tag}:\ns_mov_b64 exec, vcc\n{sl}"
            f"buffer_load_dword v{v+1}, v{v}, {WS}, 0 offen offset:{off} sc1\ns_waitcnt vmcnt(0)\nv_cmp_ne_u32 vcc, s{NONCE}, v{v+1}\ns_cbranch_vccz L_rx_{tag}\n"
            f"s_add_u32 s13, s13, 1\ns_cmp_lt_u32 s13, {OPT['spinmax']}\ns_cbranch_scc1 L_rt_{tag}\nL_rx_{tag}:\ns_mov_b64 exec, -1\ns_branch L_ok_{tag}")
    return [f"@W {tag}", f"v_cmp_ne_u32 vcc, s{NONCE}, v{v+1}\ns_cbranch_vccnz L_rs_{tag}\nL_ok_{tag}:"]
def tagsetup():
    L=[f"s_mul_i32 s4, s{NONCE}, 0x9e3779b1","s_lshr_b32 s5, s4, 15","s_xor_b32 s4, s4, s5","s_mul_i32 s4, s4, 0x85ebca77","s_lshr_b32 s5, s4, 13","s_xor_b32 s4, s4, s5",f"s_mov_b32 s{TM}, 0x10001",
       "v_and_b32 v1, 3, v2","v_lshlrev_b32 v1, 3, v1","v_lshrrev_b32 v1, v1, s4"]
    return L+flat([[f"v_bfe_u32 v31, v1, {2*k+1}, 1",f"v_bfe_u32 v{TG[k]}, v1, {2*k}, 1",f"v_lshl_or_b32 v{TG[k]}, v31, 16, v{TG[k]}"] for k in range(4)])
SB=146; STA=14
def idsetup():
    return ["v_and_b32 v1, 15, v2","v_lshrrev_b32 v31, 4, v2","v_lshlrev_b32 v31, 2, v31","v_sub_u32 v1, v1, v31","v_and_b32 v31, 1, v1","v_lshlrev_b32 v31, 4, v31","s_movk_i32 s4, 0x3f80","v_lshlrev_b32 v31, v31, s4","v_ashrrev_i32 v1, 1, v1",
            f"v_cmp_eq_u32 vcc, 0, v1\nv_cndmask_b32 v{SB+2}, 0, v31, vcc",f"v_cmp_eq_u32 vcc, 1, v1\nv_cndmask_b32 v{SB+3}, 0, v31, vcc"]+[f"v_mov_b32 v{SB+k}, 0" for k in (0,1,4,5)]
def madd(acc,m,h,inD): return f"v_mfma_f32_16x16x32_bf16 {Q(acc)}, {Q(130-2*h,'a') if inD else Q(SB+2-2*h)}, {Q(m)}, {Q(acc)}"
def pack(d,A): return [f"v_cvt_pk_bf16_f32 v{d+k}, v{A+2*k}, v{A+2*k+1}" for k in range(4)]+[f"v_bfi_b32 v{d+k}, s{TM}, v{TG[k]}, v{d+k}" for k in range(4)]
def tagged(tag,loads,msgs):
    R=[m+k for m in msgs for k in range(4)]; n=len(R)
    x=[f"v_xor_b32 v{r}, v{TG[k&3]}, v{r}" for k,r in enumerate(R)]
    ck=x[:4]+[f"v_or3_b32 v1, v{R[0]}, v{R[1]}, v{R[2]}"]+flat([x[k+1:k+3]+[f"v_or3_b32 v1, v{R[k]}, v{R[k+1]}, v1"] for k in range(3,n-1,2)])+[f"v_or_b32 v1, v{R[n-1]}, v1",f"v_and_b32 v1, s{TM}, v1"]
    assert sorted(l for l in ck if "xor" in l)==sorted(x)
    COLD.append(f"L_rs_{tag}:\ns_mov_b32 s13, 0\nL_rt_{tag}:\ns_add_u32 s13, s13, 1\ns_cmp_lt_u32 s13, {OPT['spinmax']}\ns_cbranch_scc0 L_ok_{tag}\n"+(f"s_sleep {OPT['slt']}\n" if OPT["slt"] else "")+"\n".join(x.split(";")[0] for x in loads)+"\ns_waitcnt vmcnt(0)\n"
                +"\n".join(ck)+f"\nv_cmp_ne_u32 vcc, 0, v1\ns_cbranch_vccnz L_rt_{tag}\ns_branch L_ok_{tag}")
    return [f"@W {tag}"]+ck+[f"v_cmp_ne_u32 vcc, 0, v1\ns_cbranch_vccnz L_rs_{tag}\nL_ok_{tag}:"]
def flag4(v,base):
    return [f"v_and_b32 v{v+1}, 3, v{v}", f"v_lshrrev_b32 v{v}, 2, v{v}", f"v_lshlrev_b32 v{v}, 7, v{v}", f"v_lshl_add_u32 v{v}, v{v+1}, 2, v{v}", f"v_add_u32 v{v}, {base}, v{v}"]
def kvpoll_addr(v): return ["s_lshl_b32 s6, s3, 6", f"v_add_u32 v{v}, s6, v2"]+flag4(v,F1K)
def warm(name):
    if not OPT["iw"]: return []
    return [f"s_mov_b64 exec, 0\ns_call_b64 s[10:11], L_wc_{name}\ns_mov_b64 exec, -1"]

def c3touch():
    r0,nr=OPT["c3r"],OPT["c3n"]
    return srdl(60,S_W1,2048*4608*2)+[f"s_mul_i32 s4, s{KQ}, 18","s_add_u32 s4, s4, 4","s_andn2_b32 s4, s4, 7","s_add_u32 s4, s4, 3","s_lshl_b32 s4, s4, 7",
        "s_and_b32 s7, s2, 1","s_lshl_b32 s7, s7, 10","s_lshr_b32 s8, s2, 3","s_lshl2_add_u32 s8, s8, s3","s_add_u32 s7, s7, s8",f"s_add_u32 s7, s7, {r0}","s_mul_i32 s7, s7, 9216","s_add_u32 s4, s4, s7",
        f"s_cmp_eq_u32 s{KQ}, 1","s_cselect_b32 s8, 2, 1","v_and_b32 v1, 3, v2","v_min_u32 v1, s8, v1","v_lshrrev_b32 v3, 2, v2",f"v_min_u32 v3, {nr-1}, v3",f"v_mul_u32_u24 v3, {128*9216}, v3","v_lshl_add_u32 v1, v1, 10, v3",
        f"buffer_load_dword v255, v1, {RB_}, s4 offen ; @c3"]
XA,KD,KD2,TAP,HSA,LNW,HRD,KRD,TR=215,217,218,219,212,220,221,222,138
def p0(a):
    a(f".globl {KN}\n.p2align 8\n.type {KN},@function\n{KN}:")
    a("s_cmp_lt_u32 s2, 256\ns_cbranch_scc0 L_exit")
    a("s_load_dwordx2 s[56:57], s[0:1], 0\ns_load_dwordx2 s[48:49], s[0:1], 8\ns_load_dwordx2 s[52:53], s[0:1], 16\ns_load_dwordx2 s[60:61], s[0:1], 24")
    a("s_load_dwordx4 s[24:27], s[0:1], 32\ns_load_dwordx2 s[30:31], s[0:1], 56\ns_load_dwordx8 s[32:39], s[0:1], 64\ns_load_dwordx4 s[40:43], s[0:1], 96\ns_memrealtime s[12:13]")
    a("v_lshrrev_b32 v1, 6, v0\nv_and_b32 v2, 63, v0")
    a(f"s_getpc_b64 s[6:7]\nL_pc:\ns_lshr_b32 s4, s2, 1\ns_and_b32 s4, s4, 124\nv_add_u32 v3, s4, v1\nv_lshl_add_u32 v3, v2, 7, v3\nv_lshlrev_b32 v3, 7, v3")
    a(f"v_min_u32 v3, L_end-L_pc-4, v3\ns_mov_b64 exec, {(1<<OPT['cpl'])-1}\nglobal_load_dword v255, v3, s[6:7] ; @code\ns_mov_b64 exec, -1\nv_readfirstlane_b32 s3, v1")
    a(f"s_and_b32 s4, s2, 7\ns_lshr_b32 s5, s2, 3\ns_lshl_b32 s4, s4, 5\ns_add_u32 s{GAM}, s4, s5")
    a(f"v_lshrrev_b32 v3, 5, v0\nv_and_b32 v31, 31, v0\nv_mul_u32_u24 v{XA}, 1152, v3\nv_mad_u32_u24 v{XA}, v31, 12, v{XA}\ns_mul_i32 s15, s{GAM}, 9216")
    kvx=OPT["kvx"]
    if kvx: a(f"v_lshlrev_b32 v{L16}, 4, v2")
    else: a(f"s_mul_i32 s4, s3, 3072\ns_add_u32 s5, s4, s15\ns_sub_u32 s5, s5, 3456\nv_lshlrev_b32 v{L16}, 4, v2\nv_add_u32 v{KD}, s5, v{L16}\nv_add_u32 v{KD2}, 1024, v{KD}")
    if not kvx: a(f"s_add_u32 s4, s4, {KL}\ns_lshl_b32 s5, s3, 11\ns_add_u32 s11, s5, s15\ns_add_u32 s5, s5, {VL}\ns_mov_b32 m0, s4")
    for r,nb in ((56,NB_SD),(48,NB_SD),(52,NB_SD),(60,576*8)): a(f"s_mov_b32 s{r+2}, {nb}\ns_mov_b32 s{r+3}, 0x20000")
    a(f"v_lshlrev_b32 v{TAP}, 3, v0\ns_movk_i32 s10, 4096")
    a("s_waitcnt lgkmcnt(0)")
    stamp(a,1,"P")
    if OPT.get("lat"):
        kind,ptr,off=OPT["lat"].split("_"); ptr=int(ptr); off=int(off)<<20
        a(f"s_load_dwordx2 s[68:69], s[0:1], {ptr}\ns_waitcnt lgkmcnt(0)\ns_mov_b32 s70, 0x10000000\ns_mov_b32 s71, 0x20000\ns_lshl_b32 s72, s2, 2\ns_add_u32 s72, s72, s3\ns_lshl_b32 s72, s72, 10\ns_add_u32 s72, s72, {off}\nv_mov_b32 v100, 0")
        a("s_cmp_eq_u32 s2, 77\ns_cselect_b32 s72, s72, 0x40000000\ns_memtime s[74:75]\ns_waitcnt lgkmcnt(0)")
        for k in range(4): a(("buffer_load_dword v101, v100, s[68:71], s72 offen sc1" if kind=="l" else "buffer_store_dword v100, v100, s[68:71], s72 offen sc1")+"\ns_add_u32 s72, s72, 128\ns_waitcnt vmcnt(0)")
        a("s_memtime s[76:77]\ns_waitcnt lgkmcnt(0)\ns_sub_u32 s29, s76, s74\ns_lshr_b32 s29, s29, 2\ns_cmp_eq_u32 s2, 77\ns_cselect_b32 s29, s29, 0")
    for j in range(3): a(f"buffer_load_dwordx3 v[{64+4*j}:{66+4*j}], v{XA}, {RA}, s15 offen offset:{384*j} ; @x")
    if not kvx:
        if OPT["xbar"]: a("s_barrier")
        a(f"buffer_load_dwordx4 v{KD}, s[48:51], 0 offen lds ; @kv\ns_add_u32 m0, s4, 1024\ns_cmp_eq_u32 s3, 3")
        a(f"buffer_load_dwordx4 v{KD2}, s[48:51], 0 offen lds ; @kv\nbuffer_load_dwordx4 v{KD2}, s[48:51], 0 offen offset:1024 lds ; @kv\ns_cbranch_scc1 L_xld\nL_nox:\ns_mov_b32 m0, s5")
        COLD.insert(0,f"L_xld:\ns_mov_b64 exec, 0xffffff\nbuffer_load_dwordx4 v{KD2}, s[48:51], 0 offen offset:2048 lds\ns_mov_b64 exec, -1\ns_mov_b32 m0, s5\nbuffer_load_dwordx4 v{L16}, s[52:55], s11 offen offset:2048 lds\ns_branch L_nox")
        a(f"buffer_load_dwordx2 {P(TR)}, v{TAP}, {RB_}, 0 offen ; @kv")
        a(f"buffer_load_dwordx4 v{L16}, s[52:55], s11 offen lds ; @kv\nbuffer_load_dwordx4 v{L16}, s[52:55], s11 offen offset:1024 lds ; @kv")
        a(f"buffer_load_dwordx2 {P(TR+2)}, v{TAP}, {RB_}, 0 offen offset:2048 ; @kv\nbuffer_load_dwordx2 {P(TR+4)}, v{TAP}, {RB_}, s10 offen ; @kv")
    srd(a,64,S_DBG,256)
    if OPT["stamps"]: a("v_writelane_b32 v254, s12, 0")
    a(f"s_or_b32 s12, s12, 1\nv_or_b32 v1, s2, v0\nv_lshlrev_b32 v1, 8, v1\nv_mov_b32 v3, s12\nbuffer_store_dword v3, v1, {RC}, 0 offen sc1 ; @pub")
    stamp(a,2,"P")
    srd(a,44,S_WS,WS_END)
    if kvx: a(f"s_mov_b64 s[{XBS}:{XBS+1}], s[{S_W2}:{S_W2+1}]")
    else: srd(a,52,S_W2,4608*4096)
    if OPT["ft"]:
        a(f"s_lshr_b32 s4, s{GAM}, 2\ns_lshl_b32 s4, s4, 7\ns_add_u32 s4, s4, {F1H}\nv_and_b32 v1, 1, v2\nv_mul_u32_u24 v1, {F1K-F1H}, v1\nbuffer_load_dword v255, v1, {WS}, s4 offen {'sc1' if OPT['ft']==2 else ''} ; @ft")
    a(f"s_and_b32 s5, s2, 7\ns_lshr_b32 s6, s2, 3\ns_and_b32 s{M2}, s6, 3\ns_lshr_b32 s{KQ}, s5, 1\ns_lshl_b32 s{LW}, s3, 12\ns_mul_i32 s{LR}, s3, 3072\ns_add_u32 s{LR}, s{LR}, {RING}")
    a(f"s_mul_i32 s{CH}, s5, 72\ns_add_u32 s{CH}, s{CH}, s6")
    a(f"s_lshr_b32 s7, s6, 2\ns_lshl_b32 s8, s7, 1\ns_and_b32 s4, s5, 1\ns_lshl_b32 s4, s4, 4")
    for r,c,k in ((LA,3,0),(LB,11,1)):
        a(f"s_add_u32 s9, s8, {k}\ns_cmp_ge_u32 s9, 3\ns_addc_u32 s{r}, s9, 0\ns_cmp_ge_u32 s9, 10\ns_addc_u32 s{r}, s{r}, 0\ns_cmp_eq_u32 s7, 7\ns_cselect_b32 s{r}, {c}, s{r}\ns_add_u32 s{r}, s{r}, s4\ns_lshl_b32 s{r}, s{r}, 7")
    a(f"v_min_u32 v{FW}, 1, v0\nv_lshlrev_b32 v{FW}, 30, v{FW}\nv_min_u32 v{FZ}, 1, v2\nv_lshlrev_b32 v{FZ}, 30, v{FZ}")
    a(f"v_and_b32 v1, 15, v2\nv_lshrrev_b32 v3, 4, v2\nv_mul_u32_u24 v3, {GS}, v3\nv_lshl_add_u32 v{UL}, v1, 4, v3")
    if OPT["c3"]==1: a.extend(c3touch())
    a("s_cmp_lt_u32 s6, 27\ns_cbranch_scc0 L_aux")
    if OPT["iw"]: a("s_branch L_org\nL_exit:\ns_endpgm\n.p2align 12\nL_org:")
    else: COLD.append("L_exit:\ns_endpgm")

KR,J,TT,RE,VU,O=108,156,162,164,180,188
def kvrd(b,vk,ok,vv,ov,tg=""):
    return [f"ds_read_b64_tr_b16 {P(KR+10*b+2*q)}, v{vk if q<3 else vv} offset:{ok+4608*q if q<3 else ov+4608*(q-3)} ; @kr{b}{tg}" for q in range(5)]
def kvc(b,i,va,so,tg="",o=None):
    K=KR+10*b; V_=K+6; R=RE+8*(b&1); o=O+4*b if o is None else o
    L=[f"v_alignbit_b32 v{TT}, v{TR+2*i+1}, v{TR+2*i+1}, 16", f"v_alignbit_b32 v{TT+1}, v{TR+2*i}, v{TR+2*i}, 16", f"@W - kr{b}{tg}"]
    L+=[f"v_alignbit_b32 v{J+m}, v{K+m+1}, v{K+m}, 16" for m in range(5)]
    L+=[f"v_dot2_f32_bf16 v{R+r}, v{(J if r&1 else K)+(r>>1)}, v{TT}, 0" for r in range(8)]
    L+=[f"v_dot2_f32_bf16 v{R+r}, v{(J if r&1 else K)+(r>>1)+1}, v{TT+1}, v{R+r}" for r in range(8)]
    L+=flat([unpack(VU+2*m,V_+m) for m in range(4)])
    L+=[f"v_pk_mul_f32 {P(R+2*m)}, {P(R+2*m)}, {P(VU+2*m)}" for m in range(4)]
    L+=[f"v_cvt_pk_bf16_f32 v{o+p}, v{R+7-2*p}, v{R+6-2*p}" for p in range(4)]
    return L+[f"buffer_store_dwordx4 {Q(o)}, v{va}, {WS}, {so} offen sc1 ; @kst"]
class KVX:
    VX=69632; G0,SO=KT+4,KT; KA,VA,VRD,K2R,V2R,HS2=227,228,229,230,231,232
    def __init__(s): s.n=[0,0]; s.st=[]
    def kvc(s,*a):
        L=kvc(*a,o=32+4*len([x for x in s.st if 'store' in x]))
        if OPT['kvd']: s.st.append(L.pop())
        return L
    def setup(s):
        L=["s_mul_i32 s7, s5, 5","s_add_u32 s7, s7, s6","s_sub_u32 s7, s7, 27","s_mul_i32 s7, s7, 52429",f"s_lshr_b32 s{s.G0}, s7, 13",f"s_mul_i32 s7, s{s.G0}, 9216","s_lshl_b32 s8, s3, 10","s_add_u32 s7, s7, s8",f"v_add_u32 v{s.VA}, s7, v{L16}",f"v_subrev_u32 v{s.KA}, 3456, v{s.VA}",
           f"buffer_load_dwordx2 {P(TR)}, v{TAP}, {RB_}, 0 offen ; @tap",f"buffer_load_dwordx2 {P(TR+2)}, v{TAP}, {RB_}, 0 offen offset:2048 ; @tap","v_lshlrev_b32 v1, 3, v2",f"buffer_load_dwordx2 {P(TR+4)}, v1, {RB_}, s10 offen ; @tap"]
        return L+[f"s_lshr_b32 s{s.SO+1}, s{LW}, 2"]+s.upto(0)
    def one(s,w):
        n=s.n[w]; s.n[w]+=1; v=(s.KA,s.VA)[w]
        return [f"s_add_u32 m0, s{s.SO+1}, {4096*n+w*s.VX}\n"+(f"v_add_u32 v{v}, 4096, v{v}\n" if n else "s_nop 0\n")+f"buffer_load_dwordx4 v{v}, {('s[48:51]','s[52:55]')[w]}, 0 offen lds ; @{'kv'[w]}x{n}"]
    def need(s,r): return [min(17,-(-(8*r+11)*1152//4096)),min(16,-(-(8*r+8)*1152//4096))]
    def upto(s,r,m=99):
        L=[]; nd=s.need(min(r,6))
        while len(L)<m and (s.n[0]<nd[0] or s.n[1]<nd[1]): L+=s.one(0 if (s.n[0]-nd[0]<=s.n[1]-nd[1]) else 1)
        return L
    def rnd(s,r):
        nd=s.need(r); L=[f"@W kx{nd[0]-1},vx{nd[1]-1}"+(",tap" if r==0 else "")+"\ns_barrier"]+flat([kvrd(i,KRD,512*i+9216*(r%4),s.VRD,512*i+9216*(r%4),f"_{r}") for i in range(2)])
        if r==3: L+=[f"v_add_u32 v{x}, {4*9216}, v{x}" for x in (KRD,s.VRD)]
        c=flat([s.kvc(i,i,HSA+i,f"s{s.SO}",f"_{r}") for i in range(2)]); (s.st if OPT["kvd"] else c).append(f"s_add_u32 s{s.SO}, s{s.SO}, {GS}")
        d=s.upto(r+OPT["kvl"]) if r else []
        return L+(interleave(c,d,2,len(c)-10) if d else c)
    def flush(s):
        L=[x for x in s.st if not x.startswith('done')]; s.st=['done store' if 'store' in x else 'done' for x in s.st]; return L
    def first(s):
        L=[f"v_add_u32 v{s.VRD}, {s.VX}, v{KRD}",f"s_mul_i32 s{s.SO}, s{s.G0}, {GS}",f"s_add_u32 s{s.SO}, s{s.SO}, {WS_KVT}"]
        return s.upto(1,OPT["kva"])+L+s.rnd(0)
    def rest(s,touch,mid,post):
        L=stl(1,"K")+s.upto(OPT["kvl"])
        L+=["v_bfe_u32 v1, v2, 2, 2","v_mul_u32_u24 v1, 1152, v1","v_lshrrev_b32 v3, 4, v2","v_lshl_add_u32 v1, v3, 5, v1","v_and_b32 v31, 3, v2","v_lshl_add_u32 v1, v31, 3, v1","s_mul_i32 s4, s3, 9216","s_add_u32 s4, s4, 1024",f"v_add_u32 v{s.K2R}, s4, v1",f"v_add_u32 v{s.V2R}, {s.VX}, v{s.K2R}",
            f"s_mov_b32 s4, {sum((dtoff(32+k)>>8)<<(8*k) for k in range(4))}","v_lshlrev_b32 v3, 3, v3","v_lshrrev_b32 v3, v3, s4","v_and_b32 v3, 255, v3","v_lshlrev_b32 v3, 8, v3","v_and_b32 v1, 15, v2",f"v_lshl_add_u32 v{s.HS2}, v1, 4, v3",
            f"s_add_u32 s4, s{s.G0}, s3",f"s_mul_i32 s4, s4, {GS}",f"s_add_u32 s{s.SO+2}, s4, {WS_KVT}",f"s_add_u32 s{s.SO+3}, s{s.SO+2}, {4*GS}",f"s_cmp_eq_u32 s3, 3\ns_cselect_b32 s{s.SO+3}, {OOB}, s{s.SO+3}"]
        for r in range(1,7):
            if r==OPT["kvf"]: L+=touch
            L+=s.rnd(r)+stl(1+r,"K")
            if r in (3,6): q=r//4; L+=kvrd(2,s.K2R,36864*q,s.V2R,36864*q,f"_{r}")+s.kvc(2,2,s.HS2,f"s{s.SO+2+q}",f"_{r}")
            if r==6 and OPT["xm"]==0: L+=["@W - 0\ns_barrier"]+mid
            if r>=OPT["kvd"]: L+=s.flush()
            if r==6 and OPT["xm"]==1: L+=["@W - 0\ns_barrier"]+mid
        L+=["v_min_u32 v1, 6, v0",f"v_add_u32 v{PB}, s{s.G0}, v1"]+flag4(PB,F1K)+[f"v_mov_b32 v1, {OOB}",f"v_cmp_gt_u32 vcc, 7, v0\nv_cndmask_b32 v{PB}, v1, v{PB}, vcc"]
        return L+stl(8,"K")+post+["@W kst 0\ns_barrier",f"buffer_store_dword v{NV}, v{PB}, {WS}, 0 offen sc1 ; @fl"]+(mid if OPT["xm"]==2 else [])+stl(9,"K")
def phaseA(a, tag, fill_pre, fill_kv, fill_post, kvr=None):
    X,T,M,RS_,D,STA=76,94,102,104,64,106
    L=flat([unpack(X+2*j,64+4*(j//3)+j%3) for j in range(9)])+ln_fused(X,T,M,RS_,D,STA)
    a(f"v_lshrrev_b32 v3, 5, v0\nv_and_b32 v1, 31, v0\nv_mul_u32_u24 v{LNW}, {LN_STR}, v3\nv_mad_u32_u24 v{LNW}, v1, 12, v{LNW}\nv_add_u32 v{LNW}, {LN_ST}, v{LNW}")
    a(f"v_lshlrev_b32 v3, 3, v3\nv_cmp_eq_u32 vcc, 0, v1\nv_mov_b32 v31, {OOB}\nv_cndmask_b32 v216, v31, v3, vcc")
    a(f"v_lshrrev_b32 v31, 4, v0\nv_and_b32 v1, 3, v2\nv_lshlrev_b32 v1, 3, v1\nv_lshl_add_u32 v1, v31, 5, v1\nv_bfe_u32 v3, v2, 2, 2")
    a(f"v_mul_u32_u24 v{HRD}, {LN_STR}, v3\nv_mul_u32_u24 v{KRD}, 1152, v3\ns_mov_b32 s9, {LN_ST}\ns_mov_b32 s8, {0 if OPT['kvx'] else KL}\nv_add3_u32 v{HRD}, v{HRD}, v1, s9\nv_add3_u32 v{KRD}, v{KRD}, v1, s8")
    a("v_and_b32 v223, 15, v0\nv_lshlrev_b32 v223, 4, v223")
    for i in range(3):
        a(f"v_add_u32 v1, {16*i}, v31\nv_mul_u32_u24 v3, 43, v1\nv_lshrrev_b32 v3, 7, v3\nv_mad_i32_i24 v224, v3, -3, v1\nv_min_u32 v224, 1, v224\nv_add3_u32 v1, v1, v3, v224\nv_lshl_add_u32 v{HSA+i}, v1, 8, v223")
    a(f"s_mul_i32 s4, s{GAM}, {GS}\ns_add_u32 s6, s4, {WS_HT}\ns_add_u32 s7, s4, {WS_KVT}\ns_cmp_eq_u32 s3, 0\ns_cselect_b32 s8, s6, {OOB}\ns_cselect_b32 s9, s7, {OOB}")
    a(f"s_lshl_b32 s5, s{GAM}, 6\ns_add_u32 s5, s5, {WS_STATS}\nv_mov_b32 v225, 0")
    a(f"s_lshr_b32 s12, s{GAM}, 2\ns_lshl_b32 s12, s12, 7\ns_and_b32 s4, s{GAM}, 3\ns_lshl2_add_u32 s12, s4, s12\ns_add_u32 s12, s12, {F1H}")
    a.extend(fill_pre)
    stamp(a,3,"P")
    a("@W x"); stamp(a,1)
    a.extend(L)
    for j in range(9): a(f"ds_write_b32 v{LNW}, v{D+j} offset:{384*(j//3)+4*(j%3)}")
    a(f"buffer_store_dwordx2 {P(STA)}, v216, {WS}, s5 offen sc1 ; @st")
    a("@W - 0\ns_barrier")
    HD=200
    for i in range(3): a(f"ds_read_b64_tr_b16 {P(HD+4*i)}, v{HRD} offset:{512*i} ; @ht{i}\nds_read_b64_tr_b16 {P(HD+2+4*i)}, v{HRD} offset:{512*i+4*LN_STR} ; @ht{i}")
    for i in range(3): a(f"@W - ht{i}\nbuffer_store_dwordx4 {Q(HD+4*i)}, v{HSA+i}, {WS}, {('s6','s6','s8')[i]} offen sc1 ; @hst")
    a(f"buffer_load_dword v226, v225, {RC}, 0 offen sc1 ; @nonce")
    stamp(a,2)
    if not OPT["kvx"]:
        a("@W kv\ns_barrier")
        a.extend(flat([kvrd(i,KRD,512*i,KRD,512*i+1152*11) for i in range(3)]))
        L=flat([kvc(i,i,HSA+i,('s7','s7','s9')[i]) for i in range(3)])
        a.extend(interleave(L,fill_kv,4,len(L)-10) if fill_kv else L)
    else: a.extend(fill_kv)
    stamp(a,3)
    a(f"@W nonce\nv_readfirstlane_b32 s{NONCE}, v226\ns_cmp_eq_u32 s{NONCE}, 0\ns_cbranch_scc1 L_nw_{tag}\nL_ng_{tag}:\nv_mov_b32 v{NV}, s{NONCE}\ns_barrier")
    COLD.append(f"L_nw_{tag}:\ns_mov_b32 s13, 0\nL_nl_{tag}:\nbuffer_load_dword v226, v225, {RC}, 0 offen sc1\ns_waitcnt vmcnt(0)\nv_readfirstlane_b32 s{NONCE}, v226\n"
                f"s_cmp_lg_u32 s{NONCE}, 0\ns_cbranch_scc1 L_ng_{tag}\ns_add_u32 s13, s13, 1\ns_cmp_lt_u32 s13, {OPT['spinmax']}\ns_cbranch_scc1 L_nl_{tag}\ns_branch L_ng_{tag}")
    a(f"buffer_store_dword v{NV}, v{FW}, {WS}, s12 offen sc1 ; @fl\ns_add_u32 s12, s12, {F1K-F1H}")
    stamp(a,4); stamp(a,1,"A")
    a.extend(fill_post)
    stamp(a,2,"A")
def kvflag(): return f"buffer_store_dword v{NV}, v{FW}, {WS}, s12 offen sc1 ; @fl"

def smalls():
    return srdl(60,S_B2,4096)+[f"s_cmp_lt_u32 s3, 2\ns_cselect_b32 s4, s{LA}, s{LB}","s_and_b32 s14, s3, 1","s_lshl_b32 s14, s14, 6","s_add_u32 s4, s4, s14","v_and_b32 v1, 15, v2","v_lshl_add_u32 v3, v1, 1, s4",
        f"s_and_b32 s14, s{KQ}, 1","s_lshl_b32 s14, s14, 5",f"buffer_load_ushort v{B2}, v3, {RB_}, 0 offen ; @eb",f"buffer_load_ushort v{B2+1}, v3, {RB_}, 0 offen offset:32 ; @eb",f"buffer_load_ushort v{B2+2}, v3, {RB_}, s14 offen ; @eb"
        ]+srdl(60,S_D,576*2)+[f"s_lshl_b32 s4, s{CH}, 1",f"v_mov_b32 v{DR}, 0",f"buffer_load_ushort v{DR}, v{DR}, {RB_}, s4 offen ; @hd"]
def dsetup():
    L=srdl(64,S_OUT,NB_SD)
    L+=[f"s_cmp_lt_u32 s3, 2\ns_cselect_b32 s4, s{LA}, s{LB}","s_lshr_b32 s4, s4, 1","s_and_b32 s5, s3, 1","s_lshl_b32 s5, s5, 5","s_add_u32 s4, s4, s5",
        "v_and_b32 v1, 15, v2","v_add_u32 v1, s4, v1",f"v_lshlrev_b32 v{STA}, 3, v1",f"s_and_b32 s9, s{KQ}, 1",
        f"s_sub_u32 s{CM}, 0, s9",f"s_sub_u32 s{CM+1}, 0, s9",
        "v_mul_u32_u24 v1, 1152, v1",
        f"s_and_b32 s6, s{M2}, 1",f"s_movk_i32 s7, {0x1753}",f"s_cmp_eq_u32 s6, 0\ns_cselect_b32 s7, {0x6420}, s7",f"s_lshl_b32 s8, s{KQ}, 2","s_lshr_b32 s7, s7, s8","s_and_b32 s7, s7, 15",f"s_mul_i32 s8, s{M2}, 9","s_add_u32 s7, s7, s8",
        "s_xor_b32 s6, s6, 1","s_lshl3_add_u32 s6, s6, s8",
        "s_lshl_b32 s8, s7, 5","v_bfe_u32 v3, v2, 4, 1","v_lshl_add_u32 v3, v3, 5, v1","v_lshrrev_b32 v31, 5, v2","v_lshl_add_u32 v3, v31, 4, v3",f"v_add_u32 v{XO}, s8, v3",
        "s_mul_i32 s8, s9, 18432","s_lshl_b32 s5, s6, 5","s_add_u32 s8, s8, s5","v_lshrrev_b32 v3, 4, v2","v_lshl_add_u32 v3, v3, 3, v1","v_add_u32 v3, s8, v3",f"s_lshr_b32 s8, s{KQ}, 1",f"v_mov_b32 v1, {OOB}",
        f"v_cmp_eq_u32 vcc, s8, v31\nv_cndmask_b32 v{XC}, v1, v3, vcc",
        f"s_lshl_b32 s{YS}, s7, 16",f"s_add_u32 s{YS}, s{YS}, {WS_YC}",f"s_lshl_b32 s{YS+1}, s6, 16",f"s_add_u32 s{YS+1}, s{YS+1}, {WS_YC}",
        f"v_mov_b32 v3, s{LA}",f"v_mov_b32 v31, s{LB}","v_and_b32 v1, 8, v2","v_cmp_lt_u32 vcc, 0, v1\nv_cndmask_b32 v3, v3, v31, vcc","v_and_b32 v1, 7, v2","v_lshl_add_u32 v3, v1, 4, v3",
        "v_lshrrev_b32 v1, 4, v2","v_lshl_add_u32 v3, v1, 12, v3","s_lshl_b32 s8, s3, 14",f"v_add_u32 v{YA}, s8, v3",
        "v_lshrrev_b32 v1, 2, v2","v_lshlrev_b32 v1, 8, v1","v_and_b32 v3, 3, v2","v_lshl_add_u32 v1, v3, 3, v1","s_lshl_b32 s8, s3, 6",f"v_add_u32 v{YR}, s8, v1",
        "v_min_u32 v1, 17, v2","v_lshrrev_b32 v3, 1, v1","v_and_b32 v1, 1, v1","v_lshlrev_b32 v3, 8, v3","v_lshl_add_u32 v3, v1, 2, v3",
        f"s_mul_i32 s8, s{KQ}, 18",f"s_lshr_b32 s5, s{M2}, 1","s_add_u32 s8, s8, s5","s_lshl_b32 s8, s8, 5",f"s_and_b32 s5, s{M2}, 1","s_add_u32 s8, s8, s5","s_lshl_b32 s8, s8, 2",f"s_add_u32 s8, s8, {FU}",f"v_add_u32 v{PA}, s8, v3"]
    return L
def tsetup():
    L=["v_and_b32 v1, 15, v2","v_lshrrev_b32 v31, 4, v2","v_lshlrev_b32 v3, 1, v1","v_sub_u32 v3, v3, v31","s_lshl_b32 s4, s3, 7",f"s_sub_u32 s4, {TI-512-64+33*16}, s4",f"v_lshl_add_u32 v{BBC}, v3, 4, s4"]
    return L
def absetup():
    return ["v_and_b32 v1, 15, v2","v_add_u32 v1, 1, v1","v_and_b32 v3, 1, v1",f"v_mul_u32_u24 v3, {TO-TE}, v3","v_lshrrev_b32 v1, 1, v1","v_lshl_add_u32 v3, v1, 2, v3","v_lshrrev_b32 v1, 4, v2","v_lshl_add_u32 v3, v1, 4, v3",
            "s_lshl_b32 s4, s3, 7",f"s_add_u32 s4, s4, {TE}",f"v_add_u32 v{AB}, s4, v3"]+[f"v_add_u32 v{AB+p}, 1024, v{AB+p-1}" for p in range(1,4)]
def tprep(t1=136,sa=12,sb=15):
    t0=147; B=t1+2
    pre=srdl(60,S_SSM,576*4096)+[f"s_lshl_b32 s{sa}, s{CH}, 12","s_lshl_b32 s8, s3, 10",f"s_add_u32 s{sa}, s{sa}, s8",f"s_lshr_b32 s9, s{CH}, 4"]+s_dtoff(sb,9,8)
    pre+=[f"s_and_b32 s8, s{CH}, 15",f"s_lshl4_add_u32 s{sb}, s8, s{sb}",f"s_mul_i32 s8, s3, {64*GS}",f"s_add_u32 s{sb}, s{sb}, s8",f"s_add_u32 s{sb}, s{sb}, {WS_KVT}",f"v_mul_u32_u24 v{t0}, {GS}, v2",f"s_lshr_b32 s10, s{LW}, 2"]
    d1=dma(f"s_add_u32 m0, s10, {TE+32}",[f"buffer_load_dwordx4 v{L16}, {RB_}, s{sa} offen lds ; @tf"])
    d2=dma(f"s_add_u32 m0, s10, {TI}",[f"buffer_load_dwordx4 v{t0}, {WS}, s{sb} offen sc1 lds ; @ti"])
    z=[f"v_mov_b32 v{t0+1}, 0",f"v_mov_b32 v{t0+2}, 0",f"v_lshlrev_b32 v{t0+3}, 3, v2",f"v_add_u32 v{t0+3}, {TI-512}, v{t0+3}",f"ds_write_b64 v{t0+3}, {P(t0+1)} ; @tz",
       f"v_bfe_u32 v{t0+3}, v2, 3, 1",f"v_mul_u32_u24 v{t0+3}, {TO-TE}, v{t0+3}",f"v_and_b32 v{t0+4}, 7, v2",f"v_lshl_add_u32 v{t0+3}, v{t0+4}, 2, v{t0+3}",f"v_add_u32 v{t0+3}, {TE}, v{t0+3}",f"ds_write_b32 v{t0+3}, v{t0+1} ; @tz"]
    b=[f"s_add_u32 s{sa}, s10, {TE+32}",f"v_add_u32 v{t1}, s{sa}, v{L16}",f"ds_read_b128 {Q(B)}, v{t1} ; @tb",f"ds_read_b32 v{B+4}, v{t1} offset:16 ; @tb",
       f"v_lshrrev_b32 v{t1+1}, 30, v{FW}",f"v_mul_u32_u24 v{t1+1}, 28, v{t1+1}",f"v_sub_u32 v{t1+1}, {TE+32}, v{t1+1}","@W hd",f"v_lshlrev_b32 v{DR}, 16, v{DR}","@W - tb",
       f"v_lshlrev_b32 v{B+5}, 16, v{B}",f"v_add_f32 v{B+5}, v{B+5}, v{DR}"]+[f"v_alignbit_b32 v{B+k}, v{B+k+1}, v{B+k}, 16" for k in range(4)]
    b+=[f"v_cvt_pk_bf16_f32 v{B+5}, v{B+5}, v{B+5}",f"ds_write_b128 v{t1}, {Q(B)} offset:{TO-TE} ; @tw",f"v_cmp_eq_u32 vcc, 0, v{FW}\nv_cndmask_b32 v{B+5}, 0, v{B+5}, vcc",
        f"ds_write_b16 v{t1+1}, v{B+5} ; @tw",f"ds_write_b16 v{t1+1}, v{B+5} offset:{TO-TE-2} ; @tw"]
    return pre,d1,d2,z,b
YF=PB+1
def yfsetup(oc=None):
    L=[f"v_mov_b32 v1, s{CH}"]+([f"s_add_u32 s4, s{oc}, 3","v_add_u32 v31, s4, v0","v_cmp_eq_u32 vcc, 0, v0\nv_cndmask_b32 v1, v31, v1, vcc"] if oc else [])
    L+=["v_and_b32 v31, 3, v1","v_lshrrev_b32 v1, 2, v1","v_lshlrev_b32 v1, 7, v1","v_lshl_add_u32 v1, v31, 2, v1",f"v_add_u32 v1, {FY}, v1",f"v_mov_b32 v31, {OOB}"]
    return L+[f"v_cmp_gt_u32 vcc, {5 if oc else 1}, v0\nv_cndmask_b32 v{YF}, v31, v1, vcc"]
class TConv:
    def __init__(self,op=128,acc=TA):
        self.op,self.acc=op,acc
        self.tm=[(0,c,q) for c in range(8) for q in range(c,8)]+[(1,c,q) for c in range(7,-1,-1) for q in range(c,8)]
        self.mf=[f"v_mfma_f32_16x16x32_bf16 {Q(acc+4*q)}, {Q(self.A(r,c),'a')}, {Q(self.B(r,q-c),'a')}, "+("0" if (r,c)==(0,0) else Q(acc+4*q)) for r,c,q in self.tm]
    def A(self,r,c): return self.op+32+4*(c if r==0 else 7-c)
    def B(self,r,c): return self.op+4*(c if r==0 else 7-c)
    def rdA(self,r,c):
        o=(64*r+512*(c&1))//4
        return [f"ds_read2_b32 {P(self.A(r,c)+2*h,'a')}, v{AB+(c>>1)} offset0:{o+2*h} offset1:{o+2*h+1} ; @tA{r}{c}" for h in range(2)]
    def rdB(self,r,c): return [f"ds_read_b128 {Q(self.B(r,c),'a')}, v{BBC} offset:{512*c+64*(1-r)} ; @tB{r}{c}"]
    def first(self): return flat([self.rdB(0,c) for c in range(8)])+flat([self.rdA(0,c) for c in range(8)])
    def second(self,S,t0):
        g=t0
        for j in range(8):
            g+=8-j; S.fit(self.rdA(1,7-j)+self.rdB(1,j),g,g+(6 if j<6 else 9))
        seen=set()
        for i,(r,c,q) in enumerate(self.tm):
            tg=[t for t in (f"tA{r}{c}",f"tB{r}{q-c}") if t not in seen]; seen.update(tg)
            if tg and (r,c)!=(0,0): S.add(t0+i-1,"@W - "+",".join(tg),front=True)
    def reduce(self):
        MW,MR,YO=BBC,AB,AB+1; TA=self.acc
        tr=["s_lshl_b32 s8, s3, 13",f"s_add_u32 s8, s8, {MBX}",f"v_add_u32 v{MW}, s8, v{L16}","s_lshl_b32 s8, s3, 11",f"s_add_u32 s8, s8, {MBX}",f"v_add_u32 v{MR}, s8, v{L16}",
            "v_and_b32 v1, 15, v2","v_lshlrev_b32 v1, 5, v1","v_lshrrev_b32 v31, 4, v2","v_lshl_add_u32 v1, v31, 3, v1","s_lshl_b32 s8, s3, 10",f"v_add_u32 v{YO}, s8, v1",f"s_lshl_b32 s15, s{CH}, 12",f"s_add_u32 s15, s15, {WS_YC}"]
        mw=[f"ds_write_b128 v{MW}, {Q(TA+4*q)} offset:{1024*q} ; @mw" for q in range(8)]
        mo=[0,8192,16384,24576]
        mr=[f"ds_read_b128 {Q(TA+16*h+4*k)}, v{MR} offset:{mo[k]+1024*h} ; @mr{h}" for h in range(2) for k in range(4)]
        red=[]
        for h in range(2):
            b=TA+16*h
            red+=[f"@W - mr{h}"]+[f"v_add_f32 v{b+8*k+r}, v{b+8*k+r}, v{b+8*k+4+r}" for k in range(2) for r in range(4)]+[f"v_add_f32 v{b+r}, v{b+r}, v{b+8+r}" for r in range(4)]
            red+=[f"v_cvt_pk_bf16_f32 v{b}, v{b}, v{b+1}",f"v_cvt_pk_bf16_f32 v{b+1}, v{b+2}, v{b+3}",f"buffer_store_dwordx2 {P(b)}, v{YO}, {WS}, s15 offen offset:{512*h} sc1 ; @ys"]
        return tr,mw,mr,red,f"buffer_store_dword v{NV}, v{YF}, {WS}, 0 offen sc1 ; @yf"

PATA,PATB=(0,3,6,2,4,7),(0,3,4,2,6,7)
def pk3(p): return sum(x<<(3*i) for i,x in enumerate(p))
def roleG_A(a):
    a(f"s_mul_i32 s7, s6, 21846\ns_lshr_b32 s7, s7, 16\ns_mul_i32 s8, s7, 3\ns_sub_u32 s9, s6, s8\ns_mul_i32 s8, s{KQ}, 9\ns_add_u32 s{N1}, s8, s7\ns_and_b32 s4, s5, 1\ns_lshl1_add_u32 s{M1}, s9, s4")
    srd(a,48,S_W1,2048*4608*2)
    if OPT["kvx"]: srd(a,52,XBS,4608*4096)
    if OPT["hrot"]: a("s_add_u32 s9, s9, s7\ns_mul_i32 s8, s9, 21846\ns_lshr_b32 s8, s8, 16\ns_mul_i32 s8, s8, 3\ns_sub_u32 s9, s9, s8")
    b=0; TS=8*GS
    a(f"s_mul_i32 s4, s4, {16*TS}")
    for W in ints("w1w"):
        a(f"s_mul_i32 s7, s9, {W*21846}\ns_lshr_b32 s7, s7, 16\ns_mul_i32 s7, s7, {TS}\ns_add_u32 s5, s4, {b*TS}\ns_add_u32 s{KT+b}, s7, s5\ns_add_u32 s8, s5, {W*TS}")
        for i in range(b+1,b+W): a(f"s_add_u32 s{KT+i}, s{KT+i-1}, {TS}\ns_cmp_eq_u32 s{KT+i}, s8\ns_cselect_b32 s{KT+i}, s5, s{KT+i}")
        b+=W
    assert b==16
    a("v_lshrrev_b32 v1, 4, v2\nv_and_b32 v3, 15, v2\nv_lshlrev_b32 v31, 1, v1\nv_xor_b32 v3, v3, v31\nv_mul_u32_u24 v1, 9216, v1\nv_lshl_add_u32 v1, v3, 4, v1")
    a(f"s_mul_i32 s7, s3, {16*9216}\ns_lshl_b32 s8, s{N1}, 8\ns_add_u32 s7, s7, s8\nv_add_u32 v{VW1}, s7, v1\nv_add_u32 v{VW1+1}, {36864-1024}, v{VW1}")
    a(f"v_xor_b32 v1, 128, v{VW1}\nv_add_u32 v{VW1+2}, {2*(36864-1024)}, v1\nv_add_u32 v{VW1+3}, {36864-1024}, v{VW1+2}")
    srd(a,60,S_B1,4608*2)
    bias=[f"v_lshrrev_b32 v1, 4, v2\nv_lshlrev_b32 v1, 3, v1\ns_lshl_b32 s4, s{N1}, 8\ns_lshl_b32 s14, s3, 6\ns_add_u32 s4, s4, s14\n"
          f"buffer_load_dwordx2 {P(BIAS)}, v1, {RB_}, s4 offen ; @bias\nbuffer_load_dwordx2 {P(BIAS+2)}, v1, {RB_}, s4 offen offset:32 ; @bias"]
    SA=list(range(NW+OPT['xs_']-1,NW-1,-1))+list(range(NW))
    def grp(t): d=wdma(1,t,SA[t]*SLOT); return ["\n".join(d[:3])]+d[3:]
    n0,n1=OPT["nA0"],OPT["nA1"]
    phaseA(a,"G",flat([grp(t) for t in range(n0)]),bias+["\n".join(smalls())]+flat([grp(t) for t in range(n0,n0+n1)]),[])
    a("L_segG:")
    need=rbsetup(RB,0)+[f"v_add_u32 v{RB+2}, 0x10000, v{RB}",f"v_add_u32 v{RB+3}, 0x10000, v{RB+1}",f"v_add_u32 v{RH}, {RING}, v{L16}",f"v_add_u32 v{RH+1}, {RING+3*RS}, v{L16}"]
    hp=[f"s_and_b32 s4, s{M1}, 1","s_lshl2_add_u32 s4, s4, s3","s_lshl_b32 s4, s4, 5",f"v_min_u32 v{PB}, 31, v2",f"v_add_u32 v{PB}, s4, v{PB}"]+flag4(PB,F1H)
    def pat(d,m): return [f"s_mov_b32 s{d}, {pk3(PATA)}",f"s_cmp_eq_u32 s{m}, 1\ns_cselect_b32 s{d}, {pk3(PATB)}, s{d}",f"s_cmp_eq_u32 s{m}, 4\ns_cselect_b32 s{d}, {pk3(PATB)}, s{d}"]
    vh=[f"s_xor_b32 s4, s{M1}, 1"]+pat(5,4)+["s_lshr_b32 s6, s3, 1","s_mul_i32 s6, s6, 3","s_lshr_b32 s5, s5, s6","s_and_b32 s7, s3, 1",f"s_mul_i32 s7, s7, {4*GS}",f"s_add_u32 s7, s7, {WS_HT}",
        "s_lshl_b32 s4, s4, 11","s_add_u32 s4, s4, s7"]
    for r in range(3): vh+=[f"s_bfe_u32 s8, s5, {(3<<16)|(6*r):#x}","s_lshl_b32 s8, s8, 8","s_add_u32 s8, s8, s4",f"s_sub_u32 s8, s8, {1024*r}",f"v_add_u32 v{VH+r}, s8, v{UL}"]
    vh+=pat(PKO,M1)+[f"s_lshl_b32 s4, s{M1}, 11",f"s_add_u32 s{GAM}, s4, s7"]
    bu=["@W bias"]+flat([unpack(BU+2*q,BIAS+q) for q in range(4)])
    slot={t:SA[t] for t in range(n0+n1)}; free=SA[n0+n1:]; nd=0; rest=vh+bu; seq=OPT["aseq"]; per=0 if "r" in seq else -(-len(rest)//seq.count("d")); kv=0; did=False; pend=[]; ns=0
    for q,c in enumerate(seq):
        if c in "dpkn234" and not did: a.extend(need+hp); did=True
        if c=="i": t=len(slot); slot[t]=free.pop(0); a.extend(wdma(1,t,slot[t]*SLOT))
        elif c in "GS": a.extend(warm(c))
        elif c=="p": a(poll_issue("ph",PB))
        elif c=="k": kv=1-OPT["kvx"]
        elif c=="r": a.extend(rest)
        elif c!="n":
            k=1 if c=="d" else int(c)
            if nd==0: stamp(a,3,"A")
            a(f"@W w1_{nd+k-1}"+(",kst" if kv else "")+" 0\ns_barrier")
            stamp(a,4+ns,"A")
            if kv: a(kvflag()); kv=0
            free+=pend; pend=[slot[t] for t in range(nd,nd+k) if slot[t]<NW]
            for t in range(nd,nd+k): a.extend(slot_rd(1,t,slot[t]))
            a.extend(rest[ns*per:(ns+1)*per]); nd+=k; ns+=1
    free+=pend
    assert nd>=OPT['xs_'] and all(x<NW for x in free)
    stamp(a,5); stamp(a,11,"A")
    a.extend(poll_check("ph",PB)); a("@W - 0\ns_barrier")
    stamp(a,6); stamp(a,12,"A")
    return slot,nd,free

def w1touch():
    b=ints("w1w")[0]
    L=["v_bfe_u32 v1, v2, 1, 4","v_mul_u32_u24 v1, 9216, v1","v_and_b32 v3, 1, v2","v_lshl_add_u32 v1, v3, 7, v1",f"s_mul_i32 s4, s3, {16*9216}",f"s_lshl_b32 s5, s{N1}, 8","s_add_u32 s4, s4, s5",
       f"s_mul_i32 s5, s{KT+b}, 6",f"s_mul_i32 s6, s{KT+b+1}, 6","v_mov_b32 v3, s5","v_mov_b32 v31, s6","v_cmp_lt_u32 vcc, 31, v2","v_cndmask_b32 v3, v3, v31, vcc","v_add_u32 v3, v3, v1",
       f"buffer_load_dword v255, v3, {RW1}, s4 offen ; @tw0",f"s_mul_i32 s5, s{KT+b+2}, 6","s_add_u32 s4, s4, s5",f"buffer_load_dword v255, v1, {RW1}, s4 offen ; @tw1"]
    return L+srdl(60,S_SSM,576*4096)+[f"s_lshl_b32 s4, s{CH}, 12","s_lshl_b32 s5, s3, 10","s_add_u32 s4, s4, s5",f"buffer_load_dword v255, v{L16}, {RB_}, s4 offen ; @tw2"]

HTV=14
def htsetup():
    return [f"s_mul_i32 s4, s{KQ}, 9",f"s_sub_u32 s4, s{N1}, s4","s_lshl2_add_u32 s4, s4, s3","s_mul_i32 s4, s4, 43","v_min_u32 v1, 42, v2","v_add_u32 v1, s4, v1","v_min_u32 v1, 1535, v1","v_mul_u32_u24 v3, 5462, v1","v_lshrrev_b32 v3, 16, v3",
            "v_mad_i32_i24 v1, v3, -12, v1","v_cmp_lt_u32 vcc, 1, v1\nv_cndmask_b32 v31, 0, 2, vcc","v_cmp_lt_u32 vcc, 7, v1\nv_cndmask_b32 v31, v31, 4, vcc","v_add_u32 v1, v1, v31",f"v_mul_u32_u24 v3, {GS}, v3",f"v_lshl_add_u32 v{HTV}, v1, 7, v3",
            f"s_and_b32 s4, s{M1}, 1",f"s_mul_i32 s4, s4, {128*GS}",f"s_lshl_b32 s5, s{M1}, 11","s_add_u32 s4, s4, s5",f"s_add_u32 s{TM}, s4, {WS_HT}"]
def htouch(own): return ([] if own else [f"s_xor_b32 s4, s{TM}, 2048"])+[f"buffer_load_dword v255, v{HTV}, {WS}, s{TM if own else 4} offen sc1 ; @ht"]
UT,USEL=14,15
def utsetup():
    return ["s_lshr_b32 s4, s2, 5","s_lshl2_add_u32 s4, s4, s3","s_mul_i32 s4, s4, 27","v_min_u32 v1, 26, v2","v_add_u32 v1, s4, v1","v_mul_u32_u24 v3, 10923, v1","v_lshrrev_b32 v3, 16, v3","v_mad_i32_i24 v1, v3, -6, v1",
            f"v_lshrrev_b32 v{USEL}, 1, v1",f"v_mul_u32_u24 v{USEL}, 5, v{USEL}","v_and_b32 v1, 1, v1","v_and_b32 v31, 7, v3","v_lshrrev_b32 v3, 3, v3",f"v_mul_u32_u24 v31, {GS}, v31","v_lshl_add_u32 v3, v3, 17, v31","v_lshl_add_u32 v3, v1, 7, v3",
            f"s_mul_i32 s4, s{KQ}, {18<<17}",f"s_lshr_b32 s5, s{M2}, 1","s_mul_i32 s5, s5, 6144","s_add_u32 s4, s4, s5",f"s_add_u32 s4, s4, {WS_U2}",f"v_add_u32 v{UT}, s4, v3"]

CUT=768
def rslot(e): return (e-34)%NH
def E(e): return int(round(24*e))
def BAR(e): return 24*e+11
def gelu(acc,T,O,lam,pre):
    L=list(pre)
    L+=[f"v_mul_f32 v{T+j}, v{acc+j}, v{acc+j}" for j in range(8)]
    L+=[f"v_fma_f32 v{T+j}, v{T+j}, s10, v3" for j in range(8)]
    L+=[f"v_mul_f32 v{T+j}, v{T+j}, v{acc+j}" for j in range(8)]
    L+=[f"v_exp_f32 v{T+j}, v{T+j}" for j in range(8)]
    L+=[f"v_add_f32 v{T+j}, 1.0, v{T+j}" for j in range(8)]
    L+=[f"v_rcp_f32 v{T+j}, v{T+j}" for j in range(8)]
    L+=[f"s_bfe_u32 s11, s{PKO}, {(3<<16)|(3*lam):#x}","s_lshl_b32 s11, s11, 8",f"s_add_u32 s11, s11, s{US}"]
    L+=[f"v_mul_f32 v{T+j}, v{acc+j}, v{T+j}" for j in range(8)]
    L+=[f"v_cvt_pk_bf16_f32 v{O+k}, v{T+2*k}, v{T+2*k+1}" for k in range(4)]
    return L+[f"buffer_store_dwordx4 {Q(O)}, v{UL}, {WS}, s11 offen sc1 ; @us{lam//3}"]
def mainstream(slot0,nd,free0,prev=None):
    units=[]
    def unit(e,pos,w,acc,init,par,wa): units.append((e,pos,w,acc,init,par,wa))
    OA=(AO1,AF); FA=(AF,AF+24)
    for p in range(16):
        for dt in range(6): unit(p,[3*(2*(dt&1)+ks)+(dt>>1) for ks in range(2)],("a",16*p),AF+8*dt,"bu" if p==0 else None,dt&1,True)
    for s in range(32):
        sg,p=divmod(s,16)
        for dl in range(3): unit(16+s//2,[3*(2*(s&1)+ks)+dl for ks in range(2)],("a",16*p),OA[sg]+8*dl,"0" if p==0 else None,(s+dl)&1,True)
    nB=len(units)
    DB=(112,120); DACC={3:DB[0],4:DB[1],5:DB[0],6:DB[1],7:DB[0],8:128,9:136}
    for t in range(18):
        for d in range(2): unit(35+t//3,[3*(2*d+ks)+t%3 for ks in range(2)],w2reg(t),AF+8*d,"0" if t==0 else None,d,False)
    for p in range(3,10):
        for t in range(18): unit(41+3*(p-3)+t//6,[3*(2*(t&1)+ks)+(t%6>>1) for ks in range(2)],w2reg(t),DACC[p],"0" if t==0 else None,t&1,False)
    def umf(u):
        e,pos,(k,w),acc,init,par,wa=units[u]; h=HF+8*(u%4); L=[]
        for f in range(2):
            ft=f^par; A=Q(acc+4*ft)
            for n,ks in enumerate((1,0) if f else (0,1)):
                x,y=Q(w+8*ks+4*ft,k),Q(h+4*ks)
                c=A if (n or init is None) else Q(BU+4*ft) if init=="bu" else "0"
                L.append(f"v_mfma_f32_16x16x32_bf16 {A}, "+(f"{x}, {y}" if wa else f"{y}, {x}")+f", {c}")
        return L
    T=TConv()
    mf=flat([umf(u) for u in range(nB)])+T.mf+flat([umf(u) for u in range(nB,len(units))])
    S=Strm(mf)
    def um(u): return 4*u+(72 if u>=nB else 0)
    def urd(u):
        e,pos=units[u][:2]; s=rslot(e)
        return [f"ds_read_b128 {Q(HF+8*(u%4)+4*ks)}, v{RH+(s>2)} offset:{(s-3*(s>2))*RS+pos[ks]*1024} ; @u{u}" for ks in range(2)]
    BW={e:[[],[]] for e in range(62)}
    ORD=[[(i,0) for i in o]+[((m+k)&3,1) for k in (1,2,3)] for m,o in enumerate(((1,2,3),(2,0,3),(0,1,3),(0,1,2)))]
    loc=[[b+o for b in bs for o in (0,1)]+[c] for bs,c in (((0,2,4,6),8),((3,5,7,1),0))]
    LOC=[sum((dtoff(9*e+g)>>8)<<(5*i) for i,g in enumerate(loc[e])) for e in range(2)]
    oc=[sum((2*i+o)<<(3*k) for k,(i,o) in enumerate(ORD[m]))|(2*m)<<18|(2*m+1)<<21 for m in range(4)]
    dc=[sum((((i^m)<<3)|(3*o+(i^m)-1))<<(5*k) for k,(i,o) in enumerate(ORD[m])) for m in range(4)]
    def sel4(d,c): return [f"s_mov_b32 s{d}, {c[0]}"]+[f"s_cmp_eq_u32 s{KQ}, {k}\ns_cselect_b32 s{d}, {c[k]}, s{d}" for k in (1,2,3)]
    tab1=[f"s_mov_b32 s6, {LOC[0]&0xffffffff}",f"s_mov_b32 s7, {LOC[0]>>32}",f"s_bitcmp1_b32 s{M2}, 0\ns_cselect_b32 s6, {LOC[1]&0xffffffff}, s6\ns_cselect_b32 s7, {LOC[1]>>32}, s7"]+sel4(IB,oc)
    tab1+=["s_and_b32 s12, s3, 1",f"s_mul_i32 s12, s12, {4*GS}",f"s_lshr_b32 s4, s{M2}, 1","s_mul_i32 s4, s4, 6144","s_add_u32 s12, s12, s4",f"s_add_u32 s12, s12, {WS_U2}"]
    def offp(p):
        if p==1: L=["s_lshr_b32 s4, s7, 8"]
        else: L=[f"s_bfe_u32 s4, s{IB}, {(3<<16)|(3*(p-2)):#x}","s_mul_i32 s4, s4, 5","s_lshr_b64 s[4:5], s[6:7], s4"]
        return L+["s_and_b32 s4, s4, 31","s_lshl_b32 s4, s4, 8",f"s_add_u32 s{OFF+p-1}, s4, s12"]
    tab1+=offp(1)+offp(2)+[f"s_cmp_lt_u32 s3, 2\ns_cselect_b32 s{OFF}, s{OFF}, s{OFF+1}"]
    tab2=flat([offp(p) for p in range(3,10)])+sel4(6,dc)
    for k in range(6): tab2+=[f"s_bfe_u32 s4, s6, {(2<<16)|(5*k+3):#x}","s_lshl_b32 s4, s4, 1","s_xor_b32 s4, s4, s2","s_lshl2_add_u32 s4, s4, s3",f"s_bfe_u32 s5, s6, {(3<<16)|(5*k):#x}","s_lshl3_add_u32 s4, s4, s5",f"s_lshl_b32 s4, s4, 10",f"s_add_u32 s{MB+k}, s4, {WS_XD}"]
    tab2+=["s_lshl2_add_u32 s4, s2, s3","s_lshl_b32 s4, s4, 13",f"s_add_u32 s{IB}, s4, {WS_XD}"]
    cur={0:"F",1:"F",2:"F"}
    def refill(x):
        L=[f"s_add_u32 m0, s{LR}, {rslot(x)*RS}"]; ins=[]
        for r in range(3):
            if x<16: key,so="F",KT+x
            elif x<32: key,so=f"O{(x-16)//8}",KT+2*(x%8)
            elif x<41: key,so="S",K2+3*(x-35)+r
            else: key,so=f"P{3+(x-41)//3}",K2+2*(3*((x-41)%3)+r)
            if cur[r]!=key:
                o=[q for q in range(3) if cur[q]==key]
                if o and key[0]!="O": ins.append(f"v_add_u32 v{VH+r}, {1024*(o[0]-r)}, v{VH+o[0]}")
                elif key[0]=="O": ins+=[f"s_bfe_u32 s14, s{PKO}, {(3<<16)|(9*int(key[1])+3*r):#x}","s_lshl_b32 s14, s14, 8",f"s_add_u32 s14, s14, s{GAM}"]+([f"s_sub_u32 s14, s14, {1024*r}"] if r else [])+[f"v_add_u32 v{VH+r}, s14, v{UL}"]
                else: assert r==0; ins.append(f"v_add_u32 v{VH}, s{OFF if key=='S' else OFF+int(key[1])-1}, v{UL}")
                cur[r]=key
            ins.append(f"buffer_load_dwordx4 v{VH+r}, {WS}, s{so} offen offset:{1024*r} sc1 lds ; @h{x}")
        return dma(L[0],ins)
    slot=dict(slot0); issued={t:-99 for t in slot}; free=[(x,0) for x in free0]; pro=[]; h0=0
    for c in OPT["pseq"]:
        if c=="h": pro.append(refill(h0)); h0+=1
        elif c=="t": pro.append(w1touch())
        elif c=="u": pro.append(htouch(0))
        else: t=len(slot); slot[t]=free.pop(0)[0]; issued[t]=-24; pro.append(wdma(1,t,slot[t]*SLOT))
    gate={}
    def poll(tag,v,pe,ce,off=0,pre=[],post=[]):
        S.fit(pre+[poll_issue(tag,v,off)],max(E(pe)-2*len(pre)-2,CUT if pe>=32 else 0),E(pe)+2)
        p=S.fit(poll_check(tag,v,off)+post,E(ce),E(ce)+3+2*len(post)); gate[tag]=p[1]+1; return p[-1]+1
    for u in range(3,len(units)):
        g=um(u)-12
        for ks,x in enumerate(urd(u)): S.add(g+2*ks,x,front=False)
    T.second(S,CUT)
    kq=poll("pk",PK_,OPT["kp"],OPT["kc"])
    assert OPT["u1c"]>=32 and OPT["u2p"]>=32
    poll("p1",PA,OPT["u1p"],OPT["u1c"],post=[f"v_add_u32 v{PA}, 9216, v{PA}"])
    poll("p2",PA,OPT["u2p"],OPT["u2c"])
    ypre=[f"s_sub_u32 s4, s{YS}, {WS_YC}","s_lshr_b32 s4, s4, 12",f"s_sub_u32 s5, s{YS+1}, {WS_YC+32*4096}","s_ashr_i32 s5, s5, 12",f"v_min_u32 v{PB}, 47, v2",f"v_add_u32 v{PB+1}, s5, v{PB}",f"v_add_u32 v{PB}, s4, v{PB}",
          f"v_cmp_lt_u32 vcc, 31, v2\nv_cndmask_b32 v{PB}, v{PB}, v{PB+1}, vcc"]+flag4(PB,FY)
    poll("py",PB,OPT["yp"],OPT["yc"],pre=ypre)
    tpre,td1,td2,tz,tb=tprep()
    ydma=[dma(f"s_lshr_b32 m0, s{LW}, 2",[f"buffer_load_dwordx4 v{YA}, {WS}, s{YS+1} offen sc1 lds ; @ey0"]),
          dma(f"s_add_u32 m0, m0, 4096",[f"buffer_load_dwordx4 v{YA}, {WS}, s{YS} offen sc1 lds ; @ey1"]),
          dma(f"s_add_u32 m0, m0, 4096 ",[f"s_add_u32 s14, s{YS}, 65536",f"buffer_load_dwordx4 v{YA}, {WS}, s14 offen sc1 lds ; @ey2"])]
    fixed=[(kq,td2,256,48),(kq,td1,32,48),(gate["py"],flat(ydma),96,36)]
    def rgate(x):
        g=24*(x-NH+1)+12 if x>=NH else 0
        if 35<=x: g=max(g,gate["p1"])
        if x==34+NH: g=max(g,24*36+12)
        if x>=44: g=max(g,gate["p2"])
        return g
    def regfree(W):
        return 0 if W<16+NV2 else um(96+48+3*(W-16-NV2 if W<30 else W-18)+2)+4
    w2e=flts("w2e"); c1=set(); b=0
    for W in ints("w1w")[:1 if "t" in OPT["pseq"] else 9]: c1.update(range(b,b+(W+2)//3)); b+=W
    b=0; cw=set()
    for W in ints("xw" if OPT["xw"] else "w2w"): cw.update(range(b,b+(W+3)//4)); b+=W
    b=16
    for W in ints("w2w"):
        if OPT["cm"]: c1.update(range(b,b+(W+3)//4))
        b+=W
    def iscold(W): return W in c1 or 16<=W<16+OPT["ncold"]
    LH,LU,LM,LC,LS,LW_=[OPT[k] for k in ("Lh","Lu","Lm","Lc","Ls","Lw")]
    def cls(tg,l):
        m=re.fullmatch(r"w(\d)_(\d+)",tg)
        if m and m.group(1)=="2" and OPT["w2p"] and OPT["ncold"]<=int(m.group(2))<=18-3*OPT["w2p"]: return 32,OPT["Lp"]
        if m: return 32,(LC if iscold(int(m.group(2))+16*(m.group(1)=="2")) else LW_)
        if re.fullmatch(r"h\d+",tg): return 32,(LH if int(tg[1:])<32 else LU)
        if "store" in l: return (32 if "x4" in l else 16 if "x2" in l else 2),-LS
        return {"ti":(256,LM),"tf":(32,LW_ if "t" in OPT["pseq"] else LC),"ht":(172,LM),"ut0":(108,LM),"ut1":(108,LM),"ut2":(108,LM),"tw0":(256,LC),"tw1":(128,LC),"tw2":(32,LC),"eo0":(64,LC),"eo1":(64,LC),"ex":(32,LC),"es":(8,LM),"eb":(4,LC),"hd":(1,LC),"pk":(64,LM),"py":(48,LM),"p1":(36,LM),"p2":(36,LM),"p3":(36,LM)}.get(tg,(32,LM))
    def dl(W): return W-2 if W<16 else (um(nB+2*(W-16))-35)//24
    def wish(W): return 9999 if W<16 else E(w2e[W-16])
    nI=len(slot); nD=nd; rx=[x for x in range(h0,62) if not 32<=x<35]
    comp={}; drains={}; last={}; pipe=Pipe(OPT["cap"],2.2); now=0; grp=[]; cur_=None; done={}
    fx,cost=prev if prev else ([[] for _ in mf],[18]*len(mf))
    for l in flat(pro):
        if l.startswith("buffer"): tg=l.split("@")[1]; now,done[tg]=pipe.put(now,*cls(tg,l)); now+=20
    now=max(now,done["h0"])
    for W in slot: comp[W]=done.get(f"w1_{W}",0)
    def ahead(a,b): return sum(cost[max(a,0):max(b,0)])
    for t in range(len(mf)):
        e=t//24
        if t%24==11:
            k=0
            while nD<34 and nD in comp and k<(2 if OPT['d2']<=e!=31 else 1) and (comp[nD]<=now+OPT["dw"] or e>=dl(nD)) and regfree(nD)<=24*e+(14 if e==31 else 24):
                assert e<=dl(nD), (nD,e)
                drains.setdefault(e,[]).append(nD); free.append((slot[nD],24*(e+1)+12)); now=max(now,comp[nD]); nD+=1; k+=1
            now=max(now,done.get(f"h{e+1}",0))
        for kind,tg,n,lat in fx[t]:
            if kind=="w": now=max(now,done.get(tg,0))
            else: now,done[tg]=pipe.put(now,n,lat)
        if t&1 and t%24!=11:
            res=sum(n for g in range(t,min(t+OPT["rw"],len(mf))) for kind,tg,n,lat in fx[g] if kind=="v")
            room=OPT["cap"]-pipe.out(now)-res
            c=[]
            if rx and rgate(rx[0])<=t: c.append(("r",BAR(rx[0]-1)-OPT["fr"],BAR(rx[0]-1)-OPT["hold"]))
            for f in fixed:
                if f[0]<=t: c.append(("f",f[0]+f[3],f[0],f)); break
            if nI<34 and free and free[0][1]<=t and (nI<16 or t>=24*OPT["w20"]): c.append(("w",BAR(dl(nI))-OPT["fw"],min(BAR(dl(nI))-OPT["hw" if nI>=16 else "hw1"]-(OPT["hc"] if iscold(nI) else 0),wish(nI))))
            must=min([y[1] for y in c]+[99999])<=t+(2*len(grp) if grp else 0)
            if not grp and c and not t<CUT<=t+10 and (room>=OPT["mr"] or must):
                x=min(c,key=lambda y:y[1] if must else y[2])
                if x[0]=="r": cur_=("r",rx.pop(0)); grp=list(refill(cur_[1]))
                elif x[0]=="f": grp=list(x[3][1]); fixed.remove(x[3]); cur_=grp[-1].split("@")[1]
                else: cur_=nI; slot[nI]=free.pop(0)[0]; grp=list(wdma(1,nI,slot[nI]*SLOT) if nI<16 else wdma(2,nI-16,slot[nI]*SLOT)); nI+=1
                issued[cur_]=t; lim=x[1]
            if grp and (room>=32 or must or t>=lim or t<CUT<=t+10):
                k=[i for i,l in enumerate(grp) if l.startswith("buffer")][0]; l=grp[k]; tg=l.split("@")[1]
                if k: S.fit(grp[:k],t-1,t)
                S.add(t,l,front=False); grp=grp[k+1:]; now,done[tg]=pipe.put(now,*cls(tg,l)); last[cur_]=t
                if not grp and isinstance(cur_,int): comp[cur_]=done[tg]
        now+=cost[t]
    assert not rx and not fixed and nD==34
    for x in list(range(1,32))+list(range(35,62)):
        if ("r",x) in issued: assert last[("r",x)]<BAR(x-1), ("refill too late",x)
    LOG("; w issue",[round(issued[W]/24,1) for W in range(len(slot0),34)],"drain",{W:e for e,l in drains.items() for W in l},file=sys.stderr)
    LOG("; refill lead",[round(x-0.5-issued[("r",x)]/24,1) for x in list(range(h0,32))+list(range(35,62))],file=sys.stderr)
    for e,l in drains.items():
        for W in l:
            k,tt=(1,W) if W<16 else (2,W-16)
            S.fit(slot_rd(k,tt,slot[W]),max(24*e+12,regfree(W)),CUT-1 if e==31 else 24*e+35); BW[e][0].append(f"w{k}_{tt}"); BW[e+1][1].append(f"r{k}_{tt}")
            if k==2: assert 24*e+35<=um(nB+2*tt)
    lastw1=max(last.get(W,0) for W in range(16))+1; lastw2=last[33]+1; lastdr=max(drains)+2
    def timed(pre,x,t,lo):
        t=max(E(t),lo+(len(pre)+1)//2)
        if pre: S.fit(pre,max(lo,t-3*len(pre)),t)
        return S.fit([x],t,t+3)[0]+1
    bs=flts("bs"); bl=flts("bl"); g=gp=E(16)+5
    for l in range(6):
        A=AF+8*l; t=max(min(E(bs[l]),E(bl[0])-5*(5-l)-1),gp+4); gp=S.fit(pack(A,A),max(gp,t-24),t)[-1]+1
        g=timed([f"s_add_u32 s{XBS}, s{XBS}, 3072"] if l==3 else [],f"buffer_store_dwordx4 {Q(A)}, v{L16}, {WS}, s{XBS} offen offset:{1024*(l%3)} sc1 ; @bs",bs[l],max(g,gp))
    assert gp<=E(bl[0]) and g<E(24)-2
    RV=[136,140,AF+44]; bc=flts("bc")
    S.fit([f"s_add_u32 s9, s{XBR}, 3072"],E(17),E(19))
    for sg in range(2):
        ld=[f"buffer_load_dwordx4 {Q(RV[d])}, v{L16}, {WS}, s{(XBR,9)[sg]} offen offset:{1024*d} sc1 ; @bl{sg}" for d in range(3)]
        S.fit(ld,E(bl[sg]),E(bl[sg])+8)
        g=S.fit(tagged(f"bl{sg}",ld,RV)+[madd(OA[sg]+8*d+4*f,RV[d],f,0) for d in range(3) for f in range(2)],E(bc[sg]),min(E(bc[sg])+26,CUT-4))[-1]+1
        if sg==0: ga=g
    assert bl[0]>=19 and bl[0]+0.4<bc[0] and ga+2<E(bl[1]) and bl[1]+0.4<bc[1]
    c=0.7978845608028654*2*1.4426950408889634
    GT=AF+24
    def gblock(A,H,K,n,lam):
        L=[f"v_mov_b32 v{K}, {f2h(-c)}"]+[f"v_pk_mul_f32 {P(H+2*j)}, {P(A+2*j)}, {P(A+2*j)}" for j in range(4*n)]
        L+=[f"v_pk_fma_f32 {P(H+2*j)}, {P(H+2*j)}, s[10:11], {P(K)} op_sel_hi:[1,0,0]" for j in range(4*n)]+[f"v_pk_mul_f32 {P(H+2*j)}, {P(H+2*j)}, {P(A+2*j)}" for j in range(4*n)]
        L+=[f"v_exp_f32 v{H+j}, v{H+j}" for j in range(8*n)]+[f"v_pk_add_f32 {P(H+2*j)}, {P(H+2*j)}, 1.0 op_sel_hi:[1,0]" for j in range(4*n)]; st=[]
        for d in range(n):
            L+=[f"v_rcp_f32 v{H+8*d+j}, v{H+8*d+j}" for j in range(8)]+[f"v_pk_mul_f32 {P(H+8*d+2*j)}, {P(A+8*d+2*j)}, {P(H+8*d+2*j)}" for j in range(4)]+[f"v_cvt_pk_bf16_f32 v{A+8*d+k}, v{H+8*d+2*k}, v{H+8*d+2*k+1}" for k in range(4)]
            x=[f"s_bfe_u32 s11, s{PKO}, {(3<<16)|(3*(lam+d)):#x}","s_lshl_b32 s11, s11, 8",f"s_add_u32 s11, s11, s{US}",f"buffer_store_dwordx4 {Q(A+8*d)}, v{UL}, {WS}, s11 offen sc1 ; @us{lam//3}"]
            if (lam and not OPT["ue"]) or (not lam and (not OPT["um"] or n==3)): L+=x
            else: st+=x
        return L,st
    gx=OPT["gx"]; g1,st_=gblock(AO1,GT,136,gx,0)
    gl=[gelu(AO1+8*d,GT,GT+8+4*d,d,[]) for d in range(gx,3)]
    if OPT["um"] and gl:
        for x in gl[:-1]:
            k=[i for i,y in enumerate(x) if y.startswith("s_bfe")][0]; st_+=x[k:k+3]+[x.pop()]; del x[k:k+3]
        gl[-1]+=st_
    g2x=OPT['g2x']; g2,st2=gblock(AF,HF,HF+24,g2x,3); g2h=[gelu(AF+8*d,GT,GT+8+4*d,3+d,[]) for d in range(g2x,3)]
    for i in range(8):
        lo=max(last.get(("r",2*i+1),0),last.get(2*i+1,0))+1; assert lo<issued[("r",16+i)]
        S.fit([f"s_cmp_lt_u32 s3, 2\ns_cselect_b32 s{KT+2*i}, s{KT+2*i}, s{KT+2*i+1}"],lo,issued[("r",16+i)])
    tbe=OPT["tb"]; assert last["tf"]<BAR(tbe) and lastw1<E(19)
    S.fit(tz,kq,BAR(tbe))
    BW[tbe][0]+=["tf","ti"]; BW[tbe][1].append("tz"); assert BAR(tbe+1)<=E(bl[0])
    S.fit(tb,24*tbe+12,BAR(tbe+1)); BW[tbe+1][1].append("tw")
    S.fit(tsetup()+absetup()+idsetup()+[f"s_mov_b32 s10, {f2h(-c*0.044715)}",f"v_mov_b32 v3, {f2h(-c)}"],max(lastw1,E(17),BAR(tbe+1)),E(bc[0])-2)
    fr=T.first(); S.fit(fr[:8],E(30)-12,E(30)+8); S.fit(fr[8:],E(30)+8,CUT-2)
    BW[34][1]+=["tA10","tB17"]
    tr,mw,mr,red,yf=T.reduce()
    S.fit(tr[:3],24*34+2,E(35)-3); S.fit(tr[3:],E(35)-3,E(35)+10)
    S.fit(mw,E(35)-2,BAR(35)); BW[35][1].append("mw")
    S.fit(mr,24*35+12,E(36)+6); BW[36][1].append("mr1")
    fu=ints("fu")
    g=max(um(144)+6,ga+4)
    if gx:
        nb=OPT["gn"]; job=S.job=S.job+1
        for k in range(nb): S.add(g+2*k,"\n".join(g1[k*len(g1)//nb:(k+1)*len(g1)//nb]),front=False,job=job)
        g+=2*nb; assert g<E(bl[1])
    S.fit(flat(gl),g,E(OPT["g1e"])); S.add(CUT-1,"\n".join(g2),front=False)
    if st2: assert 32<=OPT["ue"]<=34.2 and not g2h; S.fit(st2,E(OPT["ue"]),min(E(OPT["ue"])+14,BAR(fu[1])))
    if g2h:
        p=S.fit(flat(g2h),CUT+2,E(OPT["g2e"])); assert OPT["g2e"]<=min(fu[1],40) and (g2x==2 or p[len(g2h[0])-1]<E(35)-4) and g2x
    assert OPT["g1e"]<=min(fu[0],31.9) and fu[0]<fu[1] and 32<=fu[1]
    for s in range(2):
        BW[fu[s]][0].append(f"us{s}")
        S.fit([f"buffer_store_dword v{NV}, v{FW}, {WS}, s{FUS} offen sc1 ; @uf"]+([f"s_add_u32 s{FUS}, s{FUS}, 9216"] if s<1 else []),24*fu[s]+12,24*fu[s]+16)
    S.fit(red,E(36)+8,E(37.6))
    fy=OPT["fy"]; BW[fy][0].append("ys"); assert fy>=38
    S.fit([yf],24*fy+12,24*fy+16); assert 24*fy+16<E(OPT['yp'])-30
    g=last[("r",31)]+1; S.fit(tab1+tab2,g,CUT-2)
    for i in range(3):
        lo=max(last[("r",36+2*i)]+1,last[16+6*i+5]+1,CUT); hi=issued[("r",41+i)]; assert lo<hi,(lo,hi)
        S.fit([f"s_cmp_lt_u32 s3, 2\ns_cselect_b32 s{K2+2*k}, s{K2+2*k}, s{K2+2*k+1}" for k in range(3*i,3*i+3)],lo,hi)
    CO=128; CF=31; xs=flts("xs"); H0=AF+12
    def send(d,so,k,lo,pre): return timed(pre,f"buffer_store_dwordx4 {Q(d)}, v{L16}, {WS}, s{so} offen sc1 ; @xs",xs[k],lo)
    cs=send(AF,8,0,E(41)+5,[f"v_cndmask_b32 v{CO+k}, v{AF+k}, v{AF+4+k}, s[{CM}:{CM+1}]" for k in range(4)]+[f"s_add_u32 s8, s{IB}, 6144"]+pack(AF,AF))
    g=S.fit(pack(AF+8,AF+8),E(41)+5,E(42))[-1]+1; xs_=send(AF+8,MB,1,g,[])
    for p in range(3,8):
        e=41+3*(p-2); A=DACC[p]; d=H0 if p in (3,5) else A
        g=S.fit(pack(d,A),E(e)+5,min(E(e)+24,max(E(xs[p-1]),E(e)+10)))[-1]+1; g=send(d,MB+p-2,p-1,g,[])
        assert g<{3:E(50)+5,4:E(50),5:E(59),6:E(OPT["o1c"]),7:E(OPT["o2c"])}[p]
    S.fit([f"v_accvgpr_write_b32 a{128+k}, v{SB+k}" for k in range(6)],E(35)+2,E(37.9))
    XR=8; XRC=4; xl=flts("xl"); SA=[ST,ST+2,ST+4]
    assert E(min(xl[:2]))>=max(24*lastdr,lastw2) and xl[2]>=37.7 and 38<=xl[3] and xl[3]+1<min(xl[:2])
    S.fit([f"s_and_b32 s12, s{KQ}, 1","s_lshl_b32 s12, s12, 7",f"s_add_u32 s12, s12, {WS_STATS}",f"buffer_load_dwordx2 {P(ST+4)}, v{STA}, {WS}, s12 offen sc1 ; @es",f"s_mov_b32 s12, {WS_STATS}",
           f"buffer_load_dwordx2 {P(ST+2)}, v{STA}, {WS}, s12 offen offset:128 sc1 ; @es",f"buffer_load_dwordx2 {P(ST)}, v{STA}, {WS}, s12 offen sc1 ; @es","s_movk_i32 s12, 18432"],E(xl[3]),E(xl[3]+1))
    for t,x in zip(xl,(f"buffer_load_dwordx4 {Q(XR)}, v{XO}, {RA}, 0 offen ; @eo0",f"buffer_load_dwordx4 {Q(XR+4)}, v{XO}, {RA}, s12 offen ; @eo1",f"buffer_load_dwordx2 {P(XRC)}, v{XC}, {RA}, 0 offen ; @ex")): S.fit([x],E(t),E(t)+3)
    S.fit([f"s_and_b32 s6, s{KQ}, 1","s_lshl_b32 s7, s6, 5",f"v_add_u32 v{CF}, s7, v{YR}",f"s_sub_u32 s7, s{IB}, {WS_XD}"]
           +flat([[f"s_xor_b32 s{r}, s7, {(2*d)<<15}",f"s_add_u32 s{r}, s{r}, {WS_XD+6144}"] for d,r in ((1,4),(2,5),(3,7))]),E(OPT["yp"])+3,E(OPT["cl"])-1)
    yb=OPT["yb"]; BW[yb][0].append("ey2"); assert last["ey2"]<BAR(yb) and gate["py"]>=24*lastdr
    def silu(g,t,n,x,k):
        return ([f"v_mul_f32 v{t+j}, s10, v{g+j}" for j in range(k)]+[f"v_exp_f32 v{t+j}, v{t+j}" for j in range(k)]+[f"v_mul_f32 v{n+j}, v{n+j}, v{g+j}" for j in range(k)]
                +[f"v_add_f32 v{t+j}, 1.0, v{t+j}" for j in range(k)]+[f"v_rcp_f32 v{t+j}, v{t+j}" for j in range(k)]+[f"v_fma_f32 v{n+j}, v{n+j}, v{t+j}, v{x+j}" for j in range(k)])
    XF,NN,YW=AF+16,AF+32,AF
    op=["@W eb,es"]+[f"v_lshlrev_b32 v{B2+k}, 16, v{B2+k}" for k in range(3)]+[f"v_mul_f32 v{s}, v{s}, v{s+1}" for s in SA]+[f"s_mov_b32 s10, {f2h(-1.4426950408889634)}"]
    for nt in range(2):
        op+=[f"@W eo{nt}",f"v_permlane16_swap_b32 v{XR+4*nt}, v{XR+4*nt+2}",f"v_permlane16_swap_b32 v{XR+4*nt+1}, v{XR+4*nt+3}"]+flat([unpack(XF+8*o+4*nt+2*k,XR+4*nt+2*o+k) for o in range(2) for k in range(2)])
        op+=[f"v_fma_f32 v{NN+8*o+4*nt+j}, v{XF+8*o+4*nt+j}, v{SA[nt]+1}, -v{SA[nt]}" for o in range(2) for j in range(4)]
    oy=[f"ds_read_b64_tr_b16 {P(YW+4*o+2*nt)}, v{YR} offset:{4096*(1+o)+32*nt} ; @oy" for o in range(2) for nt in range(2)]+["@W - oy"]
    for q in range(4): oy+=unpack(XR,YW+2*q)+unpack(XR+2,YW+2*q+1)+[f"v_mul_f32 v{NN+4*q+j}, v{NN+4*q+j}, v{XR+j}" for j in range(4)]
    g0=max(24*yb+12,cs,E(OPT["op0"])+30); assert OPT["op0"]>=36 and xs_<E(OPT["o1l"])
    S.fit(op,E(OPT["op0"]),g0); S.fit(oy,g0,E(OPT["cc"]))
    RCV=CO+4; YC_=6; TC=XR; of=OPT["ostore"]
    ld=[f"buffer_load_dwordx4 {Q(RCV+4*d)}, v{L16}, {WS}, s{r} offen sc1 ; @cl" for d,r in enumerate((4,5,7))]
    S.fit(ld,E(OPT["cl"]),E(OPT["cl"])+8)
    ce=[f"ds_read_b64_tr_b16 {P(YC_)}, v{CF} ; @cy"]+[f"v_add_f32 v{CO+j}, v{CO+j}, v{B2+2}" for j in range(4)]+tagged("cl",ld,[RCV,RCV+4,RCV+8])
    ce+=[f"v_cndmask_b32 v{RCV+4*d+k}, v{RCV+4*d+k}, v{RCV+4*d+2+k}, s[{CM}:{CM+1}]" for d in range(3) for k in range(2)]+[madd(CO,RCV+4*d,0,1) for d in range(3)]+["@W ex"]+unpack(RCV,XRC)+unpack(RCV+2,XRC+1)
    ce+=[f"v_fma_f32 v{TC+4+j}, v{RCV+j}, v{ST+5}, -v{ST+4}" for j in range(4)]+["@W - cy"]+unpack(TC,YC_)+unpack(TC+2,YC_+1)+[f"v_mul_f32 v{TC+4+j}, v{TC+4+j}, v{TC+j}" for j in range(4)]
    ce+=silu(CO,TC,TC+4,RCV,4)+[f"v_cvt_pk_bf16_f32 v{CO}, v{TC+4}, v{TC+5}",f"v_cvt_pk_bf16_f32 v{CO+1}, v{TC+6}, v{TC+7}",f"buffer_store_dwordx2 {P(CO)}, v{XC}, {RC}, 0 offen {of} ; @os"]
    assert OPT["ce"]<=55.8; S.fit(ce,E(OPT["cc"]),E(OPT["ce"]))
    RO=AF; SM=(DB[1],DB[0]); n=len(mf); OP=[XF,XF+4]
    def orcv(o):
        ld=[f"buffer_load_dwordx4 {Q(RO+4*d)}, v{L16}, {WS}, s6 offen offset:{1024*d} sc1 ; @ol{o}" for d in range(3)]; sm=SM[o]
        L=tagged(f"ol{o}",ld,[RO,RO+4,RO+8])+[madd(DACC[8+o]+4*nt,RO+4*d,nt,1) for d in range(3) for nt in range(2)]
        return [f"s_add_u32 s6, s{IB}, {3072*o}"]+ld,L
    def ofin(o):
        A=DACC[8+o]; sm=SM[o]
        return ([f"v_add_f32 v{A+j}, v{A+j}, v{B2+j//4}" for j in range(8)]+silu(A,sm,NN+8*o,XF+8*o,8)
                +[f"v_cvt_pk_bf16_f32 v{OP[nt]+2*o+k}, v{NN+8*o+4*nt+2*k}, v{NN+8*o+4*nt+2*k+1}" for nt in range(2) for k in range(2)])
    l0,s0=orcv(0); l1,s1=orcv(1); assert OPT["o1l"]>=OPT["cc"] and OPT["o1c"]>=max(OPT["ce"],55.9) and OPT["o2l"]>=59
    S.fit(l0,E(OPT["o1l"]),E(OPT["o1l"])+8); S.fit(s0,E(OPT["o1c"]),min(E(OPT["o1c"])+30,E(59)-1)); S.fit(l1,E(OPT["o2l"]),E(OPT["o2l"])+8)
    S.fit(ofin(0),E(59)+6,E(OPT["o2c"]) if OPT["o2c"]<61.5 else n-4)
    tail=[]
    if OPT["o2c"]<61.5: S.fit(s1,E(OPT["o2c"]),n-1)
    else: tail=s1
    tail+=ofin(1)
    for nt in range(2): tail+=[f"v_permlane16_swap_b32 v{OP[nt]}, v{OP[nt]+2}",f"v_permlane16_swap_b32 v{OP[nt]+1}, v{OP[nt]+3}",f"buffer_store_dwordx4 {Q(OP[nt])}, v{XO}, {RC}, {('0','s12')[nt]} offen {of}"]
    tid=[f"s_mul_i32 s4, s{N1}, 6",f"s_add_u32 s4, s4, s{M1}"]
    early=tid+["s_lshl2_add_u32 s5, s4, s3","s_xor_b32 s6, s5, 4",f"s_mul_i32 s{XBR}, s5, 6144",f"s_add_u32 s{XBR}, s{XBR}, {WS_XB}",f"s_mul_i32 s{XBS}, s6, 6144",f"s_add_u32 s{XBS}, s{XBS}, {WS_XB}",
               f"s_lshl_b32 s4, s{N1}, 1","s_lshr_b32 s5, s3, 1","s_add_u32 s4, s4, s5","s_lshl_b32 s4, s4, 17","s_and_b32 s5, s3, 1",f"s_mul_i32 s5, s5, {4*GS}","s_add_u32 s4, s4, s5",f"s_lshl_b32 s5, s{M1}, 11","s_add_u32 s4, s4, s5",f"s_add_u32 s{US}, s4, {WS_U2}",
               f"s_cmp_ge_u32 s{M1}, 3\ns_cselect_b32 s5, 3, 0\ns_cselect_b32 s4, 1, 0",f"s_sub_u32 s5, s{M1}, s5",f"s_lshl1_add_u32 s4, s{N1}, s4","s_lshl_b32 s4, s4, 7","s_lshl2_add_u32 s4, s5, s4",f"s_add_u32 s{FUS}, s4, {FU}"]
    e1=w2setup()+kvpoll_addr(PK_)+tpre; e2=early+dsetup()+yfsetup()+tagsetup(); g1=min(E(OPT["kp"])-3,issued[16]-2,E(9))
    if OPT["clump"]:
        ne=OPT["jen"]*OPT["clump"]; early=e1+e2; nc=len(early)*OPT["cfrac"]//100
        for k in range(ne): S.add(int((k+0.5)*24/OPT["clump"])&~1,"\n".join(early[k*nc//ne:(k+1)*nc//ne]),front=False)
        e2=early[max(nc,len(e1)):]; e1=early[nc:len(e1)]; g0=24*OPT["jen"]; assert g0<=g1
    else: g0=0
    S.fit(e1,g0,g1); p=S.fit(e2,g1 if e1 else g0,E(16)+4)
    for u in range(1,len(units)):
        g=um(u)-1
        if g%24==11 and g//24<61: BW[g//24][1].append(f"u{u}")
        else: S.add(g,f"@W - u{u}",front=True)
    S.add(CUT-1,"@W - tB07,tA00",front=True)
    for e in range(61):
        vt,lt=BW[e]
        if not 32<=e+1<35: vt=vt+[f"h{e+1}"]
        S.add(BAR(e),f"@W {','.join(vt) or '-'} {','.join(lt) or '-'}\ns_barrier",front=True)
    LOG("; overload per epoch"," ".join(str(S.over(24*e,24*e+24)) for e in range(62)),"total",S.over(),file=sys.stderr)
    S.check()
    T_,st=simulate(S,cls,flat(pro),cap=OPT['cap'])
    LOG("; model cycles per epoch"," ".join(str(int(T_[24*e+24]-T_[24*e])) for e in range(62)),"total",int(T_[-1]),file=sys.stderr)
    if OPT.get("v"): LOG("; stalls"," ".join(f"{g/24:.1f}:{r}:{int(d)}" for g,r,d in st if d>40),file=sys.stderr)
    dr=[W for e,l in drains.items() if e<32 for W in l]
    state=dict(tabs=tab1+tab2,inregs=[W-16 for W in range(16,34) if W in dr],inslot={W-16:slot[W] for W in range(16,34) if issued[W]<CUT and W not in dr},first=T.first(),cold=cw)
    for W in range(16,34): assert not (issued[W]<CUT<=last[W])
    fx=[[] for _ in mf]
    for g,L in enumerate(S.g):
        for l in L:
            if l.startswith("buffer") and " lds " not in l: tg=l.split("@")[1]; fx[g].append(("v",tg)+cls(tg,l))
            elif l.startswith("@W") and g%24!=11: fx[g]+=[("w",tg,0,0) for tg in l.split()[1].split(",") if tg!="-"]
            elif l.startswith("@W"): fx[g]+=[("w",tg,0,0) for tg in l.split()[1].split(",") if not re.fullmatch(r"-|h\d+|w\d_\d+",tg)]
    state["prev"]=(fx,[1.07*S.cost(g) for g in range(len(mf))]); state["model"]=T_[-1]
    return S,pro,flat([urd(u) for u in range(3)]),tail,state

def emit_main(aB,aS,S,pro,rd0,tail):
    for g in pro: aB.extend(g)
    aB("@W h0\ns_barrier"); aB.extend(rd0); aB("@W - u0"); stamp(aB,13,"A")
    def hook(a,i):
        e,r=divmod(i,24)
        if r: return
        if e in (16,32,35,41,53): stamp(a,{16:7,32:8,35:9,41:10,53:11}[e])
        f=str(OPT.get("fine"))
        if f[0]=="E" and 0<=e-int(f[1:])<13: stamp(a,1+e-int(f[1:]),f)
        if e<32 and e%3==0: stamp(a,1+e//3,"B")
        if 20<=e<46 and e%2==0: stamp(a,1+(e-20)//2,"T")
        if e>=35 and e%2==1 and e<61: stamp(a,1+(e-35)//2,"D")
    S.emit(aB,0,CUT,hook)
    aS("L_D:"); S.emit(aS,CUT,None,hook)
    stamp(aS,12)
    aS.extend(tail)
    stamp(aS,13)
    if OPT["stamps"]:
        aS("s_waitcnt vmcnt(0)"); stamp(aS,14); stamps_out(aS)
    if OPT.get("probe") is not None:
        aS("s_waitcnt vmcnt(0)"); stamp(aS,14)
        if OPT["probe"]==0: aS(f"s_mov_b32 s28, s{NONCE}")
        if OPT.get("lat"): aS("s_add_u32 s28, s28, s29")
        if OPT.get("prole"): aS(f"s_cmp_lt_u32 s2, 216\ns_cselect_b32 s28, "+(f"s28, s{NONCE}" if OPT["prole"]=="G" else f"s{NONCE}, s28"))
        aS("s_add_u32 s28, s28, 6000\ns_mov_b32 s5, 0\nL_spin:\ns_memrealtime s[0:1]\ns_waitcnt lgkmcnt(0)\ns_sub_u32 s4, s0, s28\ns_add_u32 s5, s5, 1\ns_cmp_gt_u32 s5, 20000\ns_cbranch_scc1 L_spe\ns_cmp_lt_i32 s4, 0\ns_cbranch_scc1 L_spin\nL_spe:")
    aS("s_endpgm\nL_segE:")

CV_IMG=36864; CV_COPY=4160; CV_W=2*CV_COPY; CV_BUF=4*CV_W; XS0=114688
def roleX(a,state):
    if OPT["iw"]: a(".p2align 12")
    a("L_aux:")
    LH,OC,C0=N1,M1,15
    ACC,T=32,128; BA,FX,DX,BB,YO,RBX,VK,BT=26,27,144,16,20,12,14,64
    SET=[("v",64),("a",192)]
    kx=KVX() if OPT["kvx"] else None
    if kx: a.extend(kx.setup())
    else: srd(a,48,S_SSM,576*4096)
    a(f"s_mul_i32 s7, s5, 72\ns_lshl3_add_u32 s7, s6, s7\ns_sub_u32 s{OC}, s7, {27*8-32}\ns_mul_i32 s{LH}, s3, {CV_W}\ns_add_u32 s{LH}, s{LH}, {CV_F0}\ns_add_u32 s{US}, s{OC}, s3")
    hd=[]
    for c in range(2):
        hd+=dma(f"s_add_u32 m0, s{LH}, {c*CV_BUF+32}",[f"s_add_u32 s14, s{US}, {4*c}\ns_lshl_b32 s14, s14, 12"]+[f"buffer_load_dwordx4 v{L16}, {RW1}, s14 offen offset:{1024*i} lds ; @hc{c}" for i in range(4)])
        hd+=[f"s_lshr_b32 s14, s14, 11\nv_mov_b32 v{DX+c}, 0\nbuffer_load_ushort v{DX+c}, v{DX+c}, {RB_}, s14 offen ; @hx{c}"]
    if kx:
        touch=srdl(60,S_SSM,576*4096)+["v_lshrrev_b32 v1, 5, v2","v_and_b32 v3, 31, v2","v_lshlrev_b32 v1, 14, v1","v_lshl_add_u32 v1, v3, 7, v1",f"s_lshl_b32 s4, s{US}, 12",f"buffer_load_dword v255, v1, {RB_}, s4 offen ; @ftx"]
        phaseA(a,"X",[],kx.first(),[]); a("L_segX:")
        a.extend(kx.rest(touch,srdl(48,S_SSM,576*4096)+srdl(52,XBS,4608*4096)+smalls()+hd,warm("X")+warm("S")+w2setup(True)+rbsetup(RBX,XS0)))
        a.extend(kvpoll_addr(PB))
    else:
        phaseA(a,"X",[],[],smalls()+hd+warm("X")); a("L_segX:")
        a.extend(w2setup(True)); a.extend(rbsetup(RBX,XS0)); a.extend(kvpoll_addr(PB))
        a("@W kst\ns_barrier"); a(kvflag())
        a.extend(warm("S"))
    xa=OPT["xa"]; assert xa<=OPT["xn"]
    for t in range(xa): a.extend(wdma(2,t,XS0+t*SLOT))
    a(f"v_add_u32 v{BA}, s{LH}, v{L16}\nv_cmp_eq_u32 vcc, 0, v2\nv_mov_b32 v1, 4140\nv_cndmask_b32 v1, v1, 32, vcc\nv_add_u32 v{FX}, s{LH}, v1")
    a(f"s_mov_b32 s4, {CV_BUF}")
    a(f"v_bfe_u32 v1, v2, 3, 1\nv_mul_u32_u24 v1, {CV_COPY}, v1\nv_bfe_u32 v3, v2, 4, 1\nv_mad_u32_u24 v1, v3, s4, v1\nv_and_b32 v3, 7, v2\nv_lshl_add_u32 v1, v3, 2, v1\nv_add_u32 v1, s{LH}, v1")
    a("v_mov_b32 v36, 0\nv_mov_b32 v37, 0\nv_mov_b32 v38, 0\nv_mov_b32 v39, 0\nds_write_b32 v1, v36\nv_lshlrev_b32 v1, 4, v0\nds_write_b128 v1, v[36:39]")
    stamp(a,10,"K")
    if OPT["xp"]==0: a(poll_issue("pkX",PB))
    for c in range(2):
        o=c*CV_BUF; B=BT+24*c
        a(f"@W hc{c}"); a.extend(flat([[f"ds_read_b128 {Q(B+6*i)}, v{BA} offset:{o+32+1024*i} ; @b{c}", f"ds_read_b32 v{B+6*i+4}, v{BA} offset:{o+32+1024*i+16} ; @b{c}"] for i in range(4)]))
    a(f"v_lshrrev_b32 v1, 3, v2\nv_and_b32 v3, 7, v2\nv_lshrrev_b32 v31, 1, v1\nv_xor_b32 v3, v3, v31\nv_mul_u32_u24 v1, {GS}, v1\nv_lshl_add_u32 v{VK}, v3, 4, v1\nv_xor_b32 v{VK+1}, 64, v{VK}")
    a(f"v_and_b32 v1, 15, v2\nv_add_u32 v1, 1, v1\nv_and_b32 v3, 1, v1\nv_mul_u32_u24 v3, {CV_COPY}, v3\nv_lshrrev_b32 v1, 1, v1\nv_lshl_add_u32 v3, v1, 2, v3")
    a(f"v_lshrrev_b32 v31, 4, v2\nv_lshl_add_u32 v3, v31, 4, v3\nv_add_u32 v{AB}, s{LH}, v3")
    for p in range(1,4): a(f"v_add_u32 v{AB+p}, 1024, v{AB+p-1}")
    for c in range(2):
        o=c*CV_BUF; B=BT+24*c
        if OPT["xp"]==1+c: a(poll_issue("pkX",PB))
        a(f"@W hx{c} b{c}\nv_lshlrev_b32 v1, 16, v{B}\nv_lshlrev_b32 v{DX+c}, 16, v{DX+c}\nv_add_f32 v1, v1, v{DX+c}\nv_cvt_pk_bf16_f32 v1, v1, v1\nds_write_b16 v{FX}, v1 offset:{o}\nds_write_b16 v{FX}, v1 offset:{o+CV_COPY-2}")
        for i in range(4):
            t=B+6*i
            a.extend([f"v_alignbit_b32 v{t+k}, v{t+k+1}, v{t+k}, 16" for k in range(4)]+[f"ds_write_b128 v{BA}, {Q(t)} offset:{o+CV_COPY+32+1024*i}"])
    for v in range(4):
        a(f"v_and_b32 v1, 15, v2\nv_lshlrev_b32 v1, 1, v1\nv_sub_u32 v1, v1, v31\nv_add_u32 v1, {17-4*v}, v1")
        a(f"v_bfe_u32 v3, v1, 1, 3\nv_xor_b32 v3, s3, v3\nv_lshlrev_b32 v3, 4, v3\nv_lshl_add_u32 v{BB+v}, v1, 7, v3")
    a(f"v_and_b32 v1, 15, v2\nv_lshlrev_b32 v1, 5, v1\nv_lshl_add_u32 v{YO}, v31, 3, v1")
    a(f"s_lshr_b32 s9, s{OC}, 4"); a.extend(s_dtoff(7,9,8))
    a(f"s_and_b32 s8, s{OC}, 8\ns_lshl4_add_u32 s7, s8, s7\ns_mul_i32 s8, s3, {64*GS}\ns_add_u32 s7, s7, s8\ns_add_u32 s7, s7, {WS_KVT}\ns_lshl_b32 s9, s3, 13\ns_add_u32 s9, s9, 4096")
    a(f"s_lshl_b32 s{C0}, s{US}, 12\ns_add_u32 s{C0}, s{C0}, {WS_YC}")
    def slot_rdx(t): return wreads(2,t,RBX,t*SLOT)
    def reg(G,i): k,b=SET[G&1]; return k,b+4*i
    def rdA(G,c):
        k,r=reg(G,c); o=(64*(G&7)+512*(c&1))//4
        return [f"ds_read2_b32 {P(r+2*h,k)}, v{AB+(c>>1)} offset0:{o+2*h} offset1:{o+2*h+1} ; @" for h in range(2)]
    def rdB(G,c):
        k,r=reg(G,8+c); return [f"ds_read_b128 {Q(r,k)}, v{BB+(G&3)} offset:{4096*c+(0 if (G&7)>>2 else 2048)} ; @"]
    def asc(G): return G&7!=7 and G!=8
    def reads(G):
        if asc(G): L=flat([rdB(G,c)+rdA(G,c) for c in range(8)]); return [x+(f"f{G}" if i<12 else f"g{G}") for i,x in enumerate(L)]
        return [x+f"g{G}" for x in flat([rdB(G,c) for c in range(8)])+flat([rdA(G,c) for c in range(8)])]
    PFV=253; pft=f"buffer_load_dword v255, v{PFV}, {RW2}, s{XBS} offen ; @pf"
    if OPT["pf"]:
        a(f"v_and_b32 v1, 7, v2\nv_cmp_eq_u32 vcc, 3, v1\nv_and_b32 v1, 15, v2\nv_subb_co_u32 v1, vcc, v1, 0, vcc\nv_lshrrev_b32 v3, 4, v2\nv_lshlrev_b32 v3, 12, v3\nv_lshl_add_u32 v{PFV}, v1, 7, v3")
        a(f"s_lshr_b32 s4, s2, 3\ns_sub_u32 s4, s4, 27\ns_lshl2_add_u32 s4, s4, s3\ns_lshl_b32 s4, s4, 2\ns_mul_i32 s5, s{KQ}, 1152\ns_add_u32 s4, s4, s5\ns_lshl_b32 s4, s4, 12\ns_and_b32 s5, s2, 1\ns_lshl_b32 s5, s5, 11\ns_add_u32 s{XBS}, s4, s5")
    a("@W - 0")
    a.extend([x+"g0" for x in flat([rdA(0,c) for c in range(8)])])
    stamp(a,5); stamp(a,11,"K")
    a.extend(poll_check("pkX",PB))
    stamp(a,6); stamp(a,12,"K")
    for i in range(8): a.extend(dma(f"s_add_u32 m0, s9, {i*1024}",[f"s_add_u32 s14, s7, {i*8*GS}",f"buffer_load_dwordx4 v{VK+(i&1)}, {WS}, s14 offen sc1 lds ; @kvi{i}"]))
    for k in range(OPT["pfa"]): a(pft+f"\ns_add_u32 s{XBS}, s{XBS}, {80*4096}")
    a("@W kvi7 0\ns_barrier")
    a.extend([x+"g0" for x in flat([rdB(0,c) for c in range(8)])])
    for t in range(xa): a.extend(slot_rdx(t))
    mf=[]
    for G in range(16):
        def M(c,q,z): return f"v_mfma_f32_16x16x32_bf16 {Q(ACC+4*q)}, {Q(reg(G,c)[1],reg(G,c)[0])}, {Q(reg(G,8+q-c)[1],reg(G,c)[0])}, "+("0" if z else Q(ACC+4*q))
        for q in (range(8) if asc(G) else range(7,-1,-1)):
            cs=list(range(q+1)); cs=cs if q&1==0 else cs[::-1]
            mf+=[M(c,q,G&7==0 and i==0) for i,c in enumerate(cs)]
    S=Strm(mf)
    def epi(ch,q):
        A=ACC+4*q; k=T+2*q
        return [f"v_cvt_pk_bf16_f32 v{k}, v{A}, v{A+1}", f"v_cvt_pk_bf16_f32 v{k+1}, v{A+2}, v{A+3}", f"buffer_store_dwordx2 {P(k)}, v{YO}, {WS}, s{C0} offen offset:{512*q} sc1 ; @y{ch}"]
    def yflag(ch): return [f"s_add_u32 s8, s{US}, {4*ch}","s_and_b32 s9, s8, 3","s_lshr_b32 s8, s8, 2","s_lshl_b32 s8, s8, 7","s_lshl2_add_u32 s8, s9, s8",f"s_add_u32 s8, s8, {FY}",f"@W y{ch}",f"buffer_store_dword v{NV}, v{FZ}, {WS}, s8 offen sc1 ; @yf"]
    for G in range(15):
        b=36*G; rr=reads(G+1)
        if G==6:
            S.fit(rr[:10],b,b+14); S.fit(rr[10:],b+14,b+29)
            S.fit([f"v_xor_b32 v{BB+v}, 64, v{BB+v}" for v in range(4)],b+18,b+35); S.fit([f"v_add_u32 v{AB+p}, {CV_BUF}, v{AB+p}" for p in range(4)],b+29,b+35)
        else: S.fit(rr,b,b+(29 if not asc(G+1) else 35))
    tl=list(state["inregs"]); BWX={G:[[],[]] for G in range(17)}; fr=[1 if k<xa else 0 for k in range(OPT["xn"])]; late=[]; Gi=OPT["xt0"]-1
    if xa: BWX[1][1].append(f"r2_{xa-1}")
    for i,t in enumerate(tl):
        if i<xa: continue
        s=i%OPT["xn"]; Gi=max(Gi+1,fr[s]); Gd=Gi+(OPT["xlat"] if t in state["cold"] else OPT["xlh"])
        if Gd>14: late.append(t); continue
        d=wdma(2,t,XS0+s*SLOT); g=36*Gi+1
        S.fit(d[:2],g,g+2); S.fit(d[2:],g+2,g+16,dev=1)
        S.fit(wreads(2,t,RBX,s*SLOT),36*Gd+1,36*Gd+34); BWX[Gd][0].append(f"w2_{t}"); BWX[Gd+1][1].append(f"r2_{t}"); fr[s]=Gd+1
    if OPT["pf"]:
        k=0
        while k<15-OPT["pfa"] and OPT["pf0"]+k*OPT["pfs"]<15.8:
            g=int(36*(OPT["pf0"]+k*OPT["pfs"])); S.fit([pft,f"s_add_u32 s{XBS}, s{XBS}, {80*4096}"],g,g+6); k+=1
        pfl=15-OPT["pfa"]-k
    b=36*7; S.fit(epi(0,7),b+16,b+22); S.fit(epi(0,6),b+22,b+29); S.fit(epi(0,5),b+29,b+36)
    b=36*8; S.fit(epi(0,4)+epi(0,3)+epi(0,2),b,b+17); S.fit(epi(0,1)+epi(0,0)+[f"s_add_u32 s{C0}, s{C0}, 16384"],b+17,b+28)
    S.fit(yflag(0),36*11,36*11+20)
    tpre,td1,td2,tz,tb=tprep(T,LH,XBR); Gt=OPT["xtd"]; assert 7<=Gt and Gt+OPT["xtl"]<=13 and not (8 in (Gt+OPT["xtl"],))
    S.fit(dsetup()+state["tabs"]+tpre,0,36*7)
    for k,d in enumerate((td2,td1)): S.fit(d[:1],36*Gt+19+4*k,36*Gt+20+4*k); S.fit(d[1:],36*Gt+21+4*k,36*Gt+22+4*k)
    S.fit(tz,36*Gt,36*(Gt+1)); Gt+=OPT["xtl"]; BWX[Gt][0]+=["tf","ti"]; BWX[Gt][1].append("tz")
    S.fit(tb,36*Gt+1,36*Gt+34); BWX[Gt+1][1].append("tw")
    S.fit(yfsetup(OC)+tagsetup()+idsetup()+tsetup(),max(36*(Gt+1),36*12),36*15-1)
    b=36*15; S.fit(epi(1,7),b+16,b+22); S.fit(epi(1,6),b+22,b+29); S.fit(epi(1,5),b+29,b+36)
    ins=[] if late else flat([wdma(2,t,s*SLOT) for t,s in sorted(state["inslot"].items())])
    S.fit(ins,b+1,b+36)
    S.fit(absetup()+[f"v_add_u32 v{RH}, {RING}, v{L16}",f"v_add_u32 v{RH+1}, {RING+3*RS}, v{L16}"]+[f"v_subrev_u32 v{RB+k}, {XS0}, v{RB+k}" for k in range(2)]+state["first"],b,b+36)
    S.check()
    for G in range(1,16):
        vt,lt=BWX[G]; lt=lt+[f"f{G}" if asc(G) else f"g{G}"]
        S.add(36*G-1,f"@W {','.join(vt) or '-'} {','.join(lt)}\ns_barrier",front=True)
        if asc(G): S.add(36*G+9,f"@W - g{G}",front=True)
    LOG("; conv overload"," ".join(str(S.over(36*G,36*G+36)) for G in range(16)),"late tiles",late,"state",state["inregs"],state["inslot"],file=sys.stderr)
    a("@W - g0"); stamp(a,13,"K")
    def hook(a,i):
        if i%72==0: stamp(a,1+i//72,"B")
    S.emit(a,0,None,hook)
    for q in range(4,-1,-1): a.extend(epi(1,q))
    stamp(a,7)
    if OPT["pf"]:
        for k in range(pfl): a(pft+f"\ns_add_u32 s{XBS}, s{XBS}, {80*4096}")
    if late:
        while late:
            bt,late=late[:NW],late[NW:]
            for s,t in enumerate(bt): a.extend(wdma(2,t,s*SLOT))
            a(f"@W w2_{bt[-1]}\ns_barrier")
            for s,t in enumerate(bt): a.extend(slot_rd(2,t,s))
            a("@W - 0\ns_barrier")
        for t,s in sorted(state["inslot"].items()): a.extend(wdma(2,t,s*SLOT))
    a(f"s_mov_b32 s{US}, {OOB}\ns_mov_b32 s{FUS}, {OOB}\ns_mov_b32 s{PKO}, 0")
    if OPT["u1p"]<32: a(poll_issue("p1",PA))
    a("@W - 0\ns_branch L_D")

def check_m0(segs):
    cur=None
    for seg in segs:
        for ins in seg.L:
            if "m0" in ins.w: cur=ins.text.strip()
            m=re.search(r" lds ; @(\S+)",ins.text)
            if m and m.group(1) in M0EXP and m.group(1) not in DUP: assert cur==M0EXP[m.group(1)].strip(),(ins.text,cur,M0EXP[m.group(1)])
DUP=set()
def build(**kw):
    OPT.update(kw); lds_layout()
    hdr=open("cdna_kernels/"+NAME+".s.ref").read().split("; Override launch")[0]
    segs=s0,sG,sB,sS,sX=[Asm() for _ in range(5)]
    p0(s0); ga=roleG_A(sG); nc=len(COLD); prev=None
    for it in range(3):
        del COLD[nc:]; S,pro,rd0,tail,state=mainstream(*ga,prev); prev=state["prev"]
    emit_main(sB,sS,S,pro,rd0,tail)
    check_m0([sG,sB,sS]); M0EXP.clear()
    roleX(sX,state); check_m0([sX])
    for seg in segs:
        for ins in seg.L:
            m=re.search(r";\s*@(\S+)",ins.text)
            if OPT.get("drop"):
                if ins.kind=="vmem" and m and re.fullmatch(OPT["drop"],m.group(1)): ins.__init__("")
                elif ins.text.startswith("@W"):
                    p=ins.text.split(); tg=[t for t in p[1].split(",") if not re.fullmatch(OPT["drop"],t)]
                    ins.__init__(" ".join(["@W",",".join(tg) or "-"]+p[2:]))
            if OPT.get("xcut") and seg is sX and ins.kind=="mfma" and (id(ins)>>6)%OPT["xcut"]==0: ins.__init__("s_nop 0")
            if OPT.get("xdrop") and seg is sX:
                if ins.kind=="vmem" and m and re.fullmatch(OPT["xdrop"],m.group(1)): ins.__init__("")
            if OPT.get("nomf") and ins.kind=="mfma" and (OPT["nomf"]==1 or (id(ins)>>6)%OPT["nomf"]): ins.__init__("s_nop 0")
            if OPT.get("nt") and ins.kind=="vmem" and m and re.fullmatch(OPT["nt"],m.group(1)):
                ins.__init__(ins.text.replace(" lds ;"," nt lds ;") if " lds ;" in ins.text else ins.text.replace(" ;"," nt ;"))
    LOG("; waits without producer on the X path:",resolve_vm([[s0,sG,sB,sS],[s0,sX,sS]],lenient=(1,)),file=sys.stderr)
    a=Asm(); a.L=flat([s.L for s in segs]); c=Asm(); c.extend(COLD)
    if OPT["iw"]:
        k=[i for i,x in enumerate(a.L) if x.text==".p2align 12"][0]; a.L=a.L[:k]+c.L+a.L[k:]
    else: a.L+=c.L
    a("L_end:"); n0=len(a.L); a.fix()
    LOG("; nops inserted",len(a.L)-n0,file=sys.stderr)
    if OPT["iw"]:
        def disp(cnt):
            d=Asm()
            for nm in "GXS":
                d(f"L_wc_{nm}:")
                for w in range(4):
                    tgt=f"L_pl_{nm}_{w}" if w<cnt[nm] else "L_wret"
                    d(f"s_cmp_eq_u32 s3, {w}\ns_cbranch_scc1 {tgt}" if w<3 else f"s_branch {tgt}")
            d("L_wret:\ns_setpc_b64 s[10:11]")
            return d.L
        k=[i for i,x in enumerate(a.L) if x.text==".p2align 12"][0]
        L,cnt=page_landings(a.L[:k]+disp(dict(G=0,X=0,S=0))+a.L[k:],"L_org",[("G","L_segG","L_D"),("S","L_D","L_segE"),("X","L_segX","L_end")])
        n=len(disp(cnt)); a.L=L[:k]+disp(cnt)+L[k+n:]
        LOG("; landings",cnt,file=sys.stderr)
    return (hdr+"; @launch grid=(256,1,1) block=(256,1,1) lds=163840\n"+'.amdgcn_target "amdgcn-amd-amdhsa--gfx950"\n.text\n'+a.text()
            +'.section .rodata,"a"\n'+kdesc(KN,256,256))
if __name__=="__main__":
    kw={}
    for x in sys.argv[2:]:
        k,v=x.split("=",1)
        kw[k]=int(v) if re.fullmatch(r"-?\d+",v) else float(v) if re.fullmatch(r"-?\d+\.\d+",v) else v
    try: open(sys.argv[1],"w").write(build(**kw))
    finally:
        for k,v in LOGS.items(): print(k,v,file=sys.stderr)
```

```python
import sys,re
from asmlib import Ins
L=[l.rstrip("\n") for l in open(sys.argv[1])]
lab={l[:-1]:i for i,l in enumerate(L) if re.fullmatch(r"\w+:",l)}
start=[i for i,l in enumerate(L) if l.endswith("_kernel:")][0]
def path(role):
    i=start; out=[]
    while True:
        t=L[i].split(";")[0].strip(); out.append(L[i].strip())
        if t=="s_endpgm": return out
        if t.startswith("s_branch"): i=lab[t.split()[1]]; continue
        if t=="s_cbranch_scc0 L_aux" and role=="X": i=lab["L_aux"]; continue
        i+=1
bad=0
for role in "GX":
    wr={"s0","s1","s2","v0","exec","vcc","m0"}; vm=[]; lg=[]; seen=set()
    for t in path(role):
        ins=Ins(t)
        if ins.label: continue
        if ins.op=="s_waitcnt":
            m=re.search(r"vmcnt\((\d+)\)",t)
            if m: k=int(m.group(1)); vm=vm[max(0,len(vm)-k):] if k else []
            m=re.search(r"lgkmcnt\((\d+)\)",t)
            if m: k=int(m.group(1)); lg=lg[max(0,len(lg)-k):] if k else []
            continue
        if ins.op=="s_call_b64": wr|=ins.w; continue
        r=set(ins.r)
        if ins.op.startswith(("v_writelane","s_cselect","s_cbranch")): r-=ins.w if ins.op.startswith("v_writelane") else set()
        for x in sorted(r-wr):
            if (role,x) not in seen: print(role,"uninitialised",x,":",t); seen.add((role,x)); bad+=1
        for q in (vm,lg):
            for d,src in q:
                h=d&(ins.r|ins.w)
                if h and not (h<={"v255"} and not h&ins.r): print(role,"in flight",sorted(h),":",t,"<=",src); bad+=1
        if ins.kind=="vmem": vm.append((set(ins.w),t))
        elif ins.kind=="ds" or ins.op.startswith(("s_load","s_memtime","s_memrealtime")): lg.append((set(ins.w),t))
        wr|=ins.w
print("problems:",bad)
```
